```python
import torch

def _softmax(x, axis=-1):
    return torch.softmax(x, dim=axis)
def _gelu(x):
    return torch.nn.functional.gelu(x, approximate="tanh")
def _silu(x):
    return torch.nn.functional.silu(x)
def _sigmoid(x):
    return torch.sigmoid(x)
def _layernorm(x, axis=-1, eps=1e-5):
    m = x.mean(dim=axis, keepdim=True)
    v = x.var(dim=axis, keepdim=True, unbiased=False)
    return (x - m) / torch.sqrt(v + eps)
def _scatter_add(tgt, idx, src, axis=0):
    return tgt.clone().index_add_(axis, idx, src)
def _segment_sum(src, seg, n):
    out = torch.zeros((n,) + src.shape[1:], dtype=src.dtype)
    return out.index_add_(0, seg, src)
def _pad(x, pw):
    flat = tuple(v for pair in reversed(pw) for v in pair)
    return torch.nn.functional.pad(x, flat)

kernel_name = 'recurrent_scan__mha_block_cached__mixer_s_mlp__prompt'

def setup_inputs():

    _w = (lambda a: (lambda t: t.to(torch.bfloat16) if t.is_floating_point() else t)(torch.as_tensor(a)))
    def _A_setup():
        B, Sq, D = 1, 2048, 576
        H, Sk, Dh = 32, 2048, 128
        return {
            "x": _w((lambda *s: torch.randn(*s, dtype=torch.bfloat16) * 0.05)(B, Sq, D)),
            "k_cache": _w((lambda *s: torch.randn(*s, dtype=torch.bfloat16) * 0.8)(B, H, Sk, Dh)),
            "v_cache": _w((lambda *s: torch.randn(*s, dtype=torch.bfloat16) * 0.8)(B, H, Sk, Dh)),
            "wq": _w((lambda *s: torch.randn(*s, dtype=torch.bfloat16) * 0.8)(D, H * Dh) * (D ** -0.5)),
            "wo": _w((lambda *s: torch.randn(*s, dtype=torch.bfloat16) * 0.8)(H * Dh, D) * ((H * Dh) ** -0.5)),
        }
    _A_in = _A_setup()

    def _B_setup():
        B, S, D, F = 1, 2048, 576, 4608
        return {
            "x":  _w((lambda *s: torch.randn(*s, dtype=torch.bfloat16) * 0.05)(B, S, D)),
            "w1": _w((lambda *s: torch.randn(*s, dtype=torch.bfloat16) * 3.2)(D, D) * (D ** -0.5)),
            "w2": _w((lambda *s: torch.randn(*s, dtype=torch.bfloat16) * 3.2)(D, D) * (D ** -0.5)),
            "w3": _w((lambda *s: torch.randn(*s, dtype=torch.bfloat16) * 3.2)(D, F) * (D ** -0.5)),
            "w4": _w((lambda *s: torch.randn(*s, dtype=torch.bfloat16) * 3.2)(F, D) * (F ** -0.5)),
        }
    _B_in = _B_setup()

    return {
        "A_x": _A_in["x"],
        "A_k_cache": _A_in["k_cache"],
        "A_v_cache": _A_in["v_cache"],
        "A_wq": _A_in["wq"],
        "A_wo": _A_in["wo"],
        "B_x": _B_in["x"],
        "B_w1": _B_in["w1"],
        "B_w2": _B_in["w2"],
        "B_w3": _B_in["w3"],
        "B_w4": _B_in["w4"],
    }

def reference(A_x, A_k_cache, A_v_cache, A_wq, A_wo, B_x, B_w1, B_w2, B_w3, B_w4):
    def _A_ref(x, k_cache, v_cache, wq, wo):
        B, Sq, D = x.shape
        H, Dh = 32, 128
        q = (lambda x, *d: x.permute(*d))((x @ wq).reshape(B, Sq, H, Dh), 0, 2, 1, 3)
        scores = torch.einsum("bhqd,bhkd->bhqk", q, k_cache) * (Dh ** -0.5)
        p = _softmax(scores, axis=-1)
        o = torch.einsum("bhqk,bhkd->bhqd", p, v_cache)
        return (lambda x, *d: x.permute(*d))(o, 0, 2, 1, 3).reshape(B, Sq, H * Dh) @ wo

    def _B_ref(x, w1, w2, w3, w4):
        B, S, D = x.shape
        h = _gelu(_layernorm(x, axis=-1) @ w1)
        c = D // 4
        g0 = _pad(h[:, :, 0*c:1*c], ((0, 0), (1, 0), (0, 0)))[:, :S, :]
        g1 = _pad(h[:, :, 1*c:2*c], ((0, 0), (0, 1), (0, 0)))[:, 1:, :]
        g2 = _pad(h[:, :, 2*c:3*c], ((0, 0), (2, 0), (0, 0)))[:, :S, :]
        g3 = _pad(h[:, :, 3*c:   ], ((0, 0), (0, 2), (0, 0)))[:, 2:, :]
        hs = torch.concatenate([g0, g1, g2, g3], axis=-1) @ w2
        x1 = x + hs
        h2 = _gelu(_layernorm(x1, axis=-1) @ w3) @ w4
        return x1 + h2

    x = A_x
    xn = _layernorm(x, axis=-1)
    s = _A_ref(xn, A_k_cache, A_v_cache, A_wq, A_wo)
    g = _silu(_B_ref(xn, B_w1, B_w2, B_w3, B_w4))
    return x + s * g
```

```python
from gen_common import *
A_O = 0
A_Q = 128
A_K = 192
A_V = 224
V_KD = 1
V_VD = 5
V_KA = 7
V_VA = 11
V_LS = 19
V_T = 24
V_WD = 40
V_L16 = 42
V_L16B = 43
V_M = 44
V_WA = 48
V_NEGM = 96
V_S = 128
KREG = 0; VREG = 65536
THR = 0x4B800000
def mf(d, A, B, c): return f"v_mfma_f32_16x16x32_bf16 {d}, {A}, {B}, {c}"
def sbuf(u): return V_S + 32 * (u % 4)
STAMP = False
def stamp(a, i):
    if STAMP:
        a.I(f"s_memtime s[{60+4*i}:{61+4*i}]")
        a.I(f"s_memrealtime s[{62+4*i}:{63+4*i}]")

def k_reads(u):
    t = u >> 1; off = KREG + (t % 4) * 16384 + (u & 1) * 8192
    return [f"ds_read_b128 {ar(A_K + (kt*4+ks)*4, 4)}, v{V_KA+ks} offset:{off + kt*4096}" for kt in range(2) for ks in range(4)]
def v_reads(u):
    t = u >> 1; off = (t % 4) * 16384 + (u & 1) * 8192
    return [f"ds_read_b64_tr_b16 {ar(A_V + dt*4 + 2*m, 2)}, v{V_VA+dt} offset:{off + m*4096}" for dt in range(8) for m in range(2)]
def qk_mfmas(u, cinit):
    M = []
    for qt in range(4):
        for kt in range(2):
            for ks in range(4):
                d = vr(sbuf(u) + (qt*2+kt)*4, 4)
                c = d if ks else (vr(V_NEGM + 4*qt, 4) if cinit else "0")
                M.append(mf(d, ar(A_K + (kt*4+ks)*4, 4), ar(A_Q + (qt*4+ks)*4, 4), c))
    return M
def oacc(dt, qt): return A_O + ((qt*4 + (dt >> 1))*2 + (dt & 1))*4
def pv_mfmas(u):
    M = []
    for dt in range(8):
        for qt in range(4):
            o = ar(oacc(dt, qt), 4)
            M.append(mf(o, ar(A_V + dt*4, 4), vr(sbuf(u) + qt*8, 4), o))
    return M
def sm_exp(u, e): r = sbuf(u) + e; return f"v_exp_f32 v{r}, v{r}"
def sm_add(u, e):
    r = sbuf(u) + e; l = V_LS + (e >> 3)
    return f"v_add_f32 v{l}, v{l}, v{r}"
def sm_cvt(u, p):
    qt = p >> 2; i = p & 3; b = sbuf(u) + 8*qt
    return f"v_cvt_pk_bf16_f32 v{b+i}, v{b+2*i}, v{b+2*i+1}"
def dma_k(a, t):
    r = [f"s_add_u32 m0, s30, {KREG + (t % 4) * 16384}"]
    for i in range(4):
        r.append(("vm", f"K{t}", f"buffer_load_dwordx4 v{V_KD+i}, s[4:7], s25 offen offset:{i*1024} lds"))
    r.append("s_add_u32 s25, s25, 16384")
    return r
def dma_v(a, t):
    r = [f"s_add_u32 m0, s30, {VREG + (t % 4) * 16384}"]
    for i in range(4):
        r.append(("vm", f"V{t}", f"buffer_load_dwordx4 v{V_VD+(i&1)}, s[8:11], s26 offen offset:{i*1024} lds"))
    r.append("s_add_u32 s26, s26, 16384")
    return r
def emit(a, x):
    if isinstance(x, tuple):
        a.vm_issue(x[1]); a.I(x[2])
    else: a.I(x)

NU = 64
def body(a, u, steady=False):
    do_qk = u + 1 < NU; do_pv = u >= 1
    M = (qk_mfmas(u + 1, True) if do_qk else [None]*32) + (pv_mfmas(u - 1) if do_pv else [None]*32)
    G = [[] for _ in range(64)]
    pre = [[] for _ in range(64)]
    for p in range(32):
        G[2*p].append(sm_exp(u, p))
        if p >= 1: G[2*p+1].append(sm_add(u, p - 1))
        elif u >= 1: G[1].append(sm_add(u - 1, 31))
        if p >= 2 and p % 2 == 0: G[2*p+1].append(sm_cvt(u, p // 2 - 1))
        elif p == 0 and u >= 1: G[1].append(sm_cvt(u - 1, 15))
    if do_pv:
        vr_ = v_reads(u - 1); k = 0
        for p in range(12):
            n = 2 if p in (1, 3, 5, 7) else 1
            for _ in range(n): G[2*p+1].append(vr_[k]); k += 1
        assert k == 16
    if u + 2 < NU:
        kr = k_reads(u + 2)
        for k, p in enumerate((16, 17, 19, 20, 21, 23, 25, 27)): G[2*p+1].append(kr[k])
    T = u >> 1
    if u % 2 == 0:
        need = {f"K{T+1}", f"V{T}"}
        pre[32].append(("wait", need, 16))
        if T + 4 < 32:
            d = dma_k(a, T + 4)
            G[53].append(d[0]); G[57].append(d[1]); G[59].append(d[2]); G[61].append(d[3]); G[63].append(d[4]); G[63].append(d[5])
    else:
        pre[32].append("s_waitcnt lgkmcnt(0)")
        if T + 3 < 32:
            d = dma_v(a, T + 3)
            G[25].append(d[0]); G[27].append(d[1]); G[31].append(d[2]); G[59].append(d[3]); G[63].append(d[4]); G[63].append(d[5])
    pre[0].append("s_waitcnt lgkmcnt(0)")
    a.C(f"---- body {u}")
    for g in range(64):
        for x in pre[g]:
            if isinstance(x, tuple):
                _, need, n = x
                n2 = a.vm_wait(need)
                if steady: assert n2 == n
                a.I(f"s_waitcnt vmcnt({n2}) lgkmcnt(0)")
                a.I("s_barrier")
            else: a.I(x)
        if M[g]: a.I(M[g])
        for x in G[g]: emit(a, x)

WSLOT = [1, 4, 2, 5, 3, 6, 7, 8, 9]
def xset(c): s = c % 5; return 32 * s if s < 4 else 192

def gen_attn(name="attn_kernel", force_fallback=False):
    a = Asm()
    kernel_begin(a, name)
    stamp(a, 0)
    a.I(f"""
    s_cmp_ge_u32 s2, 256
    s_cbranch_scc1 L_{name}_done
    s_load_dwordx4 s[36:39], s[0:1], {KA['k']}
    s_load_dwordx2 s[40:41], s[0:1], {KA['wq']}
    s_load_dwordx2 s[42:43], s[0:1], {KA['ws']}
    v_lshrrev_b32 v1, 6, v0
    v_and_b32 v0, 63, v0
    s_and_b32 s31, s2, 7
    v_readfirstlane_b32 s24, v1
    s_lshr_b32 s32, s2, 3
    s_lshl_b32 s31, s31, 2
    s_lshr_b32 s33, s32, 3
    s_add_u32 s31, s31, s33
    s_and_b32 s32, s32, 7
    s_lshl_b32 s30, s24, 12
    s_lshl_b32 s33, s31, 19
    s_lshl_b32 s34, s31, 8
    s_waitcnt lgkmcnt(0)
    """)
    srd(a, 4, 36, 524288, add_lo=33)
    srd(a, 8, 38, 524288, add_lo=33)
    srd(a, 12, 40, 0, add_lo=34)
    a.I("s_sub_u32 s14, 0x480000, s34")
    srd(a, 16, 42, SZ_ACT, add_imm=WS_XQ)
    srd(a, 20, 42, 0x1000000, add_imm=WS_O)
    T = V_T
    a.I(f"""
    v_lshrrev_b32 v{T}, 4, v0            ; g = r4 = lane>>4
    v_and_b32 v{T+1}, 15, v0
    v_xor_b32 v{T+2}, v{T+1}, v{T}
    v_lshlrev_b32 v{T+2}, 4, v{T+2}      ; (pos^r4)*16
    v_lshl_add_u32 v{V_KD}, v{T}, 8, v{T+2}
    v_xor_b32 v{V_KD+1}, 64, v{V_KD}
    v_xor_b32 v{V_KD+2}, 0x80, v{V_KD}
    v_xor_b32 v{V_KD+3}, 0xc0, v{V_KD}
    v_lshl_add_u32 v{V_KA}, v{T+1}, 8, v{T+2}   ; K read: i*256 + ((g^i)*16)
    v_xor_b32 v{V_KA+1}, 64, v{V_KA}
    v_xor_b32 v{V_KA+2}, 0x80, v{V_KA}
    v_xor_b32 v{V_KA+3}, 0xc0, v{V_KA}
    v_lshlrev_b32 v{T+2}, 1, v{T}
    v_xor_b32 v{T+2}, v{T+1}, v{T+2}     ; pos ^ (r4<<1)
    v_lshlrev_b32 v{T+2}, 4, v{T+2}
    v_lshl_add_u32 v{V_VD}, v{T}, 8, v{T+2}
    v_xor_b32 v{V_VD+1}, 0x80, v{V_VD}
    v_lshl_add_u32 v{V_WD}, v{T}, 13, v{T+2}
    v_xor_b32 v{V_WD+1}, 0x80, v{V_WD}
    v_lshlrev_b32 v{V_L16}, 4, v0
    v_add_u32 v{V_L16B}, 0x1000, v{V_L16}
    v_lshrrev_b32 v{T}, 2, v0            ; row 0..15
    v_and_b32 v{T+1}, 7, v{T}            ; row7
    v_and_b32 v{T+2}, 3, v0              ; c
    v_lshlrev_b32 v{T+3}, 8, v{T}        ; row*256
    v_lshl_add_u32 v{T+4}, v{T+1}, 5, v{T+3}   ; + row7*32
    v_lshl_add_u32 v{T+4}, v{T+2}, 3, v{T+4}   ; + c*8
    v_add_u32 v{V_VA}, {VREG}, v{T+4}
    v_lshlrev_b32 v{T+1}, 1, v{T+1}
    v_xor_b32 v{T+1}, v{T+1}, v{T+2}     ; c ^ (row7<<1)
    v_lshl_add_u32 v{V_WA}, v{T+1}, 4, v{T+3}
    """)
    for dt in range(1, 8): a.I(f"v_xor_b32 v{V_VA+dt}, {dt*32}, v{V_VA}")
    for t in range(1, 4): a.I(f"v_xor_b32 v{V_WA+t}, {t*64}, v{V_WA}")
    for t in range(4): a.I(f"v_add_u32 v{V_WA+4+t}, 0x10000, v{V_WA+t}")
    for t in range(4): a.I(f"v_add_u32 v{V_WA+8+t}, 0x20000, v{V_WA+t}")
    a.I(f"""
    s_lshl_b32 s33, s32, 4
    s_lshl_b32 s34, s24, 2
    s_add_u32 s33, s33, s34
    s_mul_i32 s27, s33, {18*1024}
    s_lshl_b32 s29, s24, 17
    s_mov_b32 s25, s30
    s_mov_b32 s26, s30
    """)
    def dma_w(c):
        for i in range(4):
            a.I(f"s_add_u32 m0, s30, {WSLOT[c]*16384 + i*1024}")
            a.I(f"s_add_u32 s35, s29, {c*64*8192 + i*4*8192}")
            a.vm_issue(f"W{c}")
            a.I(f"buffer_load_dwordx4 v{V_WD+(i&1)}, s[12:15], s35 offen lds")
    def ld_x(c):
        for kl in range(2):
            for qt in range(4):
                a.I(f"s_add_u32 s35, s27, {qt*18*1024 + (c*2+kl)*1024}")
                a.vm_issue(f"X{c}")
                a.I(f"buffer_load_dwordx4 {ar(xset(c) + (kl*4+qt)*4, 4)}, v{V_L16}, s[16:19], s35 offen")
    for c in range(4):
        dma_w(c); ld_x(c)
    for x in dma_k(a, 0): emit(a, x)
    def abuf(y): return A_V if y % 2 == 0 else A_Q
    def w_reads(y):
        s = WSLOT[y >> 1]; base = V_WA + 4 * (s >> 2); off = (s % 4) * 16384 + (y & 1) * 8192
        return [f"ds_read_b64_tr_b16 {ar(abuf(y) + (t*2+b)*4 + 2*m, 2)}, v{base+t} offset:{off + m*4096 + 8*b}"
                for t in range(4) for b in range(2) for m in range(2)]
    n = a.vm_wait({"W0"})
    a.I(f"s_waitcnt vmcnt({n})\ns_barrier")
    for x in w_reads(0): a.I(x)
    post_bar = {1: ("k", 1), 2: ("v", 0), 3: ("k", 2), 4: ("v", 1), 5: ("k", 3), 6: ("v", 2)}
    for y in range(18):
        c = y >> 1
        a.C(f"---- qproj unit {y}")
        if y % 2 == 1 and c + 1 < 9:
            n = a.vm_wait({f"W{c+1}", f"X{c}"})
            a.I(f"s_waitcnt vmcnt({n}) lgkmcnt(0)\ns_barrier")
        else:
            n = a.vm_wait({f"X{c}"})
            a.I(f"s_waitcnt vmcnt({n}) lgkmcnt(0)")
        rd = w_reads(y + 1) if y + 1 < 18 else []
        M = []
        for tb in range(8):
            for qt in range(4):
                d = vr(V_S + (qt*8 + tb)*4, 4)
                M.append(mf(d, ar(abuf(y) + tb*4, 4), ar(xset(c) + ((y & 1)*4+qt)*4, 4), d if y else "0"))
        k = 0
        for g in range(32):
            a.I(M[g])
            if g < 24 and g % 3 != 2 and k < len(rd): a.I(rd[k]); k += 1
            if y % 2 == 1 and g == 24 and (c + 1) in post_bar:
                kind, t = post_bar[c + 1]
                for x in (dma_k(a, t) if kind == "k" else dma_v(a, t)): emit(a, x)
            if y % 2 == 0 and g == 24 and c + 4 < 9: dma_w(c + 4)
            if y % 2 == 0 and g == 26 and c + 4 < 9: ld_x(c + 4)
        assert k == len(rd)
    stamp(a, 1)
    a.I("s_nop 7\ns_nop 7")
    for qt in range(4):
        for t in range(4):
            b = V_S + (qt*8 + t*2)*4
            for i in range(4): a.I(f"v_cvt_pk_bf16_f32 v{b+i}, v{b+2*i}, v{b+2*i+1}")
            for i in range(4): a.I(f"v_accvgpr_write_b32 a{A_Q + (qt*4+t)*4 + i}, v{b+i}")
    def zero_o():
        for r in range(128): a.I(f"v_accvgpr_write_b32 a{A_O + r}, 0")
        for r in range(4): a.I(f"v_mov_b32 v{V_LS + r}, 0")
    n = a.vm_wait({"K0"})
    a.I(f"s_waitcnt vmcnt({n})\ns_barrier")
    for x in k_reads(0): a.I(x)
    zero_o()
    a.I("s_waitcnt lgkmcnt(0)")
    for x in qk_mfmas(0, False): a.I(x)
    for x in k_reads(1): a.I(x)
    a.I("s_nop 7\ns_nop 7")
    def xlane(op, dst):
        a.I(f"""v_mov_b32 v{dst+1}, v{dst}
        s_nop 1
        v_permlane16_swap_b32 v{dst}, v{dst+1}
        s_nop 1
        {op} v{dst}, v{dst}, v{dst+1}
        v_mov_b32 v{dst+1}, v{dst}
        s_nop 1
        v_permlane32_swap_b32 v{dst}, v{dst+1}
        s_nop 1
        {op} v{dst}, v{dst}, v{dst+1}""")
    def rowmax(u, qt, dst):
        b = sbuf(u) + 8*qt
        a.I(f"v_max3_f32 v{dst}, v{b}, v{b+1}, v{b+2}")
        a.I(f"v_max3_f32 v{dst}, v{dst}, v{b+3}, v{b+4}")
        a.I(f"v_max3_f32 v{dst}, v{dst}, v{b+5}, v{b+6}")
        a.I(f"v_max_f32 v{dst}, v{dst}, v{b+7}")
        xlane("v_max_f32", dst)
    for qt in range(4):
        rowmax(0, qt, T)
        for r in range(4): a.I(f"v_sub_f32 v{V_NEGM + 4*qt + r}, 0, v{T}")
        for r in range(8): a.I(f"v_sub_f32 v{sbuf(0) + 8*qt + r}, v{sbuf(0) + 8*qt + r}, v{T}")
    a.I("s_nop 1")
    stamp(a, 2)
    for u in range(0, 8): body(a, u)
    a.I("s_mov_b32 s27, 6")
    a.raw(".p2align 6")
    a.label(f"L_{name}_loop")
    vm_before = list(a.vm)
    for u in range(8, 16): body(a, u, steady=True)
    a.I(f"s_sub_u32 s27, s27, 1\ns_cmp_lg_u32 s27, 0\ns_cbranch_scc1 L_{name}_loop")
    def shift(tag, d): return tag[0] + str(int(tag[1:]) + d)
    assert [shift(t, 4) for t in vm_before] == a.vm, (vm_before, a.vm)
    a.vm = [shift(t, 20) for t in a.vm]
    for u in range(56, 64): body(a, u)
    a.C("---- tail PV(63)")
    a.I(sm_add(63, 31)); a.I(sm_cvt(63, 15))
    for x in v_reads(63): a.I(x)
    a.I("s_waitcnt lgkmcnt(0)")
    for x in pv_mfmas(63): a.I(x)
    stamp(a, 3)
    def lsum_total():
        for qt in range(4):
            a.I(f"v_mov_b32 v{T}, v{V_LS+qt}")
            xlane("v_add_f32", T)
            a.I(f"v_mov_b32 v{V_LS+qt}, v{T}")
    lsum_total()
    a.I(f"""
    s_mov_b32 s33, {THR:#x}
    v_cmp_nle_f32 vcc, v{V_LS}, s33
    v_cmp_nle_f32 s[34:35], v{V_LS+1}, s33
    v_cmp_nle_f32 s[44:45], v{V_LS+2}, s33
    v_cmp_nle_f32 s[46:47], v{V_LS+3}, s33
    s_nop 1
    s_or_b64 vcc, vcc, s[34:35]
    s_or_b64 s[44:45], s[44:45], s[46:47]
    s_or_b64 vcc, vcc, s[44:45]
    s_cmp_lg_u64 vcc, 0
    s_cselect_b32 s33, 1, {1 if force_fallback else 0}
    v_mov_b32 v{T}, s33
    v_lshlrev_b32 v{T+1}, 2, v0
    s_lshl_b32 s34, s24, 8
    v_add_u32 v{T+1}, s34, v{T+1}
    ds_write_b32 v{T+1}, v{T}
    s_waitcnt lgkmcnt(0)
    s_barrier
    v_lshlrev_b32 v{T+1}, 2, v0
    ds_read_b32 v{T}, v{T+1}
    ds_read_b32 v{T+2}, v{T+1} offset:256
    ds_read_b32 v{T+3}, v{T+1} offset:512
    ds_read_b32 v{T+4}, v{T+1} offset:768
    s_waitcnt lgkmcnt(0)
    v_or3_b32 v{T}, v{T}, v{T+2}, v{T+3}
    v_or_b32 v{T}, v{T}, v{T+4}
    s_nop 0
    v_readfirstlane_b32 s33, v{T}
    s_nop 3
    s_cmp_lg_u32 s33, 0
    s_cbranch_scc1 L_{name}_fallback
    """)
    a.label(f"L_{name}_epi")
    for qt in range(4): a.I(f"v_rcp_f32 v{V_LS+qt}, v{V_LS+qt}")
    a.I(f"""
    s_lshl_b32 s33, s32, 4
    s_lshl_b32 s34, s24, 2
    s_add_u32 s33, s33, s34
    s_lshl_b32 s33, s33, 17              ; qt16*128*1024
    s_lshl_b32 s34, s31, 12              ; head*4*1024
    s_add_u32 s33, s33, s34
    """)
    tb = V_S
    for qt in range(4):
        for t in range(4):
            src = A_O + (qt*4+t)*8
            tt = tb; tb += 8
            for i in range(8): a.I(f"v_accvgpr_read_b32 v{tt+i}, a{src+i}")
            for i in range(8): a.I(f"v_mul_f32 v{tt+i}, v{tt+i}, v{V_LS+qt}")
            for i in range(4): a.I(f"v_cvt_pk_bf16_f32 v{tt+i}, v{tt+2*i}, v{tt+2*i+1}")
            a.I(f"buffer_store_dwordx4 {vr(tt,4)}, v{V_L16}, s[20:23], s33 offen offset:{t*1024}")
        if qt < 3: a.I("s_add_u32 s33, s33, 0x20000")
    if STAMP:
        a.I("s_waitcnt vmcnt(0)")
        stamp(a, 4)
        a.I("s_waitcnt lgkmcnt(0)")
        srd(a, 16, 42, 0x100000, add_imm=0x8000000)
        a.I("s_lshl_b32 s33, s2, 2\ns_add_u32 s33, s33, s24\ns_lshl_b32 s33, s33, 7")
        a.I("v_mov_b32 v1, 0")
        for i in range(20):
            a.I(f"v_mov_b32 v2, s{60+i}")
            a.I(f"buffer_store_dword v2, v1, s[16:19], s33 offen offset:{4*i}")
    a.I("s_endpgm")
    a.label(f"L_{name}_fallback")
    zero_o()
    for qt in range(4): a.I(f"v_mov_b32 v{V_M+qt}, 0xff800000")
    a.I("s_mov_b32 s25, s30\ns_mov_b32 s26, s30\ns_mov_b32 s27, 32")
    a.label(f"L_{name}_fb_loop")
    a.I("s_barrier")
    sv = list(a.vm)
    for x in dma_k(a, 0) + dma_v(a, 0): emit(a, x)
    a.vm = sv
    a.I("s_waitcnt vmcnt(0)\ns_barrier")
    for kb in range(2):
        for x in k_reads(kb): a.I(x)
        a.I("s_waitcnt lgkmcnt(0)")
        for x in v_reads(kb): a.I(x)
        a.I("s_waitcnt lgkmcnt(0)")
        for x in qk_mfmas(0, False): a.I(x)
        a.I("s_nop 7\ns_nop 7")
        for qt in range(4):
            rowmax(0, qt, T)
            a.I(f"""
            v_max_f32 v{T}, v{T}, v{V_M+qt}
            v_sub_f32 v{T+2}, v{V_M+qt}, v{T}
            v_exp_f32 v{T+2}, v{T+2}
            v_mov_b32 v{V_M+qt}, v{T}
            v_mul_f32 v{V_LS+qt}, v{V_LS+qt}, v{T+2}
            """)
            for r in range(32):
                o = A_O + qt*32 + r
                a.I(f"v_accvgpr_read_b32 v{T+3}, a{o}\ns_nop 0\nv_mul_f32 v{T+3}, v{T+3}, v{T+2}\ns_nop 0\nv_accvgpr_write_b32 a{o}, v{T+3}")
            for r in range(8):
                e = 8*qt + r
                a.I(f"v_sub_f32 v{sbuf(0)+e}, v{sbuf(0)+e}, v{T}")
                a.I(sm_exp(0, e))
            a.I("s_nop 0")
            for r in range(8): a.I(sm_add(0, 8*qt + r))
            for p in range(4): a.I(sm_cvt(0, 4*qt + p))
        a.I("s_nop 1")
        for x in pv_mfmas(0): a.I(x)
        a.I("s_nop 7\ns_nop 7")
    a.I(f"s_sub_u32 s27, s27, 1\ns_cmp_lg_u32 s27, 0\ns_cbranch_scc1 L_{name}_fb_loop")
    lsum_total()
    a.I(f"s_branch L_{name}_epi")
    a.label(f"L_{name}_done")
    a.I("s_endpgm")
    return a.text(), kernel_desc(name, 512, 256)

if __name__ == "__main__":
    import sys
    STAMP = "stamp" in sys.argv
    t, d = gen_attn(force_fallback="fb" in sys.argv)
    hdr = "; @launch kernel=attn_kernel grid=(256,1,1) block=(256,1,1) lds=163840\n.amdgcn_target \"amdgcn-amd-amdhsa--gfx950\"\n"
    open(sys.argv[1], "w").write(hdr + t + d)
```

```python
S_ROWS = 2048; D = 576; H = 32; DH = 128; F = 4608
WS_XN  = 0x0000000
WS_XQ  = 0x0240000
WS_H   = 0x0480000
WS_X1  = 0x06C0000
WS_ST  = 0x0900000
WS_CS3 = 0x0950000
WS_H3  = 0x1000000
WS_O   = 0x2400000
WS_S32 = 0x3400000
WS_G32 = 0x3900000
SZ_ACT = 0x240000
KA = dict(x=0, k=8, v=16, wq=24, wo=32, bx=40, w1=48, w2=56, w3=64, w4=72, out=80, dbg=88, ws=96)

class Asm:
    def __init__(self):
        self.L = []
        self.vm = []
    def I(self, s):
        for ln in s.split("\n"):
            ln = ln.strip()
            if ln: self.L.append("    " + ln)
    def C(self, s): self.L.append("    ; " + s)
    def label(self, l): self.L.append(l + ":")
    def raw(self, s): self.L.append(s)
    def text(self): return "\n".join(self.L) + "\n"
    def vm_issue(self, tag): self.vm.append(tag)
    def vm_count_for(self, tags):
        last = -1
        for i, t in enumerate(self.vm):
            if t in tags: last = i
        n = len(self.vm) - 1 - last
        return n
    def vm_wait(self, tags):
        n = self.vm_count_for(tags)
        assert n <= 63
        self.vm = self.vm[len(self.vm) - n:] if n else []
        return n

def srd(a, d, ptr_lo, nbytes, add_lo=None, add_imm=None):
    if add_lo is not None:
        a.I(f"s_add_u32 s{d}, s{ptr_lo}, s{add_lo}")
        a.I(f"s_addc_u32 s{d+1}, s{ptr_lo+1}, 0")
    elif add_imm:
        a.I(f"s_add_u32 s{d}, s{ptr_lo}, {add_imm:#x}")
        a.I(f"s_addc_u32 s{d+1}, s{ptr_lo+1}, 0")
    else:
        a.I(f"s_mov_b32 s{d}, s{ptr_lo}")
        a.I(f"s_mov_b32 s{d+1}, s{ptr_lo+1}")
    a.I(f"s_mov_b32 s{d+2}, {nbytes:#x}")
    a.I(f"s_mov_b32 s{d+3}, 0x00020000")

def kernel_begin(a, name):
    a.raw(".text")
    a.raw(f".globl {name}")
    a.raw(".p2align 8")
    a.raw(f".type {name},@function")
    a.label(name)

def kernel_desc(name, vgpr, accum, sgpr=102):
    return f""".section .rodata,"a"
.p2align 6
.amdhsa_kernel {name}
  .amdhsa_next_free_vgpr {vgpr}
  .amdhsa_next_free_sgpr {sgpr}
  .amdhsa_accum_offset {accum}
  .amdhsa_group_segment_fixed_size 0
  .amdhsa_kernarg_size 104
  .amdhsa_user_sgpr_count 2
  .amdhsa_user_sgpr_kernarg_segment_ptr 1
  .amdhsa_system_sgpr_workgroup_id_x 1
  .amdhsa_float_denorm_mode_32 3
.end_amdhsa_kernel
"""

def vr(b, n=1): return f"v{b}" if n == 1 else f"v[{b}:{b+n-1}]"
def ar(b, n=1): return f"a{b}" if n == 1 else f"a[{b}:{b+n-1}]"
def mfma(d, A, B, c): return f"v_mfma_f32_32x32x16_bf16 {d}, {A}, {B}, {c}"
```

```python
from gen_common import *
import struct
def f32(x): return struct.unpack("<I", struct.pack("<f", x))[0]
def mf(d, A, B, c): return f"v_mfma_f32_16x16x32_bf16 {d}, {A}, {B}, {c}"
SLAB = 9216
EPS = 1e-5

def lane_consts(a, pitch, V_PAT, V_TR, V_L16, T, sW=None):
    a.I(f"s_mov_b32 s90, {(1<<32)//18 + 1}")
    a.I(f"s_mov_b32 s91, {pitch}")
    for p in range(9):
        a.I(f"""
        v_add_u32 v{T}, {p*64}, v0
        v_mul_hi_u32 v{T+1}, v{T}, s90
        v_mul_u32_u24 v{T+2}, 18, v{T+1}
        v_sub_u32 v{T+2}, v{T}, v{T+2}          ; ch
        v_mul_lo_u32 v{T+1}, v{T+1}, s91
        v_lshl_add_u32 v{V_PAT+p}, v{T+2}, 4, v{T+1}
        """)
        if p % 4: a.I(f"v_subrev_u32 v{V_PAT+p}, {(p%4)*1024}, v{V_PAT+p}")
    a.I(f"""
    v_lshrrev_b32 v{T}, 2, v0
    v_mul_u32_u24 v{T}, 288, v{T}
    v_and_b32 v{T+1}, 3, v0
    v_lshl_add_u32 v{V_TR}, v{T+1}, 3, v{T}
    v_lshlrev_b32 v{V_L16}, 4, v0
    """)

def dma_slab(a, V_PAT, srdW, s_soff, s_ldsbase, lds_off, tag):
    r = []
    for p in range(9):
        if p % 4 == 0: r.append(f"s_add_u32 m0, s{s_ldsbase}, {lds_off + p*1024}")
        r.append(("vm", tag, f"buffer_load_dwordx4 v{V_PAT+p}, s[{srdW}:{srdW+3}], s{s_soff} offen offset:{(p%4)*1024} lds"))
    return r

def a_reads(dst, V_TR, off, areg=ar):
    return [f"ds_read_b64_tr_b16 {areg(dst + nt*4 + 2*m, 2)}, v{V_TR} offset:{off + m*16*288 + nt*32}" for nt in range(9) for m in range(2)]

def emit(a, x):
    if isinstance(x, tuple): a.vm_issue(x[1]); a.I(x[2])
    else: a.I(x)

def xlane(a, op, dst):
    a.I(f"""v_mov_b32 v{dst+1}, v{dst}
    s_nop 1
    v_permlane16_swap_b32 v{dst}, v{dst+1}
    s_nop 1
    {op} v{dst}, v{dst}, v{dst+1}
    v_mov_b32 v{dst+1}, v{dst}
    s_nop 1
    v_permlane32_swap_b32 v{dst}, v{dst+1}
    s_nop 1
    {op} v{dst}, v{dst}, v{dst+1}""")

C1 = -2.0 * 1.4426950408889634 * 0.7978845608028654
C2 = C1 * 0.044715
def gelu4(a, x, t, sC1, sC2):
    for h in (0, 2):
        a.I(f"v_pk_mul_f32 v[{t+h}:{t+h+1}], v[{x+h}:{x+h+1}], v[{x+h}:{x+h+1}]")
    for h in (0, 2):
        a.I(f"v_pk_fma_f32 v[{t+h}:{t+h+1}], v[{t+h}:{t+h+1}], s[{sC2}:{sC2+1}], v[{sC1}:{sC1+1}]")
    for h in (0, 2):
        a.I(f"v_pk_mul_f32 v[{t+h}:{t+h+1}], v[{t+h}:{t+h+1}], v[{x+h}:{x+h+1}]")
    for i in range(4): a.I(f"v_exp_f32 v{t+i}, v{t+i}")
    for h in (0, 2):
        a.I(f"v_pk_add_f32 v[{t+h}:{t+h+1}], v[{t+h}:{t+h+1}], 1.0 op_sel_hi:[1,0]")
    for i in range(4): a.I(f"v_rcp_f32 v{t+i}, v{t+i}")
    a.I("s_nop 0")
    for h in (0, 2):
        a.I(f"v_pk_mul_f32 v[{x+h}:{x+h+1}], v[{x+h}:{x+h+1}], v[{t+h}:{t+h+1}]")

def gen_k12(which):
    name = f"k{which}_kernel"
    a = Asm(); kernel_begin(a, name)
    V_PAT = 1; V_TR = 10; V_L16 = 11; T = 12
    V_B = 32
    V_ACC = 72
    V_X = 144
    A_A = 0
    wkey = "w1" if which == 1 else "w2"
    a.I(f"""
    s_cmp_ge_u32 s2, 256
    s_cbranch_scc1 L_{name}_done
    s_load_dwordx2 s[36:37], s[0:1], {KA[wkey]}
    s_load_dwordx2 s[38:39], s[0:1], {KA['x']}
    s_load_dwordx2 s[42:43], s[0:1], {KA['ws']}
    v_lshrrev_b32 v1, 6, v0
    v_and_b32 v0, 63, v0
    s_and_b32 s31, s2, 7
    v_readfirstlane_b32 s24, v1
    s_lshr_b32 s32, s2, 3                 ; idx 0..31
    s_lshl_b32 s31, s31, 3
    s_lshr_b32 s33, s32, 2
    s_add_u32 s31, s31, s33
    s_and_b32 s32, s32, 3                 ; nb
    s_mul_i32 s30, s24, {4*SLAB}
    s_mul_i32 s33, s32, 288
    s_waitcnt lgkmcnt(0)
    """)
    srd(a, 4, 36, 0, add_lo=33)
    a.I(f"s_sub_u32 s6, {576*1152}, s33")
    lane_consts(a, 1152, V_PAT, V_TR, V_L16, T)
    a.I(f"v_add_u32 v{V_TR}, s30, v{V_TR}")
    a.I(f"s_mul_i32 s25, s24, {32*1152}")
    if which == 1:
        srd(a, 8, 38, SZ_ACT)
        a.I(f"""
        v_and_b32 v{T}, 15, v0
        v_mul_u32_u24 v{T}, 1152, v{T}
        v_lshrrev_b32 v{T+1}, 4, v0
        v_lshl_add_u32 v{T+3}, v{T+1}, 3, v{T}
        s_mul_i32 s26, s31, {32*1152}
        s_lshl_b32 s33, s24, 6
        s_add_u32 s26, s26, s33
        """)
    else:
        srd(a, 8, 42, SZ_ACT, add_imm=WS_H)
        a.I(f"""
        s_mul_i32 s26, s31, {2*18*1024}
        s_lshl_b32 s33, s24, 10
        s_add_u32 s26, s26, s33
        """)
    def loadB(i):
        for qt in range(2):
            d = V_B + (i*2+qt)*4
            if which == 1:
                off = qt*16*1152 + i*256
                a.I(f"s_add_u32 s35, s26, {off}")
                if i == 4: a.I(f"s_cmp_ge_u32 s24, 2\ns_cselect_b32 s35, 0x7fff0000, s35")
                a.vm_issue(f"B{i}"); a.I(f"buffer_load_dwordx2 v[{d}:{d+1}], v{T+3}, s[8:11], s35 offen")
                a.vm_issue(f"B{i}"); a.I(f"buffer_load_dwordx2 v[{d+2}:{d+3}], v{T+3}, s[8:11], s35 offen offset:32")
            else:
                a.I(f"s_add_u32 s35, s26, {qt*18*1024 + i*4096}")
                if i == 4: a.I(f"s_cmp_ge_u32 s24, 2\ns_cselect_b32 s35, 0x7fff0000, s35")
                a.vm_issue(f"B{i}"); a.I(f"buffer_load_dwordx4 v[{d}:{d+3}], v{V_L16}, s[8:11], s35 offen")
    def loadW(i):
        for x in dma_slab(a, V_PAT, 4, 25, 30, (i % 4) * SLAB, f"W{i}"): emit(a, x)
        a.I(f"s_add_u32 s25, s25, {128*1152}")
    if which == 1:
        for i in range(5): loadB(i)
        for i in range(4): loadW(i)
    else:
        for i in range(4): loadW(i); loadB(i)
        loadB(4)
    SCR = 16 * SLAB
    if which == 1:
        n = a.vm_wait({"B4"}); a.I(f"s_waitcnt vmcnt({n})")
        for i in range(5):
            for qt in range(2):
                for r in range(4):
                    s = V_B + (i*2+qt)*4 + r; d = V_X + ((i*2+qt)*4 + r)*2
                    a.I(f"v_lshlrev_b32 v{d}, 16, v{s}\nv_and_b32 v{d+1}, 0xffff0000, v{s}")
        def xs(qt): return [V_X + ((i*2+qt)*4)*2 + e for i in range(5) for e in range(8)]
        def reduce_all(slot):
            for qt in range(2): xlane(a, "v_add_f32", T+4+2*qt)
            a.I(f"""
            v_and_b32 v{T}, 15, v0
            v_lshlrev_b32 v{T}, 2, v{T}
            v_add_u32 v{T}, {SCR}, v{T}
            s_lshl_b32 s33, s24, 6
            v_add_u32 v{T+1}, s33, v{T}
            ds_write_b32 v{T+1}, v{T+4} offset:{slot*512}
            ds_write_b32 v{T+1}, v{T+6} offset:{slot*512 + 256}
            s_waitcnt lgkmcnt(0)
            s_barrier
            """)
            for qt in range(2):
                for w in range(4): a.I(f"ds_read_b32 v{T+8+qt*4+w}, v{T} offset:{slot*512 + qt*256 + w*64}")
            a.I("s_waitcnt lgkmcnt(0)")
            for qt in range(2):
                b = T+8+qt*4
                a.I(f"v_add_f32 v{b}, v{b}, v{b+1}\nv_add_f32 v{b+2}, v{b+2}, v{b+3}\nv_add_f32 v{T+4+2*qt}, v{b}, v{b+2}")
        for qt in range(2):
            r = xs(qt); d = T+4+2*qt
            a.I(f"v_add_f32 v{d}, v{r[0]}, v{r[1]}\nv_add_f32 v{d+1}, v{r[2]}, v{r[3]}")
            for e in range(4, 40): a.I(f"v_add_f32 v{d+(e&1)}, v{d+(e&1)}, v{r[e]}")
            a.I(f"v_add_f32 v{d}, v{d}, v{d+1}")
        reduce_all(0)
        a.I(f"s_mov_b32 s48, {f32(1.0/576):#x}")
        a.I(f"s_cmp_ge_u32 s24, 2\ns_cselect_b32 s34, 0, s48")
        for qt in range(2):
            d = T+4+2*qt
            a.I(f"v_mul_f32 v{d+1}, s34, v{d}\nv_mul_f32 v{d}, s48, v{d}")
            for e, r in enumerate(xs(qt)): a.I(f"v_sub_f32 v{r}, v{r}, v{d + (1 if e >= 32 else 0)}")
        for qt in range(2):
            r = xs(qt); d = T+4+2*qt
            a.I(f"v_mul_f32 v{d}, v{r[0]}, v{r[0]}\nv_mul_f32 v{d+1}, v{r[1]}, v{r[1]}")
            for e in range(2, 40): a.I(f"v_fmac_f32 v{d+(e&1)}, v{r[e]}, v{r[e]}")
            a.I(f"v_add_f32 v{d}, v{d}, v{d+1}")
        reduce_all(1)
        cq = 1.4426950408889634 / 128 ** 0.5
        a.I(f"s_mov_b32 s34, {f32(EPS):#x}\ns_mov_b32 s44, {f32(cq):#x}")
        for qt in range(2):
            d = T+4+2*qt
            a.I(f"""
            v_mul_f32 v{d}, s48, v{d}              ; var
            v_add_f32 v{T+8}, s34, v{d}            ; var+eps
            v_fma_f32 v{T+9}, v{T+8}, s34, v{d}    ; var+eps*(var+eps)
            v_rsq_f32 v{d}, v{T+8}
            v_rsq_f32 v{d+1}, v{T+9}
            """)
        a.I("s_nop 0")
        for qt in range(2):
            d = T+4+2*qt
            a.I(f"v_rcp_f32 v{T+8}, v{d+1}\ns_nop 0\nv_mul_f32 v{T+18+qt}, v{d}, v{T+8}")
        for qt in range(2):
            d = T+4+2*qt+1
            for i in range(5):
                b = V_X + ((i*2+qt)*4)*2; o = V_B + (i*2+qt)*4
                for r in range(4):
                    a.I(f"v_mul_f32 v{b+2*r}, v{b+2*r}, v{d}\nv_mul_f32 v{b+2*r+1}, v{b+2*r+1}, v{d}\nv_cvt_pk_bf16_f32 v{o+r}, v{b+2*r}, v{b+2*r+1}")
    n = a.vm_wait({"W0"}); a.I(f"s_waitcnt vmcnt({n})")
    for x in a_reads(A_A, V_TR, 0): a.I(x)
    for i in range(5):
        a.C(f"step {i}")
        if i < 4:
            n = a.vm_wait({f"W{i+1}" if i + 1 < 4 else "W3", f"B{i}"})
        else:
            n = a.vm_wait({"B4"})
        a.I(f"s_waitcnt vmcnt({n}) lgkmcnt(0)")
        if i == 0: loadW(4)
        if i == 3:
            n = a.vm_wait({"W4"}); a.I(f"s_waitcnt vmcnt({n})")
        rd = a_reads(A_A + 36*((i+1) % 2), V_TR, ((i+1) % 4) * SLAB) if i < 4 else []
        k = 0
        for nt in range(9):
            for qt in range(2):
                d = vr(V_ACC + (qt*9+nt)*4, 4)
                a.I(mf(d, ar(A_A + 36*(i % 2) + nt*4, 4), vr(V_B + (i*2+qt)*4, 4), d if i else "0"))
                if k < len(rd): a.I(rd[k]); k += 1
    a.I("s_nop 7\ns_barrier")
    own = lambda w: [((w & 1), nt) for nt in (range(0, 5) if w < 2 else range(5, 9))]
    a.I(f"s_mul_i32 s33, s24, {18*1024}\nv_add_u32 v{T}, s33, v{V_L16}")
    for t in range(18): a.I(f"ds_write_b128 v{T}, {vr(V_ACC + t*4, 4)} offset:{t*1024}")
    a.I("s_waitcnt lgkmcnt(0)\ns_barrier")
    a.I(f"""
    s_and_b32 s33, s24, 1
    s_mul_i32 s33, s33, 9
    s_cmp_ge_u32 s24, 2
    s_cselect_b32 s34, 5, 0
    s_add_u32 s33, s33, s34               ; t0
    s_lshl_b32 s33, s33, 10
    v_add_u32 v{T}, s33, v{V_L16}
    """)
    R = V_B
    XL = 112
    for j in range(5):
        for w in range(4): a.I(f"ds_read_b128 {vr(R + (j*4+w)*4, 4)}, v{T} offset:{w*18*1024 + j*1024}")
    a.I(f"""
    s_mul_i32 s44, s32, 9
    s_add_u32 s44, s44, s34               ; ntg0
    s_and_b32 s45, s24, 1                 ; qt
    s_lshl_b32 s46, s31, 1
    s_add_u32 s46, s46, s45
    """)
    def piece_off(j, dst):
        a.I(f"s_add_u32 s33, s44, {j}\ns_lshr_b32 s{dst}, s33, 1\ns_lshl_b32 s{dst}, s{dst}, 10\ns_and_b32 s33, s33, 1\ns_lshl_b32 s33, s33, 3\ns_add_u32 s{dst}, s{dst}, s33")
        if j == 4: a.I(f"s_cmp_ge_u32 s24, 2\ns_cselect_b32 s{dst}, 0x7fff0000, s{dst}")
    if which == 2:
        srd(a, 12, 42, SZ_ACT, add_imm=WS_XN)
        srd(a, 16, 42, SZ_ACT, add_imm=WS_X1)
        a.I(f"s_mul_i32 s47, s46, {18*1024}\nv_add_u32 v{T+2}, s47, v{V_L16}")
        for j in range(5):
            piece_off(j, 50 + j)
            a.I(f"buffer_load_dwordx2 v[{XL+2*j}:{XL+2*j+1}], v{T+2}, s[12:15], s{50+j} offen")
    a.I("s_waitcnt lgkmcnt(0)")
    for j in range(5):
        b = R + j*16
        for h in (0, 2):
            a.I(f"v_pk_add_f32 v[{b+h}:{b+h+1}], v[{b+h}:{b+h+1}], v[{b+4+h}:{b+5+h}]")
            a.I(f"v_pk_add_f32 v[{b+8+h}:{b+9+h}], v[{b+8+h}:{b+9+h}], v[{b+12+h}:{b+13+h}]")
            a.I(f"v_pk_add_f32 v[{b+h}:{b+h+1}], v[{b+h}:{b+h+1}], v[{b+8+h}:{b+9+h}]")
    if which == 1:
        a.I(f"s_mov_b32 s50, {f32(C2):#x}\ns_mov_b32 s51, {f32(C2):#x}\nv_mov_b32 v{T+4}, {f32(C1):#x}\nv_mov_b32 v{T+5}, {f32(C1):#x}")
        srd(a, 12, 42, SZ_ACT, add_imm=WS_H)
        a.I(f"""
        s_cmp_eq_u32 s32, 0
        s_cselect_b32 s47, 1, -1
        s_cmp_eq_u32 s32, 2
        s_cselect_b32 s47, 2, s47
        s_cmp_eq_u32 s32, 3
        s_cselect_b32 s47, -2, s47
        s_lshl_b32 s33, s46, 4
        s_add_u32 s33, s33, s47
        v_and_b32 v{T}, 15, v0
        v_add_u32 v{T}, s33, v{T}
        v_cmp_gt_u32 vcc, 0x800, v{T}
        v_and_b32 v{T}, 0x7ff, v{T}
        v_lshrrev_b32 v{T+1}, 4, v{T}
        v_mul_u32_u24 v{T+1}, {18*1024}, v{T+1}
        v_and_b32 v{T}, 15, v{T}
        v_lshl_add_u32 v{T+1}, v{T}, 4, v{T+1}
        v_and_b32 v{T}, 0x30, v0
        v_lshl_add_u32 v{T+2}, v{T}, 4, v{T+1} ; + g*256
        """)
        for j in range(5):
            b = R + j*16
            gelu4(a, b, b + 4, T + 4, 50)
            a.I(f"v_cvt_pk_bf16_f32 v{b}, v{b}, v{b+1}\nv_cvt_pk_bf16_f32 v{b+1}, v{b+2}, v{b+3}")
            a.I(f"v_cndmask_b32 v{b}, 0, v{b}, vcc\nv_cndmask_b32 v{b+1}, 0, v{b+1}, vcc")
            piece_off(j, 35)
            a.I(f"buffer_store_dwordx2 v[{b}:{b+1}], v{T+2}, s[12:15], s35 offen")
    else:
        a.I("s_waitcnt vmcnt(0)")
        for j in range(5):
            b = R + j*16; s = XL + 2*j
            a.I(f"""
            v_lshlrev_b32 v{b+4}, 16, v{s}
            v_and_b32 v{b+5}, 0xffff0000, v{s}
            v_lshlrev_b32 v{b+6}, 16, v{s+1}
            v_and_b32 v{b+7}, 0xffff0000, v{s+1}
            v_pk_add_f32 v[{b}:{b+1}], v[{b}:{b+1}], v[{b+4}:{b+5}]
            v_pk_add_f32 v[{b+2}:{b+3}], v[{b+2}:{b+3}], v[{b+6}:{b+7}]
            v_cvt_pk_bf16_f32 v{b+8}, v{b}, v{b+1}
            v_cvt_pk_bf16_f32 v{b+9}, v{b+2}, v{b+3}
            buffer_store_dwordx2 v[{b+8}:{b+9}], v{T+2}, s[16:19], s{50+j} offen
            v_lshlrev_b32 v{b}, 16, v{b+8}
            v_and_b32 v{b+1}, 0xffff0000, v{b+8}
            v_lshlrev_b32 v{b+2}, 16, v{b+9}
            v_and_b32 v{b+3}, 0xffff0000, v{b+9}
            """)
        a.I(f"""
        s_cmp_ge_u32 s24, 2
        s_cselect_b32 s33, 0, 1.0
        s_mov_b32 s34, {f32(1/80):#x}
        s_cbranch_scc0 L_{name}_five
        s_mov_b32 s34, {f32(1/64):#x}
        v_mov_b32 v{R+64}, 0
        v_mov_b32 v{R+65}, 0
        v_mov_b32 v{R+66}, 0
        v_mov_b32 v{R+67}, 0
        """)
        a.label(f"L_{name}_five")
        vals = [R + j*16 + r for j in range(5) for r in range(4)]
        a.I(f"v_add_f32 v{T+4}, v{vals[0]}, v{vals[1]}")
        for v in vals[2:]: a.I(f"v_add_f32 v{T+4}, v{T+4}, v{v}")
        xlane(a, "v_add_f32", T+4)
        a.I(f"v_mul_f32 v{T+6}, s34, v{T+4}\nv_mul_f32 v{T+7}, s33, v{T+6}\nv_mov_b32 v{T+8}, 0")
        for e, v in enumerate(vals):
            a.I(f"v_sub_f32 v{v}, v{v}, v{T+6 + (1 if e >= 16 else 0)}\nv_fmac_f32 v{T+8}, v{v}, v{v}")
        xlane(a, "v_add_f32", T+8)
        srd(a, 12, 42, 2048*64, add_imm=WS_ST)
        a.I(f"""
        v_mov_b32 v{T+5}, v{T+8}
        s_lshl_b32 s33, s46, 10
        s_lshl_b32 s34, s32, 4
        s_add_u32 s33, s33, s34
        s_lshr_b32 s34, s24, 1
        s_lshl_b32 s34, s34, 3
        s_add_u32 s33, s33, s34
        v_lshlrev_b32 v{T}, 6, v0
        v_cmp_gt_u32 vcc, 16, v0
        v_mov_b32 v{T+1}, 0x7fff0000
        s_nop 0
        v_cndmask_b32 v{T}, v{T+1}, v{T}, vcc
        buffer_store_dwordx2 v[{T+4}:{T+5}], v{T}, s[12:15], s33 offen
        """)
    if which == 1:
        srd(a, 12, 42, SZ_ACT, add_imm=WS_XN)
        a.I(f"""
        s_mov_b32 s44, {f32(cq):#x}
        s_cmp_eq_u32 s32, 1
        s_cselect_b32 s45, s44, 1.0
        s_cselect_b32 s33, {WS_XQ - WS_XN:#x}, 0
        s_add_u32 s12, s12, s33
        s_addc_u32 s13, s13, 0
        s_mul_i32 s46, s31, {2*18*1024}
        s_lshl_b32 s33, s24, 10
        s_add_u32 s46, s46, s33
        s_cmp_ge_u32 s32, 2
        s_cbranch_scc1 L_{name}_done
        """)
        for qt in range(2):
            a.I(f"v_mul_f32 v{T+8}, s45, v{T+18+qt}")
            for i in range(5):
                b = V_X + ((i*2+qt)*4)*2; o = b
                for r in range(4):
                    a.I(f"v_mul_f32 v{b+2*r}, v{b+2*r}, v{T+8}\nv_mul_f32 v{b+2*r+1}, v{b+2*r+1}, v{T+8}\nv_cvt_pk_bf16_f32 v{o+r}, v{b+2*r}, v{b+2*r+1}")
                a.I(f"s_add_u32 s35, s46, {qt*18*1024 + i*4096}")
                if i == 4: a.I(f"s_cmp_ge_u32 s24, 2\ns_cselect_b32 s35, 0x7fff0000, s35")
                a.I(f"buffer_store_dwordx4 v[{o}:{o+3}], v{V_L16}, s[12:15], s35 offen")
    a.label(f"L_{name}_done")
    a.I("s_endpgm")
    return a.text(), kernel_desc(name, 224 + 72, 224)

def gen_k3():
    name = "k3_kernel"
    a = Asm(); kernel_begin(a, name)
    V_PAT = 1; V_TR = 10; V_L16 = 11; T = 12
    V_MU = 28
    V_RS = 32
    V_ONE = 36
    V_TR2 = 40; V_TR3 = 41
    V_CS = 44
    V_ACC = 80
    V_E = 224
    A_A = 0; A_B = 72; NB = 8
    a.I(f"""
    s_cmp_ge_u32 s2, 256
    s_cbranch_scc1 L_{name}_done
    s_load_dwordx2 s[36:37], s[0:1], {KA['w3']}
    s_load_dwordx2 s[42:43], s[0:1], {KA['ws']}
    v_lshrrev_b32 v1, 6, v0
    v_and_b32 v0, 63, v0
    s_and_b32 s33, s2, 7
    v_readfirstlane_b32 s24, v1
    s_lshr_b32 s34, s2, 3
    s_and_b32 s31, s33, 1
    s_lshl_b32 s31, s31, 2
    s_lshr_b32 s35, s34, 3
    s_add_u32 s31, s31, s35
    s_lshr_b32 s32, s33, 1
    s_lshl_b32 s32, s32, 3
    s_and_b32 s35, s34, 7
    s_add_u32 s32, s32, s35               ; fb 0..31
    s_mul_i32 s33, s32, 288
    s_lshl_b32 s46, s31, 4
    s_lshl_b32 s34, s24, 2
    s_add_u32 s46, s46, s34
    s_waitcnt lgkmcnt(0)
    """)
    srd(a, 4, 36, 0, add_lo=33)
    a.I(f"s_sub_u32 s6, {576*9216}, s33")
    srd(a, 8, 42, SZ_ACT, add_imm=WS_X1)
    srd(a, 12, 42, 2048*64, add_imm=WS_ST)
    srd(a, 16, 42, 0x1200000, add_imm=WS_H3)
    a.I(f"v_and_b32 v{T}, 15, v0\nv_lshlrev_b32 v{T}, 6, v{T}\ns_lshl_b32 s33, s46, 10")
    for qt in range(4):
        for j in range(4):
            a.vm_issue("ST"); a.I(f"buffer_load_dwordx4 {vr(V_ACC + (qt*4+j)*4, 4)}, v{T}, s[12:15], s33 offen offset:{qt*1024 + j*16}")
    lane_consts(a, 9216, V_PAT, V_TR, V_L16, T)
    a.I(f"v_add_u32 v{V_TR2}, {7*SLAB}, v{V_TR}\nv_add_u32 v{V_TR3}, {14*SLAB}, v{V_TR}")
    a.I(f"s_mul_i32 s25, s24, {32*9216}\ns_mul_i32 s30, s24, {SLAB}\ns_mul_i32 s26, s46, {18*1024}")
    def loadW(j):
        for x in dma_slab(a, V_PAT, 4, 25, 30, (j % 4) * 4 * SLAB, f"W{j}"): emit(a, x)
        a.I(f"s_add_u32 s25, s25, {128*9216}")
    def loadB(i):
        for qt in range(4):
            a.I(f"s_add_u32 s35, s26, {qt*18*1024 + i*1024}")
            a.vm_issue(f"B{i}"); a.I(f"buffer_load_dwordx4 {ar(A_B + ((i % NB)*4+qt)*4, 4)}, v{V_L16}, s[8:11], s35 offen")
    loadW(0); loadB(0); loadB(1); loadW(1); loadW(2); loadW(3)
    n = a.vm_wait({"ST"}); a.I(f"s_waitcnt vmcnt({n})")
    a.I(f"s_mov_b32 s50, {f32(1/576):#x}\ns_mov_b32 s51, {f32(1/80):#x}\ns_mov_b32 s52, {f32(1/64):#x}\ns_mov_b32 s53, {f32(80.0):#x}\ns_mov_b32 s54, {f32(64.0):#x}\ns_mov_b32 s55, {f32(EPS):#x}")
    for qt in range(4):
        b = V_ACC + qt*16
        a.I(f"v_add_f32 v{T}, v{b}, v{b+2}\nv_add_f32 v{T+1}, v{b+1}, v{b+3}")
        for p in range(2, 8): a.I(f"v_add_f32 v{T}, v{T}, v{b+2*p}\nv_add_f32 v{T+1}, v{T+1}, v{b+2*p+1}")
        a.I(f"v_mul_f32 v{T}, s50, v{T}")
        for p in range(8):
            a.I(f"v_fma_f32 v{T+2}, v{b+2*p}, s{51+(p&1)}, -v{T}\nv_mul_f32 v{T+3}, s{53+(p&1)}, v{T+2}\nv_fmac_f32 v{T+1}, v{T+3}, v{T+2}")
        a.I(f"v_mov_b32 v{T+2}, s55\nv_fmac_f32 v{T+2}, s50, v{T+1}\nv_rsq_f32 v{V_RS+qt}, v{T+2}\nv_sub_f32 v{V_MU+qt}, 0, v{T}")
    for i in range(2, NB): loadB(i)
    for r in range(4): a.I(f"v_mov_b32 v{V_ONE+r}, 0x3f803f80")
    for r in range(36): a.I(f"v_mov_b32 v{V_CS+r}, 0")
    def rds(i):
        s = i % 16; base = (V_TR, V_TR2, V_TR3)[s // 7]
        return a_reads(A_A + 36*(i % 2), base, (s % 7) * SLAB)
    n = a.vm_wait({"W0"}); a.I(f"s_waitcnt vmcnt({n})\ns_barrier")
    for x in rds(0): a.I(x)
    for i in range(18):
        a.C(f"step {i}")
        if i % 4 == 3:
            b = (i + 1) // 4
            n = a.vm_wait({f"W{b}", f"B{i}"}); a.I(f"s_waitcnt vmcnt({n}) lgkmcnt(0)\ns_barrier")
            if i == 3: loadW(4)
        else:
            n = a.vm_wait({f"B{i}"}); a.I(f"s_waitcnt vmcnt({n}) lgkmcnt(0)")
        rd = rds(i + 1) if i + 1 < 18 else []
        k = 0
        for ft in range(9):
            for qt in range(4):
                d = vr(V_ACC + (qt*9+ft)*4, 4)
                a.I(mf(d, ar(A_A + 36*(i % 2) + ft*4, 4), ar(A_B + ((i % NB)*4+qt)*4, 4), d if i else "0"))
                if qt % 2 == 0 and k < len(rd) and ft < 9: a.I(rd[k]); k += 1
        assert k == len(rd)
        a.I(f"s_cmp_lg_u32 s24, {i % 4}\ns_cbranch_scc1 L_{name}_cs{i}")
        for ft in range(9):
            d = vr(V_CS + ft*4, 4)
            a.I(mf(d, ar(A_A + 36*(i % 2) + ft*4, 4), vr(V_ONE, 4), d))
        a.label(f"L_{name}_cs{i}")
        if i + NB < 18: loadB(i + NB)
    a.I(f"s_nop 7\ns_barrier\ns_mul_i32 s33, s24, 9216\nv_add_u32 v{T}, s33, v{V_L16}")
    for ft in range(9): a.I(f"ds_write_b128 v{T}, {vr(V_CS + ft*4, 4)} offset:{ft*1024}")
    a.I("s_waitcnt lgkmcnt(0)\ns_barrier")
    for ft in range(9):
        for w in range(4): a.I(f"ds_read_b128 {vr(V_E + w*4 + (ft % 2)*16, 4)}, v{V_L16} offset:{w*9216 + ft*1024}")
        a.I("s_waitcnt lgkmcnt(0)")
        e = V_E + (ft % 2)*16
        for h in (0, 2):
            a.I(f"v_pk_add_f32 v[{e+h}:{e+h+1}], v[{e+h}:{e+h+1}], v[{e+4+h}:{e+5+h}]")
            a.I(f"v_pk_add_f32 v[{e+8+h}:{e+9+h}], v[{e+8+h}:{e+9+h}], v[{e+12+h}:{e+13+h}]")
            a.I(f"v_pk_add_f32 v[{V_CS+ft*4+h}:{V_CS+ft*4+h+1}], v[{e+h}:{e+h+1}], v[{e+8+h}:{e+9+h}]")
    a.I(f"s_mov_b32 s50, {f32(C2):#x}\ns_mov_b32 s51, {f32(C2):#x}\nv_mov_b32 v{T+4}, {f32(C1):#x}\nv_mov_b32 v{T+5}, {f32(C1):#x}")
    a.I(f"s_mul_i32 s44, s32, 9\ns_mul_i32 s47, s46, {144*1024}")
    for ft in range(9):
        a.I(f"s_add_u32 s33, s44, {ft}\ns_lshr_b32 s{60+ft}, s33, 1\ns_lshl_b32 s{60+ft}, s{60+ft}, 10\ns_and_b32 s33, s33, 1\ns_lshl_b32 s33, s33, 3\ns_add_u32 s{60+ft}, s{60+ft}, s33\ns_add_u32 s{60+ft}, s{60+ft}, s47")
    for qt in range(4):
        a.I(f"v_mov_b32 v{T+6}, v{V_MU+qt}\nv_mov_b32 v{T+8}, v{V_RS+qt}")
        if qt: a.I(f"v_add_u32 v{V_L16}, {144*1024}, v{V_L16}")
        for ft in range(9):
            b = V_ACC + (qt*9+ft)*4; c = V_CS + ft*4; t = V_E + (ft % 8)*4
            for h in (0, 2):
                a.I(f"v_pk_fma_f32 v[{b+h}:{b+h+1}], v[{c+h}:{c+h+1}], v[{T+6}:{T+7}], v[{b+h}:{b+h+1}] op_sel_hi:[1,0,1]")
            for h in (0, 2):
                a.I(f"v_pk_mul_f32 v[{b+h}:{b+h+1}], v[{b+h}:{b+h+1}], v[{T+8}:{T+9}] op_sel_hi:[1,0]")
            gelu4(a, b, t, T + 4, 50)
            a.I(f"v_cvt_pk_bf16_f32 v{b}, v{b}, v{b+1}\nv_cvt_pk_bf16_f32 v{b+1}, v{b+2}, v{b+3}")
            a.I(f"buffer_store_dwordx2 v[{b}:{b+1}], v{V_L16}, s[16:19], s{60+ft} offen")
    a.label(f"L_{name}_done")
    a.I("s_endpgm")
    return a.text(), kernel_desc(name, 256 + 200, 256)

def gen_k5():
    name = "k5_kernel"
    a = Asm(); kernel_begin(a, name)
    V_PAT = 1; V_TR = 10; V_L16 = 11; T = 12
    V_ACC = 32
    V_R = 176
    A_A = 0; A_B = 72
    a.I(f"""
    s_cmp_ge_u32 s2, 256
    s_cbranch_scc1 L_{name}_done
    s_load_dwordx2 s[36:37], s[0:1], {KA['wo']}
    s_load_dwordx2 s[38:39], s[0:1], {KA['w4']}
    s_load_dwordx2 s[42:43], s[0:1], {KA['ws']}
    v_lshrrev_b32 v1, 6, v0
    v_and_b32 v0, 63, v0
    s_and_b32 s33, s2, 7
    v_readfirstlane_b32 s24, v1
    s_lshr_b32 s34, s2, 3
    s_lshr_b32 s29, s33, 2                ; gemm
    s_and_b32 s31, s33, 3
    s_lshl_b32 s31, s31, 3
    s_lshr_b32 s35, s34, 2
    s_add_u32 s31, s31, s35
    s_and_b32 s32, s34, 3                 ; nb
    s_mul_i32 s33, s32, 288
    s_mul_i32 s30, s24, {4*SLAB}
    s_waitcnt lgkmcnt(0)
    s_cmp_eq_u32 s29, 0
    s_cselect_b32 s36, s36, s38
    s_cselect_b32 s37, s37, s39
    s_cselect_b32 s34, {4096*1152:#x}, s34
    s_cselect_b32 s27, 7, 8
    s_cselect_b32 s28, {128*1024}, s28
    s_cselect_b32 s44, {WS_O:#x}, s44
    s_cselect_b32 s45, {0x1000000:#x}, s45
    s_cbranch_scc1 L_{name}_g0
    s_mov_b32 s34, {4608*1152:#x}
    s_mov_b32 s28, {144*1024}
    s_mov_b32 s44, {WS_H3:#x}
    s_mov_b32 s45, {0x1200000:#x}
    """)
    a.label(f"L_{name}_g0")
    srd(a, 4, 36, 0, add_lo=33)
    a.I("s_sub_u32 s6, s34, s33")
    srd(a, 8, 42, 0, add_lo=44)
    a.I("s_mov_b32 s10, s45")
    lane_consts(a, 1152, V_PAT, V_TR, V_L16, T)
    a.I(f"""
    v_add_u32 v{V_TR}, s30, v{V_TR}
    s_mul_i32 s25, s24, {32*1152}
    s_lshl_b32 s46, s31, 2
    s_mul_i32 s26, s46, s28
    s_lshl_b32 s33, s24, 10
    s_add_u32 s26, s26, s33
    v_add_u32 v{T+1}, s28, v{V_L16}
    v_add_u32 v{T+2}, s28, v{T+1}
    v_add_u32 v{T+3}, s28, v{T+2}
    v_mov_b32 v{T}, v{V_L16}
    """)
    def loadW(i):
        return dma_slab(a, V_PAT, 4, 25, 30, (i % 4) * SLAB, f"W{i}") + [f"s_add_u32 s25, s25, {128*1152}"]
    def loadB(i):
        return [("vm", f"B{i}", f"buffer_load_dwordx4 {ar(A_B + ((i % 4)*4+qt)*4, 4)}, v{T+qt}, s[8:11], s26 offen") for qt in range(4)] + ["s_add_u32 s26, s26, 4096"]
    for i in range(4):
        for x in loadW(i) + loadB(i): emit(a, x)
    for r in range(144): a.I(f"v_mov_b32 v{V_ACC+r}, 0")
    n = a.vm_wait({"W0"}); a.I(f"s_waitcnt vmcnt({n})")
    for x in a_reads(A_A, V_TR, 0): a.I(x)
    def step(i, last_group, nsteps_left):
        a.C(f"step {i}")
        more = nsteps_left > 1
        n = a.vm_wait({f"W{i+1}", f"B{i}"} if more else {f"B{i}"})
        a.I(f"s_waitcnt vmcnt({n}) lgkmcnt(0)")
        rd = a_reads(A_A + 36*((i+1) % 2), V_TR, ((i+1) % 4) * SLAB) if more else []
        ld = [] if last_group else loadW(i + 4)
        k = 0; j = 0; g = 0
        for nt in range(9):
            for qt in range(4):
                d = vr(V_ACC + (qt*9+nt)*4, 4)
                a.I(mf(d, ar(A_A + 36*(i % 2) + nt*4, 4), ar(A_B + ((i % 4)*4+qt)*4, 4), d))
                if g % 2 == 0 and k < len(rd): a.I(rd[k]); k += 1
                if g % 2 == 1 and j < len(ld):
                    emit(a, ld[j]); j += 1
                    if j < len(ld) and not isinstance(ld[j-1], tuple): emit(a, ld[j]); j += 1
                g += 1
        assert k == len(rd) and j == len(ld), (k, j, len(ld))
        if not last_group:
            for x in loadB(i + 4): emit(a, x)
    a.raw(".p2align 6"); a.label(f"L_{name}_loop")
    vb = list(a.vm)
    for i in range(4): step(i, False, 99)
    sh = lambda t, d: t[0] + str(int(t[1:]) + d)
    assert [sh(t, 4) for t in vb] == a.vm, (vb, a.vm)
    a.I(f"s_sub_u32 s27, s27, 1\ns_cmp_lg_u32 s27, 0\ns_cbranch_scc1 L_{name}_loop")
    for i in range(4, 8): step(i, True, 8 - i)
    a.I(f"s_nop 7\ns_barrier\ns_mul_i32 s33, s24, {36*1024}\nv_add_u32 v{T+4}, s33, v{V_L16}")
    for t in range(36): a.I(f"ds_write_b128 v{T+4}, {vr(V_ACC + t*4, 4)} offset:{t*1024}")
    a.I(f"s_waitcnt lgkmcnt(0)\ns_barrier\ns_mul_i32 s33, s24, {9*1024}\nv_add_u32 v{T+4}, s33, v{V_L16}\nv_add_u32 v{T+5}, {2*36*1024}, v{T+4}")
    for nt in range(9):
        for w in range(4):
            a.I(f"ds_read_b128 {vr(V_ACC + (nt*4+w)*4, 4)}, v{T+4+(w>>1)} offset:{(w&1)*36*1024 + nt*1024}")
    a.I(f"""
    s_add_u32 s46, s46, s24
    s_mul_i32 s44, s32, 9
    s_mul_i32 s47, s46, 36
    s_add_u32 s47, s47, s44
    s_lshl_b32 s47, s47, 10
    s_cmp_eq_u32 s29, 0
    s_cbranch_scc1 L_{name}_e0
    """)
    srd(a, 12, 42, SZ_ACT, add_imm=WS_X1)
    a.I(f"s_mul_i32 s35, s46, {18*1024}\nv_add_u32 v{T+6}, s35, v{V_L16}")
    for nt in range(9):
        a.I(f"s_add_u32 s33, s44, {nt}\ns_lshr_b32 s35, s33, 1\ns_lshl_b32 s35, s35, 10\ns_and_b32 s33, s33, 1\ns_lshl_b32 s33, s33, 3\ns_add_u32 s35, s35, s33")
        a.I(f"buffer_load_dwordx2 v[{V_R+2*nt}:{V_R+2*nt+1}], v{T+6}, s[12:15], s35 offen")
    a.label(f"L_{name}_e0")
    a.I("s_waitcnt lgkmcnt(0)")
    for nt in range(9):
        b = V_ACC + nt*16
        for h in (0, 2):
            a.I(f"v_pk_add_f32 v[{b+h}:{b+h+1}], v[{b+h}:{b+h+1}], v[{b+4+h}:{b+5+h}]")
            a.I(f"v_pk_add_f32 v[{b+8+h}:{b+9+h}], v[{b+8+h}:{b+9+h}], v[{b+12+h}:{b+13+h}]")
            a.I(f"v_pk_add_f32 v[{b+h}:{b+h+1}], v[{b+h}:{b+h+1}], v[{b+8+h}:{b+9+h}]")
    srd(a, 12, 42, 0x480000, add_imm=WS_S32)
    a.I(f"s_cmp_eq_u32 s29, 0\ns_cbranch_scc1 L_{name}_st")
    srd(a, 12, 42, 0x480000, add_imm=WS_G32)
    a.I(f"s_mov_b32 s50, {f32(-1.4426950408889634):#x}\ns_waitcnt vmcnt(0)")
    for nt in range(9):
        b = V_ACC + nt*16; s = V_R + 2*nt
        a.I(f"""
        v_lshlrev_b32 v{b+4}, 16, v{s}
        v_and_b32 v{b+5}, 0xffff0000, v{s}
        v_lshlrev_b32 v{b+6}, 16, v{s+1}
        v_and_b32 v{b+7}, 0xffff0000, v{s+1}
        v_pk_add_f32 v[{b}:{b+1}], v[{b}:{b+1}], v[{b+4}:{b+5}]
        v_pk_add_f32 v[{b+2}:{b+3}], v[{b+2}:{b+3}], v[{b+6}:{b+7}]
        """)
        for r in range(4): a.I(f"v_mul_f32 v{b+4+r}, s50, v{b+r}")
        for r in range(4): a.I(f"v_exp_f32 v{b+4+r}, v{b+4+r}")
        a.I("s_nop 0")
        for r in range(4): a.I(f"v_add_f32 v{b+4+r}, 1.0, v{b+4+r}")
        for r in range(4): a.I(f"v_rcp_f32 v{b+4+r}, v{b+4+r}")
        a.I("s_nop 0")
        for r in range(4): a.I(f"v_mul_f32 v{b+r}, v{b+r}, v{b+4+r}")
    a.label(f"L_{name}_st")
    for nt in range(9):
        a.I(f"buffer_store_dwordx4 {vr(V_ACC + nt*16, 4)}, v{V_L16}, s[12:15], s47 offen offset:{(nt%4)*1024}")
        if nt % 4 == 3: a.I("s_add_u32 s47, s47, 4096")
    a.label(f"L_{name}_done")
    a.I("s_endpgm")
    return a.text(), kernel_desc(name, 200 + 136, 200)

def gen_k6():
    name = "k6_kernel"
    a = Asm(); kernel_begin(a, name)
    a.I(f"""
    s_cmp_ge_u32 s2, 1152
    s_cbranch_scc1 L_{name}_done
    s_load_dwordx2 s[36:37], s[0:1], {KA['x']}
    s_load_dwordx2 s[38:39], s[0:1], {KA['out']}
    s_load_dwordx2 s[42:43], s[0:1], {KA['ws']}
    v_lshrrev_b32 v1, 6, v0
    v_lshlrev_b32 v2, 4, v0
    v_readfirstlane_b32 s24, v1
    v_and_b32 v0, 63, v0
    s_lshl_b32 s25, s2, 2
    s_add_u32 s25, s25, s24               ; tile
    s_mov_b32 s26, {(1<<32)//36 + 1}
    s_mul_hi_u32 s27, s25, s26            ; q tile
    s_mul_i32 s28, s27, 36
    s_sub_u32 s28, s25, s28               ; n tile
    s_mul_i32 s27, s27, {16*1152}
    s_lshl_b32 s28, s28, 5
    s_add_u32 s27, s27, s28
    s_lshl_b32 s29, s2, 12
    v_and_b32 v3, 15, v0
    v_mul_u32_u24 v3, 1152, v3
    v_lshrrev_b32 v4, 4, v0
    v_lshl_add_u32 v3, v4, 3, v3
    s_waitcnt lgkmcnt(0)
    """)
    srd(a, 4, 36, SZ_ACT); srd(a, 8, 38, SZ_ACT)
    srd(a, 12, 42, 0x480000, add_imm=WS_S32); srd(a, 16, 42, 0x480000, add_imm=WS_G32)
    a.I("""
    buffer_load_dwordx2 v[4:5], v3, s[4:7], s27 offen
    buffer_load_dwordx4 v[8:11], v2, s[12:15], s29 offen
    buffer_load_dwordx4 v[12:15], v2, s[16:19], s29 offen
    s_waitcnt vmcnt(0)
    v_lshlrev_b32 v16, 16, v4
    v_and_b32 v17, 0xffff0000, v4
    v_lshlrev_b32 v18, 16, v5
    v_and_b32 v19, 0xffff0000, v5
    v_fmac_f32 v16, v8, v12
    v_fmac_f32 v17, v9, v13
    v_fmac_f32 v18, v10, v14
    v_fmac_f32 v19, v11, v15
    v_cvt_pk_bf16_f32 v4, v16, v17
    v_cvt_pk_bf16_f32 v5, v18, v19
    buffer_store_dwordx2 v[4:5], v3, s[8:11], s27 offen
    """)
    a.label(f"L_{name}_done")
    a.I("s_endpgm")
    return a.text(), kernel_desc(name, 24, 24, sgpr=48)
```

```python
import sys; sys.path.insert(0, "dev")
from gen_gemm import *
import gen_attn16
def build(path):
    ks = [("k1_kernel", gen_k12(1), 256, 256, 148480 + 1024), ("k2_kernel", gen_k12(2), 256, 256, 148480), ("k3_kernel", gen_k3(), 256, 256, 147456),
          ("attn_kernel", gen_attn16.gen_attn(), 256, 256, 163840), ("k5_kernel", gen_k5(), 256, 256, 147456), ("k6_kernel", gen_k6(), 1152, 256, 0)]
    hdr = open("recurrent_scan__mha_block_cached__mixer_s_mlp__prompt.s.ref").read().split("; Override launch")[0]
    for n, _, g, b, l in ks: hdr += f"; @launch kernel={n} grid=({g},1,1) block=({b},1,1) lds={l}\n"
    hdr += '.amdgcn_target "amdgcn-amd-amdhsa--gfx950"\n'
    open(path, "w").write(hdr + "".join(k[1][0] for k in ks) + "".join(k[1][1] for k in ks))
if __name__ == "__main__":
    build(sys.argv[1] if len(sys.argv) > 1 else "recurrent_scan__mha_block_cached__mixer_s_mlp__prompt.s")
```

```python
from gen_common import *
A_O = 0
A_Q = 128
A_K = 192
A_V = 224
V_KD = 1
V_VD = 5
V_KA = 7
V_VA = 11
V_LS = 19
V_T = 24
V_WD = 40
V_L16 = 42
V_L16B = 43
V_M = 44
V_WA = 48
V_NEGM = 96
V_S = 128
KREG = 0; VREG = 65536
THR = 0x4B800000
def mf(d, A, B, c): return f"v_mfma_f32_16x16x32_bf16 {d}, {A}, {B}, {c}"
def sbuf(u): return V_S + 32 * (u % 4)
STAMP = False
def stamp(a, i):
    if STAMP:
        a.I(f"s_memtime s[{60+4*i}:{61+4*i}]")
        a.I(f"s_memrealtime s[{62+4*i}:{63+4*i}]")

def k_reads(u):
    t = u >> 1; off = KREG + (t % 4) * 16384 + (u & 1) * 8192
    return [f"ds_read_b128 {ar(A_K + (kt*4+ks)*4, 4)}, v{V_KA+ks} offset:{off + kt*4096}" for kt in range(2) for ks in range(4)]
def v_reads(u):
    t = u >> 1; off = (t % 4) * 16384 + (u & 1) * 8192
    return [f"ds_read_b64_tr_b16 {ar(A_V + dt*4 + 2*m, 2)}, v{V_VA+dt} offset:{off + m*4096}" for dt in range(8) for m in range(2)]
def qk_mfmas(u, cinit):
    M = []
    for qt in range(4):
        for kt in range(2):
            for ks in range(4):
                d = vr(sbuf(u) + (qt*2+kt)*4, 4)
                c = d if ks else (vr(V_NEGM + 4*qt, 4) if cinit else "0")
                M.append(mf(d, ar(A_K + (kt*4+ks)*4, 4), ar(A_Q + (qt*4+ks)*4, 4), c))
    return M
def oacc(dt, qt): return A_O + ((qt*4 + (dt >> 1))*2 + (dt & 1))*4
def pv_mfmas(u):
    M = []
    for dt in range(8):
        for qt in range(4):
            o = ar(oacc(dt, qt), 4)
            M.append(mf(o, ar(A_V + dt*4, 4), vr(sbuf(u) + qt*8, 4), o))
    return M
def sm_exp(u, e): r = sbuf(u) + e; return f"v_exp_f32 v{r}, v{r}"
def sm_add(u, e):
    r = sbuf(u) + e; l = V_LS + (e >> 3)
    return f"v_add_f32 v{l}, v{l}, v{r}"
def sm_cvt(u, p):
    qt = p >> 2; i = p & 3; b = sbuf(u) + 8*qt
    return f"v_cvt_pk_bf16_f32 v{b+i}, v{b+2*i}, v{b+2*i+1}"
def dma_k(a, t):
    r = [f"s_add_u32 m0, s30, {KREG + (t % 4) * 16384}"]
    for i in range(4):
        r.append(("vm", f"K{t}", f"buffer_load_dwordx4 v{V_KD+i}, s[4:7], s25 offen offset:{i*1024} lds"))
    r.append("s_add_u32 s25, s25, 16384")
    return r
def dma_v(a, t):
    r = [f"s_add_u32 m0, s30, {VREG + (t % 4) * 16384}"]
    for i in range(4):
        r.append(("vm", f"V{t}", f"buffer_load_dwordx4 v{V_VD+(i&1)}, s[8:11], s26 offen offset:{i*1024} lds"))
    r.append("s_add_u32 s26, s26, 16384")
    return r
def emit(a, x):
    if isinstance(x, tuple):
        a.vm_issue(x[1]); a.I(x[2])
    else: a.I(x)

NU = 64
def body(a, u, steady=False):
    do_qk = u + 1 < NU; do_pv = u >= 1
    M = (qk_mfmas(u + 1, True) if do_qk else [None]*32) + (pv_mfmas(u - 1) if do_pv else [None]*32)
    G = [[] for _ in range(64)]
    pre = [[] for _ in range(64)]
    for p in range(32):
        G[2*p].append(sm_exp(u, p))
        if p >= 1: G[2*p+1].append(sm_add(u, p - 1))
        elif u >= 1: G[1].append(sm_add(u - 1, 31))
        if p >= 2 and p % 2 == 0: G[2*p+1].append(sm_cvt(u, p // 2 - 1))
        elif p == 0 and u >= 1: G[1].append(sm_cvt(u - 1, 15))
    if do_pv:
        vr_ = v_reads(u - 1); k = 0
        for p in range(12):
            n = 2 if p in (1, 3, 5, 7) else 1
            for _ in range(n): G[2*p+1].append(vr_[k]); k += 1
        assert k == 16
    if u + 2 < NU:
        kr = k_reads(u + 2)
        for k, p in enumerate((16, 17, 19, 20, 21, 23, 25, 27)): G[2*p+1].append(kr[k])
    T = u >> 1
    if u % 2 == 0:
        need = {f"K{T+1}", f"V{T}"}
        pre[32].append(("wait", need, 16))
        if T + 4 < 32:
            d = dma_k(a, T + 4)
            G[53].append(d[0]); G[57].append(d[1]); G[59].append(d[2]); G[61].append(d[3]); G[63].append(d[4]); G[63].append(d[5])
    else:
        pre[32].append("s_waitcnt lgkmcnt(0)")
        if T + 3 < 32:
            d = dma_v(a, T + 3)
            G[25].append(d[0]); G[27].append(d[1]); G[31].append(d[2]); G[59].append(d[3]); G[63].append(d[4]); G[63].append(d[5])
    pre[0].append("s_waitcnt lgkmcnt(0)")
    a.C(f"---- body {u}")
    for g in range(64):
        for x in pre[g]:
            if isinstance(x, tuple):
                _, need, n = x
                n2 = a.vm_wait(need)
                if steady: assert n2 == n
                a.I(f"s_waitcnt vmcnt({n2}) lgkmcnt(0)")
                a.I("s_barrier")
            else: a.I(x)
        if M[g]: a.I(M[g])
        for x in G[g]: emit(a, x)

V_LSA = 112; V_ONES = 76
SCHED = {}
def body2(a, u, steady=False, extra=None):
    do_qk = u + 1 < NU; do_pv = u >= 1
    pv = pv_mfmas(u - 1) if do_pv else [None]*32
    M = (qk_mfmas(u + 1, True) if do_qk else [None]*32)
    for dt in range(8):
        M += pv[dt*4:dt*4+4]
        if dt % 2 == 1:
            qt = dt // 2; l = vr(V_LSA + 4*qt, 4)
            M.append(mf(l, vr(V_ONES, 4), vr(sbuf(u - 1) + qt*8, 4), l) if do_pv else None)
    pat = SCHED.get("pat", "EVCVEVEVEVEVEVCVEVEVEVEVCVEVEVEV" + "ECKEKEECKEKEEDECKEKEDEECKEKEDEECEDEE")
    assert len(pat) == 68 and pat.count("E") == 32 and pat.count("V") == 16 - 0 and pat.count("K") == 8, (len(pat), pat.count("E"), pat.count("V"), pat.count("K"), pat.count("C"), pat.count("D"))
    vr_ = v_reads(u - 1) if do_pv else []
    kr = k_reads(u + 2) if u + 2 < NU else []
    T = u >> 1
    if u % 2 == 0: d = dma_k(a, T + 4) if T + 4 < 32 else None
    else: d = dma_v(a, T + 3) if T + 3 < 32 else None
    e = 0; nv = 0; nk = 0; nd = 0
    cq = [(u - 1, p) for p in (14, 15)] if u >= 1 else []
    done_c = 0
    lg = []
    a.C(f"---- body {u}")
    a.I("s_waitcnt lgkmcnt(0)")
    for g in range(68):
        if g == 32:
            n = len(lg) - min(len(lg), 8)
            if u % 2 == 0:
                n2 = a.vm_wait({f"K{T+1}", f"V{T}"})
                if steady: assert n2 == steady, (n2, steady)
                a.I(f"s_waitcnt vmcnt({n2}) lgkmcnt({n})\ns_barrier")
            else: a.I(f"s_waitcnt lgkmcnt({n})")
        if g == 50 and do_pv: a.I(f"s_waitcnt lgkmcnt({nk})")
        if M[g]: a.I(M[g])
        c = pat[g]
        if c == "E":
            a.I(sm_exp(u, e)); e += 1
            while done_c < 14 and 2*done_c + 2 <= e - 1: cq.append((u, done_c)); done_c += 1
        elif c == "V":
            if vr_: a.I(vr_[nv]); lg.append("V")
            nv += 1
        elif c == "K":
            if kr: a.I(kr[nk]); lg.append("K"); nk += 1
        elif c == "C":
            for _ in range(2):
                if cq: uu, p = cq.pop(0); a.I(sm_cvt(uu, p))
        elif c == "D" and d:
            if nd == 0: a.I(d[0] + "\ns_nop 0")
            emit(a, d[1 + nd]); nd += 1
            if nd == 4: a.I(d[5])
        for x in (extra or {}).get(g, []): x() if callable(x) else emit(a, x)
    assert not cq and done_c == 14, (cq, done_c)

WSLOT = [1, 4, 2, 5, 3, 6, 7, 8, 9]
def xset(c): s = c % 5; return 32 * s if s < 4 else 192

USE2 = [False]
def gen_attn(name="attn_kernel", force_fallback=False):
    global body
    if USE2[0]:
        body = lambda a, u, steady=False: body2(a, u, 16 if steady else False)
    a = Asm()
    kernel_begin(a, name); g_begin(a)
    stamp(a, 0)
    a.I(f"""
    s_cmp_ge_u32 s2, 256
    s_cbranch_scc1 L_{name}_done
    s_load_dwordx4 s[36:39], s[0:1], {KA['k']}
    s_load_dwordx2 s[40:41], s[0:1], {KA['wq']}
    s_load_dwordx2 s[42:43], s[0:1], {KA['ws']}
    v_lshrrev_b32 v1, 6, v0
    v_and_b32 v0, 63, v0
    s_and_b32 s31, s2, 7
    v_readfirstlane_b32 s24, v1
    s_lshr_b32 s32, s2, 3
    s_lshl_b32 s31, s31, 2
    s_lshr_b32 s33, s32, 3
    s_add_u32 s31, s31, s33
    s_and_b32 s32, s32, 7
    s_lshl_b32 s30, s24, 12
    s_lshl_b32 s33, s31, 19
    s_lshl_b32 s34, s31, 8
    s_waitcnt lgkmcnt(0)
    """)
    srd(a, 4, 36, 524288, add_lo=33)
    srd(a, 8, 38, 524288, add_lo=33)
    srd(a, 12, 40, 0, add_lo=34)
    a.I("s_sub_u32 s14, 0x480000, s34")
    srd(a, 16, 42, SZ_ACT, add_imm=WS_XQ)
    srd(a, 20, 42, 0x1000000, add_imm=WS_O)
    T = V_T
    a.I(f"""
    v_lshrrev_b32 v{T}, 4, v0            ; g = r4 = lane>>4
    v_and_b32 v{T+1}, 15, v0
    v_xor_b32 v{T+2}, v{T+1}, v{T}
    v_lshlrev_b32 v{T+2}, 4, v{T+2}      ; (pos^r4)*16
    v_lshl_add_u32 v{V_KD}, v{T}, 8, v{T+2}
    v_xor_b32 v{V_KD+1}, 64, v{V_KD}
    v_xor_b32 v{V_KD+2}, 0x80, v{V_KD}
    v_xor_b32 v{V_KD+3}, 0xc0, v{V_KD}
    v_lshl_add_u32 v{V_KA}, v{T+1}, 8, v{T+2}   ; K read: i*256 + ((g^i)*16)
    v_xor_b32 v{V_KA+1}, 64, v{V_KA}
    v_xor_b32 v{V_KA+2}, 0x80, v{V_KA}
    v_xor_b32 v{V_KA+3}, 0xc0, v{V_KA}
    v_lshlrev_b32 v{T+2}, 1, v{T}
    v_xor_b32 v{T+2}, v{T+1}, v{T+2}     ; pos ^ (r4<<1)
    v_lshlrev_b32 v{T+2}, 4, v{T+2}
    v_lshl_add_u32 v{V_VD}, v{T}, 8, v{T+2}
    v_xor_b32 v{V_VD+1}, 0x80, v{V_VD}
    v_lshl_add_u32 v{V_WD}, v{T}, 13, v{T+2}
    v_xor_b32 v{V_WD+1}, 0x80, v{V_WD}
    v_lshlrev_b32 v{V_L16}, 4, v0
    v_add_u32 v{V_L16B}, 0x1000, v{V_L16}
    v_lshrrev_b32 v{T}, 2, v0            ; row 0..15
    v_and_b32 v{T+1}, 7, v{T}            ; row7
    v_and_b32 v{T+2}, 3, v0              ; c
    v_lshlrev_b32 v{T+3}, 8, v{T}        ; row*256
    v_lshl_add_u32 v{T+4}, v{T+1}, 5, v{T+3}   ; + row7*32
    v_lshl_add_u32 v{T+4}, v{T+2}, 3, v{T+4}   ; + c*8
    v_add_u32 v{V_VA}, {VREG}, v{T+4}
    v_lshlrev_b32 v{T+1}, 1, v{T+1}
    v_xor_b32 v{T+1}, v{T+1}, v{T+2}     ; c ^ (row7<<1)
    v_lshl_add_u32 v{V_WA}, v{T+1}, 4, v{T+3}
    """)
    for dt in range(1, 8): a.I(f"v_xor_b32 v{V_VA+dt}, {dt*32}, v{V_VA}")
    for t in range(1, 4): a.I(f"v_xor_b32 v{V_WA+t}, {t*64}, v{V_WA}")
    for t in range(4): a.I(f"v_add_u32 v{V_WA+4+t}, 0x10000, v{V_WA+t}")
    for t in range(4): a.I(f"v_add_u32 v{V_WA+8+t}, 0x20000, v{V_WA+t}")
    a.I(f"""
    s_lshl_b32 s33, s32, 4
    s_lshl_b32 s34, s24, 2
    s_add_u32 s33, s33, s34
    s_mul_i32 s27, s33, {18*1024}
    s_lshl_b32 s29, s24, 17
    s_mov_b32 s25, s30
    s_mov_b32 s26, s30
    """)
    def dma_w(c):
        for i in range(4):
            a.I(f"s_add_u32 m0, s30, {WSLOT[c]*16384 + i*1024}")
            a.I(f"s_add_u32 s35, s29, {c*64*8192 + i*4*8192}")
            a.vm_issue(f"W{c}")
            a.I(f"buffer_load_dwordx4 v{V_WD+(i&1)}, s[12:15], s35 offen lds")
    def ld_x(c):
        for kl in range(2):
            for qt in range(4):
                a.I(f"s_add_u32 s35, s27, {qt*18*1024 + (c*2+kl)*1024}")
                a.vm_issue(f"X{c}")
                a.I(f"buffer_load_dwordx4 {ar(xset(c) + (kl*4+qt)*4, 4)}, v{V_L16}, s[16:19], s35 offen")
    for c in range(4):
        dma_w(c); ld_x(c)
    for x in dma_k(a, 0): emit(a, x)
    def abuf(y): return A_V if y % 2 == 0 else A_Q
    def w_reads(y):
        s = WSLOT[y >> 1]; base = V_WA + 4 * (s >> 2); off = (s % 4) * 16384 + (y & 1) * 8192
        return [f"ds_read_b64_tr_b16 {ar(abuf(y) + (t*2+b)*4 + 2*m, 2)}, v{base+t} offset:{off + m*4096 + 8*b}"
                for t in range(4) for b in range(2) for m in range(2)]
    n = a.vm_wait({"W0"})
    a.I(f"s_waitcnt vmcnt({n})\ns_barrier")
    for x in w_reads(0): a.I(x)
    post_bar = {1: ("k", 1), 2: ("v", 0), 3: ("k", 2), 4: ("v", 1), 5: ("k", 3), 6: ("v", 2)}
    for y in range(18):
        c = y >> 1
        a.C(f"---- qproj unit {y}")
        if y % 2 == 1 and c + 1 < 9:
            n = a.vm_wait({f"W{c+1}", f"X{c}"})
            a.I(f"s_waitcnt vmcnt({n}) lgkmcnt(0)\ns_barrier")
        else:
            n = a.vm_wait({f"X{c}"})
            a.I(f"s_waitcnt vmcnt({n}) lgkmcnt(0)")
        rd = w_reads(y + 1) if y + 1 < 18 else []
        M = []
        for tb in range(8):
            for qt in range(4):
                d = vr(V_S + (qt*8 + tb)*4, 4)
                M.append(mf(d, ar(abuf(y) + tb*4, 4), ar(xset(c) + ((y & 1)*4+qt)*4, 4), d if y else "0"))
        k = 0
        for g in range(32):
            a.I(M[g])
            if g < 24 and g % 3 != 2 and k < len(rd): a.I(rd[k]); k += 1
            if y % 2 == 1 and g == 24 and (c + 1) in post_bar:
                kind, t = post_bar[c + 1]
                for x in (dma_k(a, t) if kind == "k" else dma_v(a, t)): emit(a, x)
            if y % 2 == 0 and g == 24 and c + 4 < 9: dma_w(c + 4)
            if y % 2 == 0 and g == 26 and c + 4 < 9: ld_x(c + 4)
        assert k == len(rd)
    stamp(a, 1); g_mid(a, 0)
    a.I("s_nop 7\ns_nop 7")
    for qt in range(4):
        for t in range(4):
            b = V_S + (qt*8 + t*2)*4
            for i in range(4): a.I(f"v_cvt_pk_bf16_f32 v{b+i}, v{b+2*i}, v{b+2*i+1}")
            for i in range(4): a.I(f"v_accvgpr_write_b32 a{A_Q + (qt*4+t)*4 + i}, v{b+i}")
    def zero_o():
        for r in range(128): a.I(f"v_accvgpr_write_b32 a{A_O + r}, 0")
        for r in range(4): a.I(f"v_mov_b32 v{V_LS + r}, 0")
    n = a.vm_wait({"K0"})
    a.I(f"s_waitcnt vmcnt({n})\ns_barrier")
    for x in k_reads(0): a.I(x)
    zero_o()
    a.I("s_waitcnt lgkmcnt(0)")
    for x in qk_mfmas(0, False): a.I(x)
    for x in k_reads(1): a.I(x)
    a.I("s_nop 7\ns_nop 7")
    def xlane(op, dst):
        a.I(f"""v_mov_b32 v{dst+1}, v{dst}
        s_nop 1
        v_permlane16_swap_b32 v{dst}, v{dst+1}
        s_nop 1
        {op} v{dst}, v{dst}, v{dst+1}
        v_mov_b32 v{dst+1}, v{dst}
        s_nop 1
        v_permlane32_swap_b32 v{dst}, v{dst+1}
        s_nop 1
        {op} v{dst}, v{dst}, v{dst+1}""")
    def rowmax(u, qt, dst):
        b = sbuf(u) + 8*qt
        a.I(f"v_max3_f32 v{dst}, v{b}, v{b+1}, v{b+2}")
        a.I(f"v_max3_f32 v{dst}, v{dst}, v{b+3}, v{b+4}")
        a.I(f"v_max3_f32 v{dst}, v{dst}, v{b+5}, v{b+6}")
        a.I(f"v_max_f32 v{dst}, v{dst}, v{b+7}")
        xlane("v_max_f32", dst)
    for qt in range(4):
        rowmax(0, qt, T)
        for r in range(4): a.I(f"v_sub_f32 v{V_NEGM + 4*qt + r}, 0, v{T}")
        for r in range(8): a.I(f"v_sub_f32 v{sbuf(0) + 8*qt + r}, v{sbuf(0) + 8*qt + r}, v{T}")
    if USE2[0]:
        for r in range(16): a.I(f"v_mov_b32 v{V_LSA+r}, 0")
        for r in range(4): a.I(f"v_mov_b32 v{V_ONES+r}, 0x3f803f80")
    a.I("s_nop 1")
    stamp(a, 2)
    for u in range(0, 8): body(a, u)
    a.I("s_mov_b32 s27, 6")
    a.raw(".p2align 6")
    a.label(f"L_{name}_loop")
    vm_before = list(a.vm)
    for u in range(8, 16): body(a, u, steady=True)
    a.I(f"s_sub_u32 s27, s27, 1\ns_cmp_lg_u32 s27, 0\ns_cbranch_scc1 L_{name}_loop")
    def shift(tag, d): return tag[0] + str(int(tag[1:]) + d)
    assert [shift(t, 4) for t in vm_before] == a.vm, (vm_before, a.vm)
    a.vm = [shift(t, 20) for t in a.vm]
    for u in range(56, 64): body(a, u)
    a.C("---- tail PV(63)")
    if USE2[0]: a.I(sm_cvt(63, 14)); a.I(sm_cvt(63, 15))
    else: a.I(sm_add(63, 31)); a.I(sm_cvt(63, 15))
    for x in v_reads(63): a.I(x)
    a.I("s_waitcnt lgkmcnt(0)")
    if USE2[0]:
        for qt in range(4): a.I(mf(vr(V_LSA + 4*qt, 4), vr(V_ONES, 4), vr(sbuf(63) + qt*8, 4), vr(V_LSA + 4*qt, 4)))
    for x in pv_mfmas(63): a.I(x)
    stamp(a, 3); g_mid(a, 1)
    def lsum_total():
        for qt in range(4):
            a.I(f"v_mov_b32 v{T}, v{V_LS+qt}")
            xlane("v_add_f32", T)
            a.I(f"v_mov_b32 v{V_LS+qt}, v{T}")
    if USE2[0]:
        for qt in range(4): a.I(f"v_mov_b32 v{V_LS+qt}, v{V_LSA+4*qt}")
    else: lsum_total()
    a.I(f"""
    s_mov_b32 s33, {THR:#x}
    v_cmp_nle_f32 vcc, v{V_LS}, s33
    v_cmp_nle_f32 s[34:35], v{V_LS+1}, s33
    v_cmp_nle_f32 s[44:45], v{V_LS+2}, s33
    v_cmp_nle_f32 s[46:47], v{V_LS+3}, s33
    s_nop 1
    s_or_b64 vcc, vcc, s[34:35]
    s_or_b64 s[44:45], s[44:45], s[46:47]
    s_or_b64 vcc, vcc, s[44:45]
    s_cmp_lg_u64 vcc, 0
    s_cselect_b32 s33, 1, {1 if force_fallback else 0}
    v_mov_b32 v{T}, s33
    v_lshlrev_b32 v{T+1}, 2, v0
    s_lshl_b32 s34, s24, 8
    v_add_u32 v{T+1}, s34, v{T+1}
    ds_write_b32 v{T+1}, v{T}
    s_waitcnt lgkmcnt(0)
    s_barrier
    v_lshlrev_b32 v{T+1}, 2, v0
    ds_read_b32 v{T}, v{T+1}
    ds_read_b32 v{T+2}, v{T+1} offset:256
    ds_read_b32 v{T+3}, v{T+1} offset:512
    ds_read_b32 v{T+4}, v{T+1} offset:768
    s_waitcnt lgkmcnt(0)
    v_or3_b32 v{T}, v{T}, v{T+2}, v{T+3}
    v_or_b32 v{T}, v{T}, v{T+4}
    s_nop 0
    v_readfirstlane_b32 s33, v{T}
    s_nop 3
    s_cmp_lg_u32 s33, 0
    s_cbranch_scc1 L_{name}_fallback
    """)
    a.label(f"L_{name}_epi")
    for qt in range(4): a.I(f"v_rcp_f32 v{V_LS+qt}, v{V_LS+qt}")
    a.I(f"""
    s_lshl_b32 s33, s32, 4
    s_lshl_b32 s34, s24, 2
    s_add_u32 s33, s33, s34
    s_lshl_b32 s33, s33, 17              ; qt16*128*1024
    s_lshl_b32 s34, s31, 12              ; head*4*1024
    s_add_u32 s33, s33, s34
    """)
    tb = V_S
    for qt in range(4):
        for t in range(4):
            src = A_O + (qt*4+t)*8
            tt = tb; tb += 8
            for i in range(8): a.I(f"v_accvgpr_read_b32 v{tt+i}, a{src+i}")
            for i in range(8): a.I(f"v_mul_f32 v{tt+i}, v{tt+i}, v{V_LS+qt}")
            for i in range(4): a.I(f"v_cvt_pk_bf16_f32 v{tt+i}, v{tt+2*i}, v{tt+2*i+1}")
            a.I(f"buffer_store_dwordx4 {vr(tt,4)}, v{V_L16}, s[20:23], s33 offen offset:{t*1024}")
        if qt < 3: a.I("s_add_u32 s33, s33, 0x20000")
    if STAMP:
        a.I("s_waitcnt vmcnt(0)")
        stamp(a, 4)
        a.I("s_waitcnt lgkmcnt(0)")
        srd(a, 16, 42, 0x100000, add_imm=0x8000000)
        a.I("s_lshl_b32 s33, s2, 2\ns_add_u32 s33, s33, s24\ns_lshl_b32 s33, s33, 7")
        a.I("v_mov_b32 v1, 0")
        for i in range(20):
            a.I(f"v_mov_b32 v2, s{60+i}")
            a.I(f"buffer_store_dword v2, v1, s[16:19], s33 offen offset:{4*i}")
    g_end(a, 4)
    a.I("s_endpgm")
    a.label(f"L_{name}_fallback")
    zero_o()
    for qt in range(4): a.I(f"v_mov_b32 v{V_M+qt}, 0xff800000")
    a.I("s_mov_b32 s25, s30\ns_mov_b32 s26, s30\ns_mov_b32 s27, 32")
    a.label(f"L_{name}_fb_loop")
    a.I("s_barrier")
    sv = list(a.vm)
    for x in dma_k(a, 0) + dma_v(a, 0): emit(a, x)
    a.vm = sv
    a.I("s_waitcnt vmcnt(0)\ns_barrier")
    for kb in range(2):
        for x in k_reads(kb): a.I(x)
        a.I("s_waitcnt lgkmcnt(0)")
        for x in v_reads(kb): a.I(x)
        a.I("s_waitcnt lgkmcnt(0)")
        for x in qk_mfmas(0, False): a.I(x)
        a.I("s_nop 7\ns_nop 7")
        for qt in range(4):
            rowmax(0, qt, T)
            a.I(f"""
            v_max_f32 v{T}, v{T}, v{V_M+qt}
            v_sub_f32 v{T+2}, v{V_M+qt}, v{T}
            v_exp_f32 v{T+2}, v{T+2}
            v_mov_b32 v{V_M+qt}, v{T}
            v_mul_f32 v{V_LS+qt}, v{V_LS+qt}, v{T+2}
            """)
            for r in range(32):
                o = A_O + qt*32 + r
                a.I(f"v_accvgpr_read_b32 v{T+3}, a{o}\ns_nop 0\nv_mul_f32 v{T+3}, v{T+3}, v{T+2}\ns_nop 0\nv_accvgpr_write_b32 a{o}, v{T+3}")
            for r in range(8):
                e = 8*qt + r
                a.I(f"v_sub_f32 v{sbuf(0)+e}, v{sbuf(0)+e}, v{T}")
                a.I(sm_exp(0, e))
            a.I("s_nop 0")
            for r in range(8): a.I(sm_add(0, 8*qt + r))
            for p in range(4): a.I(sm_cvt(0, 4*qt + p))
        a.I("s_nop 1")
        for x in pv_mfmas(0): a.I(x)
        a.I("s_nop 7\ns_nop 7")
    a.I(f"s_sub_u32 s27, s27, 1\ns_cmp_lg_u32 s27, 0\ns_cbranch_scc1 L_{name}_fb_loop")
    lsum_total()
    a.I(f"s_branch L_{name}_epi")
    a.label(f"L_{name}_done")
    a.I("s_endpgm")
    return a.text(), kernel_desc(name, 512, 256)

if __name__ == "__main__":
    import sys
    STAMP = "stamp" in sys.argv
    USE2[0] = "v2" in sys.argv
    for x in sys.argv:
        if x.startswith("pat="): SCHED["pat"] = x[4:]
    t, d = gen_attn(force_fallback="fb" in sys.argv)
    hdr = "; @launch kernel=attn_kernel grid=(256,1,1) block=(256,1,1) lds=163840\n.amdgcn_target \"amdgcn-amd-amdhsa--gfx950\"\n"
    open(sys.argv[1], "w").write(hdr + t + d)
```

```python
S_ROWS = 2048; D = 576; H = 32; DH = 128; F = 4608
WS_XN  = 0x0000000
WS_XQ  = 0x0240000
WS_H   = 0x0480000
WS_X1  = 0x06C0000
WS_ST  = 0x0900000
WS_CS3 = 0x0950000
WS_H3  = 0x1000000
WS_O   = 0x2400000
WS_S32 = 0x3400000
WS_G32 = 0x3900000
SZ_ACT = 0x240000
KA = dict(x=0, k=8, v=16, wq=24, wo=32, bx=40, w1=48, w2=56, w3=64, w4=72, out=80, dbg=88, ws=96)

def icost(ln):
    if ln.startswith("v_mfma_f32_16"): return 16
    if ln.startswith("v_mfma"): return 32
    if ln.startswith(("v_exp", "v_rcp", "v_rsq", "v_log", "v_sqrt")): return 8
    if ln.startswith("v_pk_"): return 6
    if ln.startswith("ds_"): return 4
    if ln.startswith(";"): return 0
    if ln.startswith("s_nop"): return 4 * (int(ln.split()[1]) + 1)
    if ln.startswith("s_barrier"): return 30
    if ln.startswith("buffer_"): return 16
    return 4

class Asm:
    def __init__(self):
        self.L = []
        self.vm = []
        self.cyc = 0; self.bg = []; self.last_bg = -10**9; self.pace = 72; self.auto = False; self._in = False
    def I(self, s):
        for ln in s.split("\n"):
            ln = ln.strip()
            if ln:
                self.L.append("    " + ln)
                self.cyc += icost(ln)
                if ln.startswith("buffer_"): self.last_bg = self.cyc
                if self.auto and not self._in and ln.startswith(("v_", "ds_")) and not ln.startswith(("v_readfirstlane", "v_cmp")): self.slot()
    def bg_add(self, items, front=False):
        groups = []; cur = []
        for x in items:
            if isinstance(x, tuple): cur.append(x); groups.append(cur); cur = []
            else: cur.append(x)
        if cur:
            if groups: groups[-1] += cur
            else: groups.append(cur)
        self.bg = groups + self.bg if front else self.bg + groups
    def _emit_group(self):
        g = self.bg.pop(0); self._in = True
        for x in g:
            if isinstance(x, tuple): self.vm_issue(x[1]); self.I(x[2])
            else: self.I(x)
        self._in = False
    def slot(self):
        if self.bg and self.cyc - self.last_bg >= self.pace: self._emit_group()
    def force(self, tags=None):
        while True:
            hit = any(isinstance(x, tuple) and (tags is None or x[1] in tags) for g in self.bg for x in g)
            if not hit: break
            self._emit_group()
        if tags is None:
            while self.bg: self._emit_group()
    def C(self, s): self.L.append("    ; " + s)
    def label(self, l): self.L.append(l + ":")
    def raw(self, s): self.L.append(s)
    def text(self): return "\n".join(self.L) + "\n"
    def vm_issue(self, tag): self.vm.append(tag)
    def vm_count_for(self, tags):
        last = -1
        for i, t in enumerate(self.vm):
            if t in tags: last = i
        n = len(self.vm) - 1 - last
        return n
    def vm_wait(self, tags):
        self.force(tags)
        n = self.vm_count_for(tags)
        n = min(n, 63)
        self.vm = self.vm[len(self.vm) - n:] if n else []
        return n

def srd(a, d, ptr_lo, nbytes, add_lo=None, add_imm=None):
    if add_lo is not None:
        a.I(f"s_add_u32 s{d}, s{ptr_lo}, s{add_lo}")
        a.I(f"s_addc_u32 s{d+1}, s{ptr_lo+1}, 0")
    elif add_imm:
        a.I(f"s_add_u32 s{d}, s{ptr_lo}, {add_imm:#x}")
        a.I(f"s_addc_u32 s{d+1}, s{ptr_lo+1}, 0")
    else:
        a.I(f"s_mov_b32 s{d}, s{ptr_lo}")
        a.I(f"s_mov_b32 s{d+1}, s{ptr_lo+1}")
    a.I(f"s_mov_b32 s{d+2}, {nbytes:#x}")
    a.I(f"s_mov_b32 s{d+3}, 0x00020000")

def kernel_begin(a, name):
    a.raw(".text")
    a.raw(f".globl {name}")
    a.raw(".p2align 8")
    a.raw(f".type {name},@function")
    a.label(name)

def kernel_desc(name, vgpr, accum, sgpr=102):
    return f""".section .rodata,"a"
.p2align 6
.amdhsa_kernel {name}
  .amdhsa_next_free_vgpr {vgpr}
  .amdhsa_next_free_sgpr {sgpr}
  .amdhsa_accum_offset {accum}
  .amdhsa_group_segment_fixed_size 0
  .amdhsa_kernarg_size 104
  .amdhsa_user_sgpr_count 2
  .amdhsa_user_sgpr_kernarg_segment_ptr 1
  .amdhsa_system_sgpr_workgroup_id_x 1
  .amdhsa_float_denorm_mode_32 3
.end_amdhsa_kernel
"""

def vr(b, n=1): return f"v{b}" if n == 1 else f"v[{b}:{b+n-1}]"
def ar(b, n=1): return f"a{b}" if n == 1 else f"a[{b}:{b+n-1}]"
def mfma(d, A, B, c): return f"v_mfma_f32_32x32x16_bf16 {d}, {A}, {B}, {c}"

GSTAMP = [False]
def g_begin(a):
    if GSTAMP[0]: a.I("s_memrealtime s[96:97]")
MIDS = [84, 86, 88, 90]
ENDR = [98]
def g_mid(a, i):
    if GSTAMP[0]: a.I(f"s_memrealtime s[{MIDS[i]}:{MIDS[i]+1}]")
def g_end(a, kidx, wsreg=42, wave_sgpr=24):
    if not GSTAMP[0]: return
    a.I(f"s_waitcnt vmcnt(0)\ns_memrealtime s[{ENDR[0]}:{ENDR[0]+1}]\ns_waitcnt lgkmcnt(0)")
    srd(a, 4, wsreg, 0x1000000, add_imm=0x8000000 + kidx * 0x40000)
    a.I(f"s_lshl_b32 s33, s2, 2\ns_add_u32 s33, s33, s{wave_sgpr}\ns_lshl_b32 s33, s33, 5\nv_mov_b32 v1, 0")
    for j, r in enumerate([96, ENDR[0]] + MIDS):
        a.I(f"v_mov_b32 v2, s{r}\nbuffer_store_dword v2, v1, s[4:7], s33 offen offset:{4*j}")
```

```python
from gen_common import *
import struct
def f32(x): return struct.unpack("<I", struct.pack("<f", x))[0]
def mf(d, A, B, c): return f"v_mfma_f32_16x16x32_bf16 {d}, {A}, {B}, {c}"
PREFETCH = [True]
SLAB = 9216
EPS = 1e-5

def lane_consts(a, pitch, V_PAT, V_TR, V_L16, T, sW=None):
    a.I(f"s_mov_b32 s90, {(1<<32)//18 + 1}")
    a.I(f"s_mov_b32 s91, {pitch}")
    for p in range(9):
        a.I(f"""
        v_add_u32 v{T}, {p*64}, v0
        v_mul_hi_u32 v{T+1}, v{T}, s90
        v_mul_u32_u24 v{T+2}, 18, v{T+1}
        v_sub_u32 v{T+2}, v{T}, v{T+2}          ; ch
        v_mul_lo_u32 v{T+1}, v{T+1}, s91
        v_lshl_add_u32 v{V_PAT+p}, v{T+2}, 4, v{T+1}
        """)
        if p % 4: a.I(f"v_subrev_u32 v{V_PAT+p}, {(p%4)*1024}, v{V_PAT+p}")
    a.I(f"""
    v_lshrrev_b32 v{T}, 2, v0
    v_mul_u32_u24 v{T}, 288, v{T}
    v_and_b32 v{T+1}, 3, v0
    v_lshl_add_u32 v{V_TR}, v{T+1}, 3, v{T}
    v_lshlrev_b32 v{V_L16}, 4, v0
    """)

def dma_slab(a, V_PAT, srdW, s_soff, s_ldsbase, lds_off, tag):
    r = []
    for p in range(9):
        if p % 4 == 0: r.append(f"s_add_u32 m0, s{s_ldsbase}, {lds_off + p*1024}")
        r.append(("vm", tag, f"buffer_load_dwordx4 v{V_PAT+p}, s[{srdW}:{srdW+3}], s{s_soff} offen offset:{(p%4)*1024} lds"))
    return r

def a_reads(dst, V_TR, off, areg=ar):
    return [f"ds_read_b64_tr_b16 {areg(dst + nt*4 + 2*m, 2)}, v{V_TR} offset:{off + m*16*288 + nt*32}" for nt in range(9) for m in range(2)]

def emit(a, x):
    if isinstance(x, tuple): a.vm_issue(x[1]); a.I(x[2])
    else: a.I(x)

def xlane(a, op, dst):
    a.I(f"""v_mov_b32 v{dst+1}, v{dst}
    s_nop 1
    v_permlane16_swap_b32 v{dst}, v{dst+1}
    s_nop 1
    {op} v{dst}, v{dst}, v{dst+1}
    v_mov_b32 v{dst+1}, v{dst}
    s_nop 1
    v_permlane32_swap_b32 v{dst}, v{dst+1}
    s_nop 1
    {op} v{dst}, v{dst}, v{dst+1}""")

C1 = -2.0 * 1.4426950408889634 * 0.7978845608028654
C2 = C1 * 0.044715
def gelu4(a, x, t, sC1, sC2):
    for h in (0, 2):
        a.I(f"v_pk_mul_f32 v[{t+h}:{t+h+1}], v[{x+h}:{x+h+1}], v[{x+h}:{x+h+1}]")
    for h in (0, 2):
        a.I(f"v_pk_fma_f32 v[{t+h}:{t+h+1}], v[{t+h}:{t+h+1}], s[{sC2}:{sC2+1}], v[{sC1}:{sC1+1}]")
    for h in (0, 2):
        a.I(f"v_pk_mul_f32 v[{t+h}:{t+h+1}], v[{t+h}:{t+h+1}], v[{x+h}:{x+h+1}]")
    for i in range(4): a.I(f"v_exp_f32 v{t+i}, v{t+i}")
    for h in (0, 2):
        a.I(f"v_pk_add_f32 v[{t+h}:{t+h+1}], v[{t+h}:{t+h+1}], 1.0 op_sel_hi:[1,0]")
    for i in range(4): a.I(f"v_rcp_f32 v{t+i}, v{t+i}")
    a.I("s_nop 0")
    for h in (0, 2):
        a.I(f"v_pk_mul_f32 v[{x+h}:{x+h+1}], v[{x+h}:{x+h+1}], v[{t+h}:{t+h+1}]")

def gen_k12(which):
    name = f"k{which}_kernel"
    a = Asm(); kernel_begin(a, name); g_begin(a)
    V_PAT = 1; V_TR = 10; V_L16 = 11; T = 12
    V_B = 32
    V_ACC = 72
    V_X = 144
    A_A = 0
    wkey = "w1" if which == 1 else "w2"
    a.I(f"""
    s_cmp_ge_u32 s2, 256
    s_cbranch_scc1 L_{name}_exit
    """)
    if which == 1 and PREFETCH[0]:
        a.I("s_getpc_b64 s[12:13]")
        a.label("L_pc0")
        a.I(f"""
        s_sub_u32 s12, s12, L_pc0-k1_kernel
        s_subb_u32 s13, s13, 0
        s_mov_b32 s14, L_code_end-k1_kernel
        s_mov_b32 s15, 0x00020000
        s_lshr_b32 s33, s2, 3
        s_lshl_b32 s33, s33, 12
        v_lshlrev_b32 v2, 4, v0
        buffer_load_dwordx4 v[220:223], v2, s[12:15], s33 offen
        """)
        a.vm_issue("PF")
    a.I(f"""
    s_load_dwordx2 s[36:37], s[0:1], {KA[wkey]}
    s_load_dwordx2 s[38:39], s[0:1], {KA['x']}
    s_load_dwordx2 s[42:43], s[0:1], {KA['ws']}
    v_lshrrev_b32 v1, 6, v0
    v_and_b32 v0, 63, v0
    s_and_b32 s31, s2, 7
    v_readfirstlane_b32 s24, v1
    s_lshr_b32 s32, s2, 3                 ; idx 0..31
    s_lshl_b32 s31, s31, 3
    s_lshr_b32 s33, s32, 2
    s_add_u32 s31, s31, s33
    s_and_b32 s32, s32, 3                 ; nb
    s_mul_i32 s30, s24, {4*SLAB}
    s_mul_i32 s33, s32, 288
    s_waitcnt lgkmcnt(0)
    """)
    srd(a, 4, 36, 0, add_lo=33)
    a.I(f"s_sub_u32 s6, {576*1152}, s33")
    lane_consts(a, 1152, V_PAT, V_TR, V_L16, T)
    a.I(f"v_add_u32 v{V_TR}, s30, v{V_TR}")
    a.I(f"s_mul_i32 s25, s24, {32*1152}")
    if which == 1:
        srd(a, 8, 38, SZ_ACT)
        a.I(f"""
        v_and_b32 v{T}, 15, v0
        v_mul_u32_u24 v{T}, 1152, v{T}
        v_lshrrev_b32 v{T+1}, 4, v0
        v_lshl_add_u32 v{T+3}, v{T+1}, 3, v{T}
        s_mul_i32 s26, s31, {32*1152}
        s_lshl_b32 s33, s24, 6
        s_add_u32 s26, s26, s33
        """)
    else:
        srd(a, 8, 42, SZ_ACT, add_imm=WS_H)
        a.I(f"""
        s_mul_i32 s26, s31, {2*18*1024}
        s_lshl_b32 s33, s24, 10
        s_add_u32 s26, s26, s33
        """)
    def loadB(i):
        for qt in range(2):
            d = V_B + (i*2+qt)*4
            if which == 1:
                off = qt*16*1152 + i*256
                a.I(f"s_add_u32 s35, s26, {off}")
                if i == 4: a.I(f"s_cmp_ge_u32 s24, 2\ns_cselect_b32 s35, 0x7fff0000, s35")
                a.vm_issue(f"B{i}"); a.I(f"buffer_load_dwordx2 v[{d}:{d+1}], v{T+3}, s[8:11], s35 offen")
                a.vm_issue(f"B{i}"); a.I(f"buffer_load_dwordx2 v[{d+2}:{d+3}], v{T+3}, s[8:11], s35 offen offset:32")
            else:
                a.I(f"s_add_u32 s35, s26, {qt*18*1024 + i*4096}")
                if i == 4: a.I(f"s_cmp_ge_u32 s24, 2\ns_cselect_b32 s35, 0x7fff0000, s35")
                a.vm_issue(f"B{i}"); a.I(f"buffer_load_dwordx4 v[{d}:{d+3}], v{V_L16}, s[8:11], s35 offen")
    def loadW(i):
        for x in dma_slab(a, V_PAT, 4, 25, 30, (i % 4) * SLAB, f"W{i}"): emit(a, x)
        a.I(f"s_add_u32 s25, s25, {128*1152}")
    if which == 1:
        for i in range(5): loadB(i)
        for i in range(4): loadW(i)
    else:
        for i in range(4): loadW(i); loadB(i)
        loadB(4)
    SCR = 16 * SLAB
    if which == 1:
        n = a.vm_wait({"B4"}); a.I(f"s_waitcnt vmcnt({n})"); g_mid(a, 0)
        for i in range(5):
            for qt in range(2):
                for r in range(4):
                    s = V_B + (i*2+qt)*4 + r; d = V_X + ((i*2+qt)*4 + r)*2
                    a.I(f"v_lshlrev_b32 v{d}, 16, v{s}\nv_and_b32 v{d+1}, 0xffff0000, v{s}")
        def xs(qt): return [V_X + ((i*2+qt)*4)*2 + e for i in range(5) for e in range(8)]
        def reduce_all(slot):
            for qt in range(2): xlane(a, "v_add_f32", T+4+2*qt)
            a.I(f"""
            v_and_b32 v{T}, 15, v0
            v_lshlrev_b32 v{T}, 2, v{T}
            v_add_u32 v{T}, {SCR}, v{T}
            s_lshl_b32 s33, s24, 6
            v_add_u32 v{T+1}, s33, v{T}
            ds_write_b32 v{T+1}, v{T+4} offset:{slot*512}
            ds_write_b32 v{T+1}, v{T+6} offset:{slot*512 + 256}
            s_waitcnt lgkmcnt(0)
            s_barrier
            """)
            for qt in range(2):
                for w in range(4): a.I(f"ds_read_b32 v{T+8+qt*4+w}, v{T} offset:{slot*512 + qt*256 + w*64}")
            a.I("s_waitcnt lgkmcnt(0)")
            for qt in range(2):
                b = T+8+qt*4
                a.I(f"v_add_f32 v{b}, v{b}, v{b+1}\nv_add_f32 v{b+2}, v{b+2}, v{b+3}\nv_add_f32 v{T+4+2*qt}, v{b}, v{b+2}")
        for qt in range(2):
            r = xs(qt); d = T+4+2*qt
            a.I(f"v_add_f32 v{d}, v{r[0]}, v{r[1]}\nv_add_f32 v{d+1}, v{r[2]}, v{r[3]}")
            for e in range(4, 40): a.I(f"v_add_f32 v{d+(e&1)}, v{d+(e&1)}, v{r[e]}")
            a.I(f"v_add_f32 v{d}, v{d}, v{d+1}")
        reduce_all(0)
        a.I(f"s_mov_b32 s48, {f32(1.0/576):#x}")
        a.I(f"s_cmp_ge_u32 s24, 2\ns_cselect_b32 s34, 0, s48")
        for qt in range(2):
            d = T+4+2*qt
            a.I(f"v_mul_f32 v{d+1}, s34, v{d}\nv_mul_f32 v{d}, s48, v{d}")
            for e, r in enumerate(xs(qt)): a.I(f"v_sub_f32 v{r}, v{r}, v{d + (1 if e >= 32 else 0)}")
        for qt in range(2):
            r = xs(qt); d = T+4+2*qt
            a.I(f"v_mul_f32 v{d}, v{r[0]}, v{r[0]}\nv_mul_f32 v{d+1}, v{r[1]}, v{r[1]}")
            for e in range(2, 40): a.I(f"v_fmac_f32 v{d+(e&1)}, v{r[e]}, v{r[e]}")
            a.I(f"v_add_f32 v{d}, v{d}, v{d+1}")
        reduce_all(1)
        cq = 1.4426950408889634 / 128 ** 0.5
        a.I(f"s_mov_b32 s34, {f32(EPS):#x}\ns_mov_b32 s44, {f32(cq):#x}")
        for qt in range(2):
            d = T+4+2*qt
            a.I(f"""
            v_mul_f32 v{d}, s48, v{d}              ; var
            v_add_f32 v{T+8}, s34, v{d}            ; var+eps
            v_fma_f32 v{T+9}, v{T+8}, s34, v{d}    ; var+eps*(var+eps)
            v_rsq_f32 v{d}, v{T+8}
            v_rsq_f32 v{d+1}, v{T+9}
            """)
        a.I("s_nop 0")
        for qt in range(2):
            d = T+4+2*qt
            a.I(f"v_rcp_f32 v{T+8}, v{d+1}\ns_nop 0\nv_mul_f32 v{T+18+qt}, v{d}, v{T+8}")
        for qt in range(2):
            d = T+4+2*qt+1
            for i in range(5):
                b = V_X + ((i*2+qt)*4)*2; o = V_B + (i*2+qt)*4
                for r in range(4):
                    a.I(f"v_mul_f32 v{b+2*r}, v{b+2*r}, v{d}\nv_mul_f32 v{b+2*r+1}, v{b+2*r+1}, v{d}\nv_cvt_pk_bf16_f32 v{o+r}, v{b+2*r}, v{b+2*r+1}")
    n = a.vm_wait({"W0"}); a.I(f"s_waitcnt vmcnt({n})"); g_mid(a, 1)
    for x in a_reads(A_A, V_TR, 0): a.I(x)
    for i in range(5):
        a.C(f"step {i}")
        if i < 4:
            n = a.vm_wait({f"W{i+1}" if i + 1 < 4 else "W3", f"B{i}"})
        else:
            n = a.vm_wait({"B4"})
        a.I(f"s_waitcnt vmcnt({n}) lgkmcnt(0)")
        if i == 0: loadW(4)
        if i == 3:
            n = a.vm_wait({"W4"}); a.I(f"s_waitcnt vmcnt({n})")
        rd = a_reads(A_A + 36*((i+1) % 2), V_TR, ((i+1) % 4) * SLAB) if i < 4 else []
        k = 0
        for nt in range(9):
            for qt in range(2):
                d = vr(V_ACC + (qt*9+nt)*4, 4)
                a.I(mf(d, ar(A_A + 36*(i % 2) + nt*4, 4), vr(V_B + (i*2+qt)*4, 4), d if i else "0"))
                if k < len(rd): a.I(rd[k]); k += 1
    a.I("s_nop 7\ns_barrier"); g_mid(a, 2)
    own = lambda w: [((w & 1), nt) for nt in (range(0, 5) if w < 2 else range(5, 9))]
    a.I(f"s_mul_i32 s33, s24, {18*1024}\nv_add_u32 v{T}, s33, v{V_L16}")
    for t in range(18): a.I(f"ds_write_b128 v{T}, {vr(V_ACC + t*4, 4)} offset:{t*1024}")
    a.I("s_waitcnt lgkmcnt(0)\ns_barrier")
    a.I(f"""
    s_and_b32 s33, s24, 1
    s_mul_i32 s33, s33, 9
    s_cmp_ge_u32 s24, 2
    s_cselect_b32 s34, 5, 0
    s_add_u32 s33, s33, s34               ; t0
    s_lshl_b32 s33, s33, 10
    v_add_u32 v{T}, s33, v{V_L16}
    """)
    R = V_B
    XL = 112
    for j in range(5):
        for w in range(4): a.I(f"ds_read_b128 {vr(R + (j*4+w)*4, 4)}, v{T} offset:{w*18*1024 + j*1024}")
    a.I(f"""
    s_mul_i32 s44, s32, 9
    s_add_u32 s44, s44, s34               ; ntg0
    s_and_b32 s45, s24, 1                 ; qt
    s_lshl_b32 s46, s31, 1
    s_add_u32 s46, s46, s45
    """)
    def piece_off(j, dst):
        a.I(f"s_add_u32 s33, s44, {j}\ns_lshr_b32 s{dst}, s33, 1\ns_lshl_b32 s{dst}, s{dst}, 10\ns_and_b32 s33, s33, 1\ns_lshl_b32 s33, s33, 3\ns_add_u32 s{dst}, s{dst}, s33")
        if j == 4: a.I(f"s_cmp_ge_u32 s24, 2\ns_cselect_b32 s{dst}, 0x7fff0000, s{dst}")
    if which == 2:
        srd(a, 12, 42, SZ_ACT, add_imm=WS_XN)
        srd(a, 16, 42, SZ_ACT, add_imm=WS_X1)
        a.I(f"s_mul_i32 s47, s46, {18*1024}\nv_add_u32 v{T+2}, s47, v{V_L16}")
        for j in range(5):
            piece_off(j, 50 + j)
            a.I(f"buffer_load_dwordx2 v[{XL+2*j}:{XL+2*j+1}], v{T+2}, s[12:15], s{50+j} offen")
    a.I("s_waitcnt lgkmcnt(0)")
    for j in range(5):
        b = R + j*16
        for h in (0, 2):
            a.I(f"v_pk_add_f32 v[{b+h}:{b+h+1}], v[{b+h}:{b+h+1}], v[{b+4+h}:{b+5+h}]")
            a.I(f"v_pk_add_f32 v[{b+8+h}:{b+9+h}], v[{b+8+h}:{b+9+h}], v[{b+12+h}:{b+13+h}]")
            a.I(f"v_pk_add_f32 v[{b+h}:{b+h+1}], v[{b+h}:{b+h+1}], v[{b+8+h}:{b+9+h}]")
    if which == 1:
        a.I(f"s_mov_b32 s50, {f32(C2):#x}\ns_mov_b32 s51, {f32(C2):#x}\nv_mov_b32 v{T+4}, {f32(C1):#x}\nv_mov_b32 v{T+5}, {f32(C1):#x}")
        srd(a, 12, 42, SZ_ACT, add_imm=WS_H)
        a.I(f"""
        s_cmp_eq_u32 s32, 0
        s_cselect_b32 s47, 1, -1
        s_cmp_eq_u32 s32, 2
        s_cselect_b32 s47, 2, s47
        s_cmp_eq_u32 s32, 3
        s_cselect_b32 s47, -2, s47
        s_lshl_b32 s33, s46, 4
        s_add_u32 s33, s33, s47
        v_and_b32 v{T}, 15, v0
        v_add_u32 v{T}, s33, v{T}
        v_cmp_gt_u32 vcc, 0x800, v{T}
        v_and_b32 v{T}, 0x7ff, v{T}
        v_lshrrev_b32 v{T+1}, 4, v{T}
        v_mul_u32_u24 v{T+1}, {18*1024}, v{T+1}
        v_and_b32 v{T}, 15, v{T}
        v_lshl_add_u32 v{T+1}, v{T}, 4, v{T+1}
        v_and_b32 v{T}, 0x30, v0
        v_lshl_add_u32 v{T+2}, v{T}, 4, v{T+1} ; + g*256
        """)
        for j in range(5):
            b = R + j*16
            gelu4(a, b, b + 4, T + 4, 50)
            a.I(f"v_cvt_pk_bf16_f32 v{b}, v{b}, v{b+1}\nv_cvt_pk_bf16_f32 v{b+1}, v{b+2}, v{b+3}")
            a.I(f"v_cndmask_b32 v{b}, 0, v{b}, vcc\nv_cndmask_b32 v{b+1}, 0, v{b+1}, vcc")
            piece_off(j, 35)
            a.I(f"buffer_store_dwordx2 v[{b}:{b+1}], v{T+2}, s[12:15], s35 offen")
    else:
        a.I("s_waitcnt vmcnt(0)")
        for j in range(5):
            b = R + j*16; s = XL + 2*j
            a.I(f"""
            v_lshlrev_b32 v{b+4}, 16, v{s}
            v_and_b32 v{b+5}, 0xffff0000, v{s}
            v_lshlrev_b32 v{b+6}, 16, v{s+1}
            v_and_b32 v{b+7}, 0xffff0000, v{s+1}
            v_pk_add_f32 v[{b}:{b+1}], v[{b}:{b+1}], v[{b+4}:{b+5}]
            v_pk_add_f32 v[{b+2}:{b+3}], v[{b+2}:{b+3}], v[{b+6}:{b+7}]
            v_cvt_pk_bf16_f32 v{b+8}, v{b}, v{b+1}
            v_cvt_pk_bf16_f32 v{b+9}, v{b+2}, v{b+3}
            buffer_store_dwordx2 v[{b+8}:{b+9}], v{T+2}, s[16:19], s{50+j} offen
            v_lshlrev_b32 v{b}, 16, v{b+8}
            v_and_b32 v{b+1}, 0xffff0000, v{b+8}
            v_lshlrev_b32 v{b+2}, 16, v{b+9}
            v_and_b32 v{b+3}, 0xffff0000, v{b+9}
            """)
        a.I(f"""
        s_cmp_ge_u32 s24, 2
        s_cselect_b32 s33, 0, 1.0
        s_mov_b32 s34, {f32(1/80):#x}
        s_cbranch_scc0 L_{name}_five
        s_mov_b32 s34, {f32(1/64):#x}
        v_mov_b32 v{R+64}, 0
        v_mov_b32 v{R+65}, 0
        v_mov_b32 v{R+66}, 0
        v_mov_b32 v{R+67}, 0
        """)
        a.label(f"L_{name}_five")
        vals = [R + j*16 + r for j in range(5) for r in range(4)]
        a.I(f"v_add_f32 v{T+4}, v{vals[0]}, v{vals[1]}")
        for v in vals[2:]: a.I(f"v_add_f32 v{T+4}, v{T+4}, v{v}")
        xlane(a, "v_add_f32", T+4)
        a.I(f"v_mul_f32 v{T+6}, s34, v{T+4}\nv_mul_f32 v{T+7}, s33, v{T+6}\nv_mov_b32 v{T+8}, 0")
        for e, v in enumerate(vals):
            a.I(f"v_sub_f32 v{v}, v{v}, v{T+6 + (1 if e >= 16 else 0)}\nv_fmac_f32 v{T+8}, v{v}, v{v}")
        xlane(a, "v_add_f32", T+8)
        srd(a, 12, 42, 2048*64, add_imm=WS_ST)
        a.I(f"""
        v_mov_b32 v{T+5}, v{T+8}
        s_lshl_b32 s33, s46, 10
        s_lshl_b32 s34, s32, 4
        s_add_u32 s33, s33, s34
        s_lshr_b32 s34, s24, 1
        s_lshl_b32 s34, s34, 3
        s_add_u32 s33, s33, s34
        v_lshlrev_b32 v{T}, 6, v0
        v_cmp_gt_u32 vcc, 16, v0
        v_mov_b32 v{T+1}, 0x7fff0000
        s_nop 0
        v_cndmask_b32 v{T}, v{T+1}, v{T}, vcc
        buffer_store_dwordx2 v[{T+4}:{T+5}], v{T}, s[12:15], s33 offen
        """)
    if which == 1:
        srd(a, 12, 42, SZ_ACT, add_imm=WS_XN)
        a.I(f"""
        s_mov_b32 s44, {f32(cq):#x}
        s_cmp_eq_u32 s32, 1
        s_cselect_b32 s45, s44, 1.0
        s_cselect_b32 s33, {WS_XQ - WS_XN:#x}, 0
        s_add_u32 s12, s12, s33
        s_addc_u32 s13, s13, 0
        s_mul_i32 s46, s31, {2*18*1024}
        s_lshl_b32 s33, s24, 10
        s_add_u32 s46, s46, s33
        s_cmp_ge_u32 s32, 2
        s_cbranch_scc1 L_{name}_done
        """)
        for qt in range(2):
            a.I(f"v_mul_f32 v{T+8}, s45, v{T+18+qt}")
            for i in range(5):
                b = V_X + ((i*2+qt)*4)*2; o = b
                for r in range(4):
                    a.I(f"v_mul_f32 v{b+2*r}, v{b+2*r}, v{T+8}\nv_mul_f32 v{b+2*r+1}, v{b+2*r+1}, v{T+8}\nv_cvt_pk_bf16_f32 v{o+r}, v{b+2*r}, v{b+2*r+1}")
                a.I(f"s_add_u32 s35, s46, {qt*18*1024 + i*4096}")
                if i == 4: a.I(f"s_cmp_ge_u32 s24, 2\ns_cselect_b32 s35, 0x7fff0000, s35")
                a.I(f"buffer_store_dwordx4 v[{o}:{o+3}], v{V_L16}, s[12:15], s35 offen")
    a.label(f"L_{name}_done")
    g_end(a, int(name[1]))
    a.label(f"L_{name}_exit")
    a.I("s_endpgm")
    return a.text(), kernel_desc(name, 224 + 72, 224)

def gen_k3():
    name = "k3_kernel"
    a = Asm(); kernel_begin(a, name); g_begin(a)
    V_PAT = 1; V_TR = 10; V_L16 = 11; T = 12
    V_MU = 28
    V_RS = 32
    V_ONE = 36
    V_TR2 = 40; V_TR3 = 41
    V_CS = 44
    V_ACC = 80
    V_E = 224
    A_A = 0; A_B = 72; NB = 8
    a.I(f"""
    s_cmp_ge_u32 s2, 256
    s_cbranch_scc1 L_{name}_exit
    s_load_dwordx2 s[36:37], s[0:1], {KA['w3']}
    s_load_dwordx2 s[42:43], s[0:1], {KA['ws']}
    v_lshrrev_b32 v1, 6, v0
    v_and_b32 v0, 63, v0
    s_and_b32 s33, s2, 7
    v_readfirstlane_b32 s24, v1
    s_lshr_b32 s34, s2, 3
    s_and_b32 s31, s33, 1
    s_lshl_b32 s31, s31, 2
    s_lshr_b32 s35, s34, 3
    s_add_u32 s31, s31, s35
    s_lshr_b32 s32, s33, 1
    s_lshl_b32 s32, s32, 3
    s_and_b32 s35, s34, 7
    s_add_u32 s32, s32, s35               ; fb 0..31
    s_mul_i32 s33, s32, 288
    s_lshl_b32 s46, s31, 4
    s_lshl_b32 s34, s24, 2
    s_add_u32 s46, s46, s34
    s_waitcnt lgkmcnt(0)
    """)
    srd(a, 4, 36, 0, add_lo=33)
    a.I(f"s_sub_u32 s6, {576*9216}, s33")
    srd(a, 8, 42, SZ_ACT, add_imm=WS_X1)
    srd(a, 12, 42, 2048*64, add_imm=WS_ST)
    srd(a, 16, 42, 0x1200000, add_imm=WS_H3)
    a.I(f"v_and_b32 v{T}, 15, v0\nv_lshlrev_b32 v{T}, 6, v{T}\ns_lshl_b32 s33, s46, 10")
    for qt in range(4):
        for j in range(4):
            a.vm_issue("ST"); a.I(f"buffer_load_dwordx4 {vr(V_ACC + (qt*4+j)*4, 4)}, v{T}, s[12:15], s33 offen offset:{qt*1024 + j*16}")
    lane_consts(a, 9216, V_PAT, V_TR, V_L16, T)
    a.I(f"v_add_u32 v{V_TR2}, {7*SLAB}, v{V_TR}\nv_add_u32 v{V_TR3}, {14*SLAB}, v{V_TR}")
    a.I(f"s_mul_i32 s25, s24, {32*9216}\ns_mul_i32 s30, s24, {SLAB}\ns_mul_i32 s26, s46, {18*1024}")
    def loadW(j):
        for x in dma_slab(a, V_PAT, 4, 25, 30, (j % 4) * 4 * SLAB, f"W{j}"): emit(a, x)
        a.I(f"s_add_u32 s25, s25, {128*9216}")
    def loadB(i):
        for qt in range(4):
            a.I(f"s_add_u32 s35, s26, {qt*18*1024 + i*1024}")
            a.vm_issue(f"B{i}"); a.I(f"buffer_load_dwordx4 {ar(A_B + ((i % NB)*4+qt)*4, 4)}, v{V_L16}, s[8:11], s35 offen")
    loadW(0); loadB(0); loadB(1); loadW(1); loadW(2); loadW(3)
    n = a.vm_wait({"ST"}); a.I(f"s_waitcnt vmcnt({n})")
    a.I(f"s_mov_b32 s50, {f32(1/576):#x}\ns_mov_b32 s51, {f32(1/80):#x}\ns_mov_b32 s52, {f32(1/64):#x}\ns_mov_b32 s53, {f32(80.0):#x}\ns_mov_b32 s54, {f32(64.0):#x}\ns_mov_b32 s55, {f32(EPS):#x}")
    for qt in range(4):
        b = V_ACC + qt*16
        a.I(f"v_add_f32 v{T}, v{b}, v{b+2}\nv_add_f32 v{T+1}, v{b+1}, v{b+3}")
        for p in range(2, 8): a.I(f"v_add_f32 v{T}, v{T}, v{b+2*p}\nv_add_f32 v{T+1}, v{T+1}, v{b+2*p+1}")
        a.I(f"v_mul_f32 v{T}, s50, v{T}")
        for p in range(8):
            a.I(f"v_fma_f32 v{T+2}, v{b+2*p}, s{51+(p&1)}, -v{T}\nv_mul_f32 v{T+3}, s{53+(p&1)}, v{T+2}\nv_fmac_f32 v{T+1}, v{T+3}, v{T+2}")
        a.I(f"v_mov_b32 v{T+2}, s55\nv_fmac_f32 v{T+2}, s50, v{T+1}\nv_rsq_f32 v{V_RS+qt}, v{T+2}\nv_sub_f32 v{V_MU+qt}, 0, v{T}")
    for i in range(2, NB): loadB(i)
    for r in range(4): a.I(f"v_mov_b32 v{V_ONE+r}, 0x3f803f80")
    for r in range(36): a.I(f"v_mov_b32 v{V_CS+r}, 0")
    def rds(i):
        s = i % 16; base = (V_TR, V_TR2, V_TR3)[s // 7]
        return a_reads(A_A + 36*(i % 2), base, (s % 7) * SLAB)
    n = a.vm_wait({"W0"}); a.I(f"s_waitcnt vmcnt({n})\ns_barrier"); g_mid(a, 0)
    for x in rds(0): a.I(x)
    for i in range(18):
        a.C(f"step {i}")
        if i % 4 == 3:
            b = (i + 1) // 4
            n = a.vm_wait({f"W{b}", f"B{i}"}); a.I(f"s_waitcnt vmcnt({n}) lgkmcnt(0)\ns_barrier")
            if i == 3: loadW(4)
        else:
            n = a.vm_wait({f"B{i}"}); a.I(f"s_waitcnt vmcnt({n}) lgkmcnt(0)")
        rd = rds(i + 1) if i + 1 < 18 else []
        k = 0
        for ft in range(9):
            for qt in range(4):
                d = vr(V_ACC + (qt*9+ft)*4, 4)
                a.I(mf(d, ar(A_A + 36*(i % 2) + ft*4, 4), ar(A_B + ((i % NB)*4+qt)*4, 4), d if i else "0"))
                if qt % 2 == 0 and k < len(rd) and ft < 9: a.I(rd[k]); k += 1
        assert k == len(rd)
        a.I(f"s_cmp_lg_u32 s24, {i % 4}\ns_cbranch_scc1 L_{name}_cs{i}")
        for ft in range(9):
            d = vr(V_CS + ft*4, 4)
            a.I(mf(d, ar(A_A + 36*(i % 2) + ft*4, 4), vr(V_ONE, 4), d))
        a.label(f"L_{name}_cs{i}")
        if i + NB < 18: loadB(i + NB)
    g_mid(a, 1)
    a.I(f"s_nop 7\ns_barrier\ns_mul_i32 s33, s24, 9216\nv_add_u32 v{T}, s33, v{V_L16}")
    for ft in range(9): a.I(f"ds_write_b128 v{T}, {vr(V_CS + ft*4, 4)} offset:{ft*1024}")
    a.I("s_waitcnt lgkmcnt(0)\ns_barrier")
    for ft in range(9):
        for w in range(4): a.I(f"ds_read_b128 {vr(V_E + w*4 + (ft % 2)*16, 4)}, v{V_L16} offset:{w*9216 + ft*1024}")
        a.I("s_waitcnt lgkmcnt(0)")
        e = V_E + (ft % 2)*16
        for h in (0, 2):
            a.I(f"v_pk_add_f32 v[{e+h}:{e+h+1}], v[{e+h}:{e+h+1}], v[{e+4+h}:{e+5+h}]")
            a.I(f"v_pk_add_f32 v[{e+8+h}:{e+9+h}], v[{e+8+h}:{e+9+h}], v[{e+12+h}:{e+13+h}]")
            a.I(f"v_pk_add_f32 v[{V_CS+ft*4+h}:{V_CS+ft*4+h+1}], v[{e+h}:{e+h+1}], v[{e+8+h}:{e+9+h}]")
    g_mid(a, 2)
    a.I(f"s_mov_b32 s50, {f32(C2):#x}\ns_mov_b32 s51, {f32(C2):#x}\nv_mov_b32 v{T+4}, {f32(C1):#x}\nv_mov_b32 v{T+5}, {f32(C1):#x}")
    a.I(f"s_mul_i32 s44, s32, 9\ns_mul_i32 s47, s46, {144*1024}")
    for ft in range(9):
        a.I(f"s_add_u32 s33, s44, {ft}\ns_lshr_b32 s{60+ft}, s33, 1\ns_lshl_b32 s{60+ft}, s{60+ft}, 10\ns_and_b32 s33, s33, 1\ns_lshl_b32 s33, s33, 3\ns_add_u32 s{60+ft}, s{60+ft}, s33\ns_add_u32 s{60+ft}, s{60+ft}, s47")
    for qt in range(4):
        a.I(f"v_mov_b32 v{T+6}, v{V_MU+qt}\nv_mov_b32 v{T+8}, v{V_RS+qt}")
        if qt: a.I(f"v_add_u32 v{V_L16}, {144*1024}, v{V_L16}")
        for ft in range(9):
            b = V_ACC + (qt*9+ft)*4; c = V_CS + ft*4; t = V_E + (ft % 8)*4
            for h in (0, 2):
                a.I(f"v_pk_fma_f32 v[{b+h}:{b+h+1}], v[{c+h}:{c+h+1}], v[{T+6}:{T+7}], v[{b+h}:{b+h+1}] op_sel_hi:[1,0,1]")
            for h in (0, 2):
                a.I(f"v_pk_mul_f32 v[{b+h}:{b+h+1}], v[{b+h}:{b+h+1}], v[{T+8}:{T+9}] op_sel_hi:[1,0]")
            gelu4(a, b, t, T + 4, 50)
            a.I(f"v_cvt_pk_bf16_f32 v{b}, v{b}, v{b+1}\nv_cvt_pk_bf16_f32 v{b+1}, v{b+2}, v{b+3}")
            a.I(f"buffer_store_dwordx2 v[{b}:{b+1}], v{V_L16}, s[16:19], s{60+ft} offen")
    a.label(f"L_{name}_done")
    g_end(a, int(name[1]))
    a.label(f"L_{name}_exit")
    a.I("s_endpgm")
    return a.text(), kernel_desc(name, 256 + 200, 256)

def gen_k5():
    name = "k5_kernel"
    a = Asm(); kernel_begin(a, name); g_begin(a)
    V_PAT = 1; V_TR = 10; V_L16 = 11; T = 12
    V_ACC = 32
    V_R = 176
    A_A = 0; A_B = 72
    a.I(f"""
    s_cmp_ge_u32 s2, 256
    s_cbranch_scc1 L_{name}_exit
    s_load_dwordx2 s[36:37], s[0:1], {KA['wo']}
    s_load_dwordx2 s[38:39], s[0:1], {KA['w4']}
    s_load_dwordx2 s[42:43], s[0:1], {KA['ws']}
    v_lshrrev_b32 v1, 6, v0
    v_and_b32 v0, 63, v0
    s_and_b32 s33, s2, 7
    v_readfirstlane_b32 s24, v1
    s_lshr_b32 s34, s2, 3
    s_lshr_b32 s29, s33, 2                ; gemm
    s_and_b32 s31, s33, 3
    s_lshl_b32 s31, s31, 3
    s_lshr_b32 s35, s34, 2
    s_add_u32 s31, s31, s35
    s_and_b32 s32, s34, 3                 ; nb
    s_mul_i32 s33, s32, 288
    s_mul_i32 s30, s24, {4*SLAB}
    s_waitcnt lgkmcnt(0)
    s_cmp_eq_u32 s29, 0
    s_cselect_b32 s36, s36, s38
    s_cselect_b32 s37, s37, s39
    s_cselect_b32 s34, {4096*1152:#x}, s34
    s_cselect_b32 s27, 7, 8
    s_cselect_b32 s28, {128*1024}, s28
    s_cselect_b32 s44, {WS_O:#x}, s44
    s_cselect_b32 s45, {0x1000000:#x}, s45
    s_cbranch_scc1 L_{name}_g0
    s_mov_b32 s34, {4608*1152:#x}
    s_mov_b32 s28, {144*1024}
    s_mov_b32 s44, {WS_H3:#x}
    s_mov_b32 s45, {0x1200000:#x}
    """)
    a.label(f"L_{name}_g0")
    srd(a, 4, 36, 0, add_lo=33)
    a.I("s_sub_u32 s6, s34, s33")
    srd(a, 8, 42, 0, add_lo=44)
    a.I("s_mov_b32 s10, s45")
    lane_consts(a, 1152, V_PAT, V_TR, V_L16, T)
    a.I(f"""
    v_add_u32 v{V_TR}, s30, v{V_TR}
    s_mul_i32 s25, s24, {32*1152}
    s_lshl_b32 s46, s31, 2
    s_mul_i32 s26, s46, s28
    s_lshl_b32 s33, s24, 10
    s_add_u32 s26, s26, s33
    v_add_u32 v{T+1}, s28, v{V_L16}
    v_add_u32 v{T+2}, s28, v{T+1}
    v_add_u32 v{T+3}, s28, v{T+2}
    v_mov_b32 v{T}, v{V_L16}
    """)
    def loadW(i):
        return dma_slab(a, V_PAT, 4, 25, 30, (i % 4) * SLAB, f"W{i}") + [f"s_add_u32 s25, s25, {128*1152}"]
    def loadB(i):
        return [("vm", f"B{i}", f"buffer_load_dwordx4 {ar(A_B + ((i % 4)*4+qt)*4, 4)}, v{T+qt}, s[8:11], s26 offen") for qt in range(4)] + ["s_add_u32 s26, s26, 4096"]
    for i in range(4):
        for x in loadW(i) + loadB(i): emit(a, x)
    for r in range(144): a.I(f"v_mov_b32 v{V_ACC+r}, 0")
    n = a.vm_wait({"W0"}); a.I(f"s_waitcnt vmcnt({n})"); g_mid(a, 0)
    for x in a_reads(A_A, V_TR, 0): a.I(x)
    def step(i, last_group, nsteps_left):
        a.C(f"step {i}")
        more = nsteps_left > 1
        n = a.vm_wait({f"W{i+1}", f"B{i}"} if more else {f"B{i}"})
        a.I(f"s_waitcnt vmcnt({n}) lgkmcnt(0)")
        rd = a_reads(A_A + 36*((i+1) % 2), V_TR, ((i+1) % 4) * SLAB) if more else []
        ld = [] if last_group else loadW(i + 4)
        k = 0; j = 0; g = 0
        for nt in range(9):
            for qt in range(4):
                d = vr(V_ACC + (qt*9+nt)*4, 4)
                a.I(mf(d, ar(A_A + 36*(i % 2) + nt*4, 4), ar(A_B + ((i % 4)*4+qt)*4, 4), d))
                if g % 2 == 0 and k < len(rd): a.I(rd[k]); k += 1
                if g % 2 == 1 and j < len(ld):
                    emit(a, ld[j]); j += 1
                    if j < len(ld) and not isinstance(ld[j-1], tuple): emit(a, ld[j]); j += 1
                g += 1
        assert k == len(rd) and j == len(ld), (k, j, len(ld))
        if not last_group:
            for x in loadB(i + 4): emit(a, x)
    a.raw(".p2align 6"); a.label(f"L_{name}_loop")
    vb = list(a.vm)
    for i in range(4): step(i, False, 99)
    sh = lambda t, d: t[0] + str(int(t[1:]) + d)
    assert [sh(t, 4) for t in vb] == a.vm, (vb, a.vm)
    a.I(f"s_sub_u32 s27, s27, 1\ns_cmp_lg_u32 s27, 0\ns_cbranch_scc1 L_{name}_loop")
    for i in range(4, 8): step(i, True, 8 - i)
    g_mid(a, 1)
    a.I(f"s_nop 7\ns_barrier\ns_mul_i32 s33, s24, {36*1024}\nv_add_u32 v{T+4}, s33, v{V_L16}")
    for t in range(36): a.I(f"ds_write_b128 v{T+4}, {vr(V_ACC + t*4, 4)} offset:{t*1024}")
    a.I(f"s_waitcnt lgkmcnt(0)\ns_barrier\ns_mul_i32 s33, s24, {9*1024}\nv_add_u32 v{T+4}, s33, v{V_L16}\nv_add_u32 v{T+5}, {2*36*1024}, v{T+4}")
    for nt in range(9):
        for w in range(4):
            a.I(f"ds_read_b128 {vr(V_ACC + (nt*4+w)*4, 4)}, v{T+4+(w>>1)} offset:{(w&1)*36*1024 + nt*1024}")
    a.I(f"""
    s_add_u32 s46, s46, s24
    s_mul_i32 s44, s32, 9
    s_mul_i32 s47, s46, 36
    s_add_u32 s47, s47, s44
    s_lshl_b32 s47, s47, 10
    s_cmp_eq_u32 s29, 0
    s_cbranch_scc1 L_{name}_e0
    """)
    srd(a, 12, 42, SZ_ACT, add_imm=WS_X1)
    a.I(f"s_mul_i32 s35, s46, {18*1024}\nv_add_u32 v{T+6}, s35, v{V_L16}")
    for nt in range(9):
        a.I(f"s_add_u32 s33, s44, {nt}\ns_lshr_b32 s35, s33, 1\ns_lshl_b32 s35, s35, 10\ns_and_b32 s33, s33, 1\ns_lshl_b32 s33, s33, 3\ns_add_u32 s35, s35, s33")
        a.I(f"buffer_load_dwordx2 v[{V_R+2*nt}:{V_R+2*nt+1}], v{T+6}, s[12:15], s35 offen")
    a.label(f"L_{name}_e0")
    a.I("s_waitcnt lgkmcnt(0)")
    for nt in range(9):
        b = V_ACC + nt*16
        for h in (0, 2):
            a.I(f"v_pk_add_f32 v[{b+h}:{b+h+1}], v[{b+h}:{b+h+1}], v[{b+4+h}:{b+5+h}]")
            a.I(f"v_pk_add_f32 v[{b+8+h}:{b+9+h}], v[{b+8+h}:{b+9+h}], v[{b+12+h}:{b+13+h}]")
            a.I(f"v_pk_add_f32 v[{b+h}:{b+h+1}], v[{b+h}:{b+h+1}], v[{b+8+h}:{b+9+h}]")
    srd(a, 12, 42, 0x480000, add_imm=WS_S32)
    a.I(f"s_cmp_eq_u32 s29, 0\ns_cbranch_scc1 L_{name}_st")
    srd(a, 12, 42, 0x480000, add_imm=WS_G32)
    a.I(f"s_mov_b32 s50, {f32(-1.4426950408889634):#x}\ns_waitcnt vmcnt(0)")
    for nt in range(9):
        b = V_ACC + nt*16; s = V_R + 2*nt
        a.I(f"""
        v_lshlrev_b32 v{b+4}, 16, v{s}
        v_and_b32 v{b+5}, 0xffff0000, v{s}
        v_lshlrev_b32 v{b+6}, 16, v{s+1}
        v_and_b32 v{b+7}, 0xffff0000, v{s+1}
        v_pk_add_f32 v[{b}:{b+1}], v[{b}:{b+1}], v[{b+4}:{b+5}]
        v_pk_add_f32 v[{b+2}:{b+3}], v[{b+2}:{b+3}], v[{b+6}:{b+7}]
        """)
        for r in range(4): a.I(f"v_mul_f32 v{b+4+r}, s50, v{b+r}")
        for r in range(4): a.I(f"v_exp_f32 v{b+4+r}, v{b+4+r}")
        a.I("s_nop 0")
        for r in range(4): a.I(f"v_add_f32 v{b+4+r}, 1.0, v{b+4+r}")
        for r in range(4): a.I(f"v_rcp_f32 v{b+4+r}, v{b+4+r}")
        a.I("s_nop 0")
        for r in range(4): a.I(f"v_mul_f32 v{b+r}, v{b+r}, v{b+4+r}")
    a.label(f"L_{name}_st")
    for nt in range(9):
        a.I(f"buffer_store_dwordx4 {vr(V_ACC + nt*16, 4)}, v{V_L16}, s[12:15], s47 offen offset:{(nt%4)*1024}")
        if nt % 4 == 3: a.I("s_add_u32 s47, s47, 4096")
    a.label(f"L_{name}_done")
    g_end(a, int(name[1]))
    a.label(f"L_{name}_exit")
    a.I("s_endpgm")
    return a.text(), kernel_desc(name, 200 + 136, 200)

def gen_k6():
    name = "k6_kernel"
    a = Asm(); kernel_begin(a, name); g_begin(a)
    a.I(f"""
    s_cmp_ge_u32 s2, 1152
    s_cbranch_scc1 L_{name}_exit
    s_load_dwordx2 s[36:37], s[0:1], {KA['x']}
    s_load_dwordx2 s[38:39], s[0:1], {KA['out']}
    s_load_dwordx2 s[42:43], s[0:1], {KA['ws']}
    v_lshrrev_b32 v1, 6, v0
    v_lshlrev_b32 v2, 4, v0
    v_readfirstlane_b32 s24, v1
    v_and_b32 v0, 63, v0
    s_lshl_b32 s25, s2, 2
    s_add_u32 s25, s25, s24               ; tile
    s_mov_b32 s26, {(1<<32)//36 + 1}
    s_mul_hi_u32 s27, s25, s26            ; q tile
    s_mul_i32 s28, s27, 36
    s_sub_u32 s28, s25, s28               ; n tile
    s_mul_i32 s27, s27, {16*1152}
    s_lshl_b32 s28, s28, 5
    s_add_u32 s27, s27, s28
    s_lshl_b32 s29, s2, 12
    v_and_b32 v3, 15, v0
    v_mul_u32_u24 v3, 1152, v3
    v_lshrrev_b32 v4, 4, v0
    v_lshl_add_u32 v3, v4, 3, v3
    s_waitcnt lgkmcnt(0)
    """)
    srd(a, 4, 36, SZ_ACT); srd(a, 8, 38, SZ_ACT)
    srd(a, 12, 42, 0x480000, add_imm=WS_S32); srd(a, 16, 42, 0x480000, add_imm=WS_G32)
    a.I("""
    buffer_load_dwordx2 v[4:5], v3, s[4:7], s27 offen
    buffer_load_dwordx4 v[8:11], v2, s[12:15], s29 offen
    buffer_load_dwordx4 v[12:15], v2, s[16:19], s29 offen
    s_waitcnt vmcnt(0)
    v_lshlrev_b32 v16, 16, v4
    v_and_b32 v17, 0xffff0000, v4
    v_lshlrev_b32 v18, 16, v5
    v_and_b32 v19, 0xffff0000, v5
    v_fmac_f32 v16, v8, v12
    v_fmac_f32 v17, v9, v13
    v_fmac_f32 v18, v10, v14
    v_fmac_f32 v19, v11, v15
    v_cvt_pk_bf16_f32 v4, v16, v17
    v_cvt_pk_bf16_f32 v5, v18, v19
    buffer_store_dwordx2 v[4:5], v3, s[8:11], s27 offen
    """)
    a.label(f"L_{name}_done")
    g_end(a, int(name[1]))
    a.label(f"L_{name}_exit")
    a.I("s_endpgm")
    return a.text(), kernel_desc(name, 24, 24, sgpr=102 if GSTAMP[0] else 48)
```

```python
import sys; sys.path.insert(0, "dev")
from gen_common import *
from gen_gemm import f32, mf, SLAB, EPS, C1, C2, xlane, gelu4, emit
import gen_attn16 as AT

WS_ST1 = 0x0950000
WS_PK  = 0x4000000
PK_WO  = 4 * 144 * SLAB
WS_PART = 0x5000000
WS_CX  = 0x7800000
CQ = 1.4426950408889634 / 128 ** 0.5
NAME = "recurrent_scan__mha_block_cached__mixer_s_mlp__prompt_kernel"
P = dict(x=64, k=66, v=68, wq=70, wo=72, w1=76, w2=78, w3=80, w4=82, out=84, dbg=86, ws=88)
PAT = 1; PFD = 10; L16 = 11; T = 12; ST1 = 28
KD = 32; VD = 36; WD = 38; WA = 40; XA = 48; TRA = 49; TRB = 50; TRC = 51; PATB = 52; PCNT = 61; XD = 63
OOB = 0x7fff0000
PTS = []
OPT = dict(pace=72, pace5=64)
def pt(a, name):
    if name in PTS: g_mid(a, PTS.index(name))

def pat_regs(a, dst, pitch):
    a.I(f"s_mov_b32 s90, {(1<<32)//18 + 1}\ns_mov_b32 s91, {pitch}")
    for p in range(9):
        a.I(f"""
        v_add_u32 v{T}, {p*64}, v0
        v_mul_hi_u32 v{T+1}, v{T}, s90
        v_mul_u32_u24 v{T+2}, 18, v{T+1}
        v_sub_u32 v{T+2}, v{T}, v{T+2}
        v_mul_lo_u32 v{T+1}, v{T+1}, s91
        v_lshl_add_u32 v{dst+p}, v{T+2}, 4, v{T+1}
        """)
        if p % 4: a.I(f"v_subrev_u32 v{dst+p}, {(p%4)*1024}, v{dst+p}")

def dma_slab(pat, srdW, s_soff, goff, m0expr, tag):
    r = []
    for p in range(9):
        r.append(m0expr((p // 4) * 4096))
        r.append(f"s_add_u32 s3, s{s_soff}, {goff + (0 if pat is not None else (p // 4) * 4096)}")
        r.append(("vm", tag, f"buffer_load_dwordx4 v{pat+p if pat is not None else L16}, s[{srdW}:{srdW+3}], s3 offen offset:{(p%4)*1024} lds"))
    return r

def a_reads(dst, off):
    base = off // 64512; o = off - base * 64512
    assert o + 16*288 + 256 < 65536, off
    return [f"ds_read_b64_tr_b16 {ar(dst + nt*4 + 2*m, 2)}, v{TRA+base} offset:{o + m*16*288 + nt*32}" for nt in range(9) for m in range(2)]

_lbl = [0]
def signal(a, inc, srd_=56):
    _lbl[0] += 1; l = f"L_sig{_lbl[0]}"
    au = a.auto; a.auto = False
    a.I(f"""
    s_cmp_lg_u32 s24, 0
    s_cbranch_scc1 {l}
    v_mov_b32 v{T}, 0
    v_mov_b32 v{T+1}, {inc:#x}
    s_mov_b64 exec, 1
    buffer_atomic_add v{T+1}, v{T}, s[{srd_}:{srd_+3}], s33 offen
    s_mov_b64 exec, -1
    """)
    a.label(l); a.auto = au

def poll_issue(a, tag, mask_code, srd_=56, soff="0", front=True):
    au = a.auto; a.auto = False
    a.I(mask_code)
    a.I(f"""
    s_mov_b64 s[42:43], vcc
    s_cmp_eq_u32 s24, 0
    s_cselect_b64 vcc, s[42:43], 0
    v_mov_b32 v{T}, {OOB:#x}
    v_lshlrev_b32 v{T+1}, 2, v0
    v_cndmask_b32 v{PCNT+1}, v{T}, v{T+1}, vcc
    """)
    a.auto = au
    a.bg_add([("vm", tag, f"buffer_load_dword v{PCNT}, v{PCNT+1}, s[{srd_}:{srd_+3}], {soff} offen sc1")], front=front)

def poll_check(a, tag, shift, want, srd_=56, soff="0"):
    _lbl[0] += 1; l = f"L_poll{_lbl[0]}"
    n = a.vm_wait({tag})
    au = a.auto; a.auto = False
    a.I(f"s_cmp_lg_u32 s24, 0\ns_cbranch_scc1 {l}_ok\ns_waitcnt vmcnt({n})\ns_mov_b32 s35, 400000")
    a.label(l)
    a.I(f"""
    v_bfe_u32 v{T}, v{PCNT}, {shift}, 8
    v_cmp_gt_u32 vcc, {want}, v{T}
    s_nop 1
    s_and_b64 vcc, vcc, s[42:43]
    s_cmp_eq_u64 vcc, 0
    s_cbranch_scc1 {l}_ok
    s_sleep 2
    buffer_load_dword v{PCNT}, v{PCNT+1}, s[{srd_}:{srd_+3}], {soff} offen sc1
    s_waitcnt vmcnt(0)
    s_sub_u32 s35, s35, 1
    s_cmp_lg_u32 s35, 0
    s_cbranch_scc1 {l}
    """)
    a.label(l + "_ok"); a.auto = au

def touch(a, srd_, soff, n, addr=None):
    if not OPT.get("pf", 1): return
    au = a.auto; a.auto = False
    if addr is None:
        a.I(f"v_lshlrev_b32 v{T+9}, 7, v0"); addr = T + 9
    for i in range(n):
        if i: a.I(f"s_add_u32 s{soff}, s{soff}, 8192")
        a.vm_issue("PF"); a.I(f"buffer_load_dword v{PFD}, v{addr}, s[{srd_}:{srd_+3}], s{soff} offen")
    a.auto = au


def gen():
    a = Asm(); kernel_begin(a, NAME); g_begin(a)
    a.pace = OPT["pace"]
    NT = "nt" if OPT.get("nt", 1) else ""
    def resrd(d, *args, **kw):
        for g in a.bg:
            for x in g:
                assert f"s[{d}:{d+3}]" not in (x[2] if isinstance(x, tuple) else x), ("pending bg item uses SRD", d, x)
        srd(a, d, *args, **kw)
    def W(tags, extra=""):
        n = a.vm_wait(set(tags)); a.I(f"s_waitcnt vmcnt({n}){extra}")
    def noauto(f):
        au = a.auto; a.auto = False; f(); a.auto = au
    a.I(f"""
    s_cmp_ge_u32 s2, 256
    s_cbranch_scc1 L_exit
    s_load_dwordx16 s[64:79], s[0:1], 0
    s_load_dwordx8 s[80:87], s[0:1], 64
    s_load_dwordx2 s[88:89], s[0:1], 96
    s_getpc_b64 s[12:13]
    """)
    a.label("L_pc0")
    a.I(f"""
    s_sub_u32 s12, s12, L_pc0-{NAME}
    s_subb_u32 s13, s13, 0
    s_mov_b32 s14, L_code_end-{NAME}
    s_mov_b32 s15, 0x00020000
    s_lshr_b32 s34, s2, 3
    s_lshl_b32 s33, s34, 12
    v_lshlrev_b32 v2, 4, v0
    buffer_load_dwordx4 v[252:255], v2, s[12:15], s33 offen
    v_lshrrev_b32 v1, 6, v0
    v_and_b32 v0, 63, v0
    s_and_b32 s33, s2, 7
    v_readfirstlane_b32 s24, v1
    s_lshl_b32 s48, s33, 3
    s_lshr_b32 s35, s34, 2
    s_add_u32 s48, s48, s35               ; qb32
    v_lshrrev_b32 v{T}, 3, v0
    v_mul_u32_u24 v{T+2}, 1152, v{T}
    v_and_b32 v{T+1}, 7, v0
    v_lshl_add_u32 v{XA}, v{T+1}, 4, v{T+2}
    s_lshl_b32 s26, s48, 2
    s_add_u32 s26, s26, s24
    s_mul_i32 s26, s26, {8*1152}
    s_mov_b32 s10, {SZ_ACT:#x}
    s_mov_b32 s11, 0x00020000
    s_waitcnt lgkmcnt(0)
    s_mov_b32 s8, s{P['x']}
    s_mov_b32 s9, s{P['x']+1}
    """)
    a.vm_issue("PF"); pt(a, 'ka')
    V_B = 64; V_X = 128; ACC1 = 96; AA1 = 168; RAW = 208
    for j in range(9):
        a.vm_issue("B"); a.I(f"buffer_load_dwordx4 {vr(RAW + j*4, 4)}, v{XA}, s[8:11], s26 offen offset:{j*128}")
    a.I(f"""
    s_lshl_b32 s0, s34, 2
    s_add_u32 s0, s0, s24
    s_mul_i32 s35, s0, 5184
    """)
    pt(a, 'xi')
    srd(a, 16, P['w1'], 576*1152)
    touch(a, 16, 35, 1); pt(a, 'tw1')
    a.I(f"""
    s_lshl_b32 s31, s33, 2
    s_lshr_b32 s35, s34, 3
    s_add_u32 s31, s31, s35               ; head
    s_and_b32 s32, s34, 7                 ; Q (attention)
    s_and_b32 s49, s34, 3                 ; nb
    s_and_b32 s50, s33, 1
    s_lshl_b32 s50, s50, 2
    s_add_u32 s50, s50, s35               ; Q4
    s_lshr_b32 s51, s33, 1
    s_lshl_b32 s51, s51, 3
    s_add_u32 s51, s51, s32               ; fb
    s_lshr_b32 s52, s33, 2
    s_lshl_b32 s52, s52, 3
    s_lshr_b32 s35, s34, 2
    s_add_u32 s52, s52, s35
    s_and_b32 s54, s33, 3                 ; kq
    s_mul_i32 s30, s24, {SLAB}
    s_lshl_b32 s55, s24, 12
    s_mul_i32 s33, s49, 288
    s_cmp_ge_u32 s24, 2
    s_cselect_b32 s34, 5, 0
    s_mul_i32 s60, s49, 9
    s_add_u32 s60, s60, s34               ; ntg0
    s_and_b32 s61, s24, 1                 ; qt
    s_mul_i32 s53, s61, 9
    s_add_u32 s53, s53, s34
    s_lshl_b32 s53, s53, 10
    s_lshl_b32 s62, s48, 1
    s_add_u32 s62, s62, s61
    """)
    srd(a, 4, P['w1'], 0, add_lo=33)
    a.I(f"s_sub_u32 s6, {576*1152}, s33")
    pat_regs(a, PAT, 1152)
    a.I(f"v_lshlrev_b32 v{L16}, 4, v0\ns_mul_i32 s25, s24, {32*1152}")
    def slot13(j): return (j % 4) * 4 * SLAB
    def loadW13(j, tagp):
        return dma_slab(PAT, 4, 25, j*128*1152, lambda o: f"s_add_u32 m0, s30, {slot13(j) + o}", f"{tagp}{j}")
    pt(a, 'w0a')
    for x in loadW13(0, "W"): emit(a, x)
    pt(a, 'w1b')
    a.bg_add(loadW13(1, "W") + loadW13(2, "W"))
    srd(a, 56, P['dbg'], 256)
    srd(a, 12, P['ws'], 0x10000, add_imm=WS_CX)
    XIMG = 3*4*SLAB; XQL = 16*SLAB
    XW = T + 12; XR = T + 13; XQW = T + 14
    a.I(f"""
    v_lshrrev_b32 v{T}, 4, v0
    v_bfe_u32 v{T+1}, v0, 2, 2
    v_lshl_add_u32 v{T}, v{T}, 3, v{T+1}
    v_mul_u32_u24 v{T}, 288, v{T}
    v_and_b32 v{T+1}, 3, v0
    v_lshl_add_u32 v{TRA}, v{T+1}, 3, v{T}
    v_lshlrev_b32 v{PCNT+1}, 2, v0
    v_add_u32 v{TRA}, s30, v{TRA}
    v_add_u32 v{TRB}, 64512, v{TRA}
    s_lshl_b32 s33, s52, 2
    s_add_u32 s33, s33, s49
    s_lshl_b32 s33, s33, 8
    s_or_b32 s34, s24, s54
    s_cmp_eq_u32 s34, 0
    s_cselect_b32 s33, s33, {OOB:#x}
    v_mov_b32 v{T}, 0
    """)
    a.vm_issue("CLR"); a.I(f"buffer_store_dword v{T}, v{PCNT+1}, s[12:15], s33 offen sc1")
    a.I(f"""
    v_and_b32 v{T}, 15, v0
    v_mul_u32_u24 v{T}, 1152, v{T}
    v_lshrrev_b32 v{T+1}, 4, v0
    v_lshl_add_u32 v{XD}, v{T+1}, 3, v{T}
    s_lshl_b32 s33, s24, 3
    v_lshrrev_b32 v{T}, 3, v0
    v_add_u32 v{T}, s33, v{T}
    v_bfe_u32 v{T+1}, v{T}, 1, 3
    v_and_b32 v{T+2}, 7, v0
    v_xor_b32 v{T+1}, v{T+1}, v{T+2}
    v_mul_u32_u24 v{T+3}, 1152, v{T}
    v_lshl_add_u32 v{XW}, v{T+1}, 4, v{T+3}
    v_add_u32 v{XW}, {XIMG}, v{XW}
    v_and_b32 v{T}, 15, v{T}
    v_and_b32 v{T+1}, 3, v0
    v_lshl_add_u32 v{T}, v{T+1}, 4, v{T}
    v_lshlrev_b32 v{T}, 4, v{T}
    s_lshr_b32 s33, s24, 1
    s_mul_i32 s33, s33, 5120
    s_add_u32 s33, s33, {XQL}
    v_add_u32 v{XQW}, s33, v{T}
    v_and_b32 v{T}, 15, v0
    v_lshrrev_b32 v{T+1}, 4, v0
    s_lshl_b32 s33, s61, 2
    v_add_u32 v{T+1}, s33, v{T+1}
    v_lshrrev_b32 v{T+2}, 1, v{T}
    v_xor_b32 v{T+1}, v{T+1}, v{T+2}
    v_mul_u32_u24 v{T}, 1152, v{T}
    v_lshl_add_u32 v{XR}, v{T+1}, 4, v{T}
    s_lshr_b32 s33, s24, 1
    s_lshl_b32 s33, s33, 7
    s_add_u32 s33, s33, {XIMG}
    v_add_u32 v{XR}, s33, v{XR}
    v_lshrrev_b32 v{T}, 4, v0
    v_and_b32 v{T+1}, 15, v0
    v_xor_b32 v{T+2}, v{T+1}, v{T}
    v_lshlrev_b32 v{T+2}, 4, v{T+2}
    v_lshl_add_u32 v{KD}, v{T}, 8, v{T+2}
    v_xor_b32 v{KD+1}, 64, v{KD}
    v_xor_b32 v{KD+2}, 0x80, v{KD}
    v_xor_b32 v{KD+3}, 0xc0, v{KD}
    v_lshlrev_b32 v{T+2}, 1, v{T}
    v_xor_b32 v{T+2}, v{T+1}, v{T+2}
    v_lshlrev_b32 v{T+2}, 4, v{T+2}
    v_lshl_add_u32 v{VD}, v{T}, 8, v{T+2}
    v_xor_b32 v{VD+1}, 0x80, v{VD}
    v_lshl_add_u32 v{WD}, v{T}, 13, v{T+2}
    v_xor_b32 v{WD+1}, 0x80, v{WD}
    v_bfe_u32 v{T+1}, v0, 2, 2
    v_lshl_add_u32 v{T+2}, v{T}, 3, v{T+1}
    v_and_b32 v{T}, 1, v{T}
    v_lshl_add_u32 v{T}, v{T}, 2, v{T+1}
    v_lshlrev_b32 v{T}, 1, v{T}
    v_and_b32 v{T+1}, 3, v0
    v_xor_b32 v{T}, v{T}, v{T+1}
    v_lshlrev_b32 v{T}, 4, v{T}
    v_lshl_add_u32 v{WA}, v{T+2}, 8, v{T}
    s_lshl_b32 s33, s32, 4
    s_lshl_b32 s34, s24, 2
    s_add_u32 s46, s33, s34
    s_mul_i32 s27, s46, {18*1024}
    s_add_u32 s28, s27, {18*1024}
    s_add_u32 s29, s27, {36*1024}
    s_add_u32 s45, s27, {54*1024}
    s_lshl_b32 s34, s31, 8
    s_lshl_b32 s44, s24, 17
    """)
    srd(a, 12, P['wq'], 0, add_lo=34)
    a.I("s_sub_u32 s14, 0x480000, s34")
    srd(a, 20, P['ws'], SZ_ACT, add_imm=WS_XQ)
    for t in range(1, 4): a.I(f"v_xor_b32 v{WA+t}, {t*64}, v{WA}")
    for t in range(4): a.I(f"v_add_u32 v{WA+4+t}, 0x10000, v{WA+t}")
    XS = [27, 28, 29, 45]
    TBL = [74, 75, 1]
    a.I("s_and_b32 s33, s31, 3\ns_lshl_b32 s33, s33, 1\ns_add_u32 s33, s33, s32\ns_mov_b32 s74, 0\ns_mov_b32 s75, 0\ns_mov_b32 s1, 0")
    if not OPT.get("rot", 1): a.I("s_mov_b32 s33, 0")
    for c in range(9):
        a.I(f"s_add_u32 s34, s33, {c}\ns_sub_u32 s35, s34, 9\ns_cmp_ge_u32 s34, 9\ns_cselect_b32 s34, s35, s34\ns_sub_u32 s35, s34, 9\ns_cmp_ge_u32 s34, 9\ns_cselect_b32 s34, s35, s34\ns_lshl_b32 s34, s34, {3 + 8*(c%4)}\ns_or_b32 s{TBL[c//4]}, s{TBL[c//4]}, s34")
    def cbfe(c): return f"s_bfe_u32 s3, s{TBL[c//4]}, {(8 << 16) | (8*(c%4)):#x}"
    def xset(c): s_ = c % 6; return 32 * s_ if s_ < 4 else 192 + 32*(s_-4)
    def ld_x(c):
        r = []
        for qt in range(4):
            for kl in range(2):
                r += [cbfe(c), "s_lshl_b32 s3, s3, 8", f"s_add_u32 s3, s3, s{XS[qt]}",
                      ("vm", f"X{c}", f"buffer_load_dwordx4 {ar(xset(c) + (kl*4+qt)*4, 4)}, v{L16}, s[20:23], s3 offen offset:{kl*1024}")]
        return r
    def wq_lds(c): return 16384*c if c < 5 else 98304 + 16384*(c-5)
    def dma_wq(c):
        r = []
        for i in range(4):
            r.append(f"s_add_u32 m0, s55, {wq_lds(c) + i*1024}")
            r += [cbfe(c), "s_lshl_b32 s3, s3, 16", "s_add_u32 s3, s3, s44", f"s_add_u32 s3, s3, {i*4*8192}"] if i else [cbfe(c), "s_lshl_b32 s3, s3, 16", "s_add_u32 s3, s3, s44"]
            r.append(("vm", f"Q{c}", f"buffer_load_dwordx4 v{WD+(i>>1)}, s[12:15], s3 offen lds"))
        return r
    def pf_wq():
        srd(a, 16, P['wq'], 0x480000)
        a.I(f"""
        s_mul_i32 s35, s0, 36
        v_min_u32 v{T}, 35, v0
        v_add_u32 v{T}, s35, v{T}
        v_lshrrev_b32 v{T+1}, 3, v{T}
        v_and_b32 v{T}, 7, v{T}
        v_lshlrev_b32 v{T}, 7, v{T}
        v_lshl_add_u32 v{T}, v{T+1}, 13, v{T}
        s_and_b32 s35, s2, 7
        s_lshl_b32 s35, s35, 10
        """)
        touch(a, 16, 35, 1, addr=T)
    if OPT.get('pfwq', 1): pf_wq()
    pt(a, 'xw'); W(["B"]); pt(a, 'xarr')
    a.auto = True
    for r in range(36): a.I(f"v_lshlrev_b32 v{V_X+2*r}, 16, v{RAW+r}\nv_and_b32 v{V_X+2*r+1}, 0xffff0000, v{RAW+r}")
    def red8(d):
        a.I(f"""v_add_f32 v{d}, v{d}, v{d+1}
        s_nop 1
        v_add_f32_dpp v{d}, v{d}, v{d} quad_perm:[1,0,3,2] row_mask:0xf bank_mask:0xf
        s_nop 1
        v_add_f32_dpp v{d}, v{d}, v{d} quad_perm:[2,3,0,1] row_mask:0xf bank_mask:0xf
        s_nop 1
        v_add_f32_dpp v{d}, v{d}, v{d} row_half_mirror row_mask:0xf bank_mask:0xf""")
    d = T + 4
    a.I(f"v_pk_add_f32 v[{d}:{d+1}], v[{V_X}:{V_X+1}], v[{V_X+2}:{V_X+3}]\nv_pk_add_f32 v[{d+2}:{d+3}], v[{V_X+4}:{V_X+5}], v[{V_X+6}:{V_X+7}]")
    for e in range(8, 72, 2): a.I(f"v_pk_add_f32 v[{d+(e&2)}:{d+(e&2)+1}], v[{d+(e&2)}:{d+(e&2)+1}], v[{V_X+e}:{V_X+e+1}]")
    a.I(f"v_pk_add_f32 v[{d}:{d+1}], v[{d}:{d+1}], v[{d+2}:{d+3}]")
    red8(d)
    a.I(f"s_mov_b32 s47, {f32(-1.0/576):#x}\nv_mul_f32 v{d}, s47, v{d}")
    for e in range(0, 72, 2): a.I(f"v_pk_add_f32 v[{V_X+e}:{V_X+e+1}], v[{V_X+e}:{V_X+e+1}], v[{d}:{d+1}] op_sel_hi:[1,0]")
    a.I(f"v_pk_mul_f32 v[{d}:{d+1}], v[{V_X}:{V_X+1}], v[{V_X}:{V_X+1}]\nv_pk_mul_f32 v[{d+2}:{d+3}], v[{V_X+2}:{V_X+3}], v[{V_X+2}:{V_X+3}]")
    for e in range(4, 72, 2): a.I(f"v_pk_fma_f32 v[{d+(e&2)}:{d+(e&2)+1}], v[{V_X+e}:{V_X+e+1}], v[{V_X+e}:{V_X+e+1}], v[{d+(e&2)}:{d+(e&2)+1}]")
    a.I(f"v_pk_add_f32 v[{d}:{d+1}], v[{d}:{d+1}], v[{d+2}:{d+3}]")
    red8(d)
    a.I(f"""
    s_mov_b32 s34, {f32(EPS):#x}
    s_mov_b32 s47, {f32(1.0/576):#x}
    s_mov_b32 s33, {f32(CQ):#x}
    v_mul_f32 v{d}, s47, v{d}
    v_add_f32 v{d+2}, s34, v{d}
    v_fma_f32 v{d+3}, v{d+2}, s34, v{d}
    v_rsq_f32 v{d+2}, v{d+2}
    v_rsq_f32 v{d}, v{d+3}
    s_nop 0
    v_mul_f32 v{d+2}, s33, v{d+2}
    """)
    a.auto = False
    a.I(f"""
    s_mov_b32 s34, 0x0f0f0f0f
    s_bitcmp1_b32 s49, 0
    s_cselect_b32 s34, 0xf0f0f0f0, s34
    s_mov_b32 s35, s34
    s_bitcmp1_b32 s49, 1
    s_cbranch_scc1 L_xq_odd
    """)
    for par in range(2):
        if par: a.label("L_xq_odd")
        for j in range(par, 9, 2):
            b = V_X + j*8; o = RAW + (j >> 1)*4; t = V_B
            for r in range(4): a.I(f"v_pk_mul_f32 v[{t+2*r}:{t+2*r+1}], v[{b+2*r}:{b+2*r+1}], v[{d+2}:{d+3}] op_sel_hi:[1,0]")
            for r in range(4): a.I(f"v_cvt_pk_bf16_f32 v{o+r}, v{t+2*r}, v{t+2*r+1}")
        a.I("s_mov_b64 exec, s[34:35]")
        for j in range(par, 9, 2): a.I(f"ds_write_b128 v{XQW}, {vr(RAW + (j >> 1)*4, 4)} offset:{(j >> 1)*1024}")
        a.I("s_mov_b64 exec, -1")
        if par == 0: a.I("s_branch L_xq_done")
    a.label("L_xq_done"); a.auto = True
    for j in range(9):
        b = V_X + j*8
        for r in range(4): a.I(f"v_pk_mul_f32 v[{b+2*r}:{b+2*r+1}], v[{b+2*r}:{b+2*r+1}], v[{d}:{d+1}] op_sel_hi:[1,0]")
        for r in range(4): a.I(f"v_cvt_pk_bf16_f32 v{b+r}, v{b+2*r}, v{b+2*r+1}")
        a.I(f"ds_write_b128 v{XW}, {vr(b, 4)} offset:{j*128}")
    W(["W0"], " lgkmcnt(0)"); a.I("s_barrier")
    a.I(f"s_lshl_b32 s33, s24, 10\ns_add_u32 s33, s33, {XQL}\nv_add_u32 v{T}, s33, v{L16}")
    for k_ in range(3): a.I(f"ds_read_b128 {vr(RAW + k_*4, 4)}, v{T} offset:{k_*4096}")
    for i in range(5):
        for qt in range(2): a.I(f"ds_read_b128 {vr(V_B + (i*2+qt)*4, 4)}, v{XR} offset:{qt*18432 + i*256}")
    a.auto = False
    a.I("s_waitcnt lgkmcnt(10)")
    for k_ in range(3):
        a.I(f"""
        s_add_u32 s33, s24, {4*k_}
        s_cmp_ge_u32 s33, 5
        s_cselect_b32 s34, 1, 0
        s_mul_i32 s35, s34, 5
        s_sub_u32 s35, s33, s35
        s_lshl_b32 s35, s35, 2
        s_add_u32 s35, s35, s49               ; ks
        s_lshl_b32 s47, s48, 1
        s_add_u32 s34, s34, s47
        s_mul_i32 s34, s34, 18
        s_add_u32 s34, s34, s35
        s_lshl_b32 s34, s34, 10
        s_cmp_ge_u32 s35, 18
        s_cselect_b32 s34, {OOB:#x}, s34
        s_cmp_ge_u32 s33, 10
        s_cselect_b32 s34, {OOB:#x}, s34
        """)
        a.vm_issue("XQ"); a.I(f"buffer_store_dwordx4 {vr(RAW + k_*4, 4)}, v{L16}, s[20:23], s34 offen sc1")
    def nat_reads(dst, off):
        base = off // 64512; o = off - base * 64512
        return [f"ds_read_b64_tr_b16 {ar(dst + nt*4 + 2*m, 2)}, v{TRA+base} offset:{o + m*4*288 + nt*32}" for nt in range(9) for m in range(2)]
    for x in nat_reads(AA1, 0): a.I(x)
    a.I(f"s_waitcnt lgkmcnt(0)\ns_barrier\ns_cmp_lt_u32 s24, 2\ns_cbranch_scc1 L_b4ok")
    for r in range(8): a.I(f"v_mov_b32 v{V_B+32+r}, 0")
    a.label("L_b4ok"); a.auto = True
    a.bg_add(loadW13(3, "W") + loadW13(4, "W"), front=True)
    pt(a, 'ln')
    RED = 90112
    def small_gemm_steps(tagp, accr, AA, bfrag, late_w4, a_reads=a_reads, last_need=()):
        if late_w4:
            W([f"{tagp}0"])
            for x in a_reads(AA, 0): a.I(x)
        for i in range(5):
            W([f"{tagp}{min(i+1, 4)}", f"B{i}"], " lgkmcnt(0)")
            if late_w4 and i == 0: a.bg_add(loadW13(4, tagp), front=True)
            rd = a_reads(AA + 36*((i+1) % 2), slot13(i+1)) if i < 4 else []
            k = 0
            for nt in range(9):
                for qt in range(2):
                    d = accr(qt*9+nt)
                    a.I(mf(d, ar(AA + 36*(i % 2) + nt*4, 4), bfrag(i, qt), d if i else "0"))
                    if k < len(rd): a.I(rd[k]); k += 1
        if last_need: W(last_need)
        a.I(f"s_nop 7\ns_barrier\ns_mul_i32 s33, s24, {18*1024}\ns_add_u32 s33, s33, {RED}\nv_add_u32 v{T}, s33, v{L16}")
    def acc_to_lds(accr):
        for t in range(18): a.I(f"ds_write_b128 v{T}, {accr(t)} offset:{t*1024}")
    RES = 64; BUF = 84; XL = 116; S1V = 64
    def reduce_tiles():
        a.I(f"s_waitcnt lgkmcnt(0)\ns_barrier\ns_add_u32 s33, s53, {RED}\nv_add_u32 v{T}, s33, v{L16}")
        def rd(j):
            for w in range(4): a.I(f"ds_read_b128 {vr(BUF + (j%2)*16 + w*4, 4)}, v{T} offset:{w*18*1024 + j*1024}")
        rd(0)
        for j in range(5):
            if j < 4: rd(j + 1)
            a.I(f"s_waitcnt lgkmcnt({4 if j < 4 else 0})")
            b = BUF + (j%2)*16
            for h in (0, 2):
                a.I(f"v_pk_add_f32 v[{b+h}:{b+h+1}], v[{b+h}:{b+h+1}], v[{b+4+h}:{b+5+h}]")
                a.I(f"v_pk_add_f32 v[{b+8+h}:{b+9+h}], v[{b+8+h}:{b+9+h}], v[{b+12+h}:{b+13+h}]")
                a.I(f"v_pk_add_f32 v[{RES+j*4+h}:{RES+j*4+h+1}], v[{b+h}:{b+h+1}], v[{b+8+h}:{b+9+h}]")
    def piece_off(j, dst):
        a.I(f"s_add_u32 s33, s60, {j}\ns_lshr_b32 s{dst}, s33, 1\ns_lshl_b32 s{dst}, s{dst}, 10\ns_and_b32 s33, s33, 1\ns_lshl_b32 s33, s33, 3\ns_add_u32 s{dst}, s{dst}, s33")
        if j == 4: a.I(f"s_cmp_ge_u32 s24, 2\ns_cselect_b32 s{dst}, {OOB:#x}, s{dst}")
    acc1 = lambda t: ar(ACC1 + t*4, 4)
    small_gemm_steps("W", acc1, AA1, lambda i, qt: vr(V_B + (i*2+qt)*4, 4), False, nat_reads, ["XQ", "CLR"]); pt(a, 't1m')
    acc_to_lds(acc1)
    a.I("s_lshr_b32 s33, s48, 3\ns_lshl_b32 s33, s33, 5\ns_add_u32 s33, s33, 4"); signal(a, 0x100)
    a.bg_add(dma_wq(0) + dma_wq(1) + dma_wq(2) + dma_wq(3) + dma_wq(4))
    a.I(f"""
    v_lshrrev_b32 v{T+2}, 2, v0
    v_mul_u32_u24 v{T+2}, 288, v{T+2}
    v_and_b32 v{T+3}, 3, v0
    v_lshl_add_u32 v{TRA}, v{T+3}, 3, v{T+2}
    v_add_u32 v{TRA}, s30, v{TRA}
    v_add_u32 v{TRB}, 64512, v{TRA}
    v_add_u32 v{TRC}, 129024, v{TRA}
    """)
    reduce_tiles()
    poll_issue(a, "P0", "s_lshl_b32 s33, s32, 3\ns_add_u32 s33, s33, 1\nv_cmp_eq_u32 vcc, s33, v0\ns_nop 1", front=False)
    a.I(f"s_mov_b32 s92, {f32(C2):#x}\ns_mov_b32 s93, {f32(C2):#x}\nv_mov_b32 v{T+4}, {f32(C1):#x}\nv_mov_b32 v{T+5}, {f32(C1):#x}")
    srd(a, 16, P['ws'], SZ_ACT, add_imm=WS_H)
    a.I(f"""
    s_cmp_eq_u32 s49, 0
    s_cselect_b32 s47, 1, -1
    s_cmp_eq_u32 s49, 2
    s_cselect_b32 s47, 2, s47
    s_cmp_eq_u32 s49, 3
    s_cselect_b32 s47, -2, s47
    s_lshl_b32 s33, s62, 4
    s_add_u32 s33, s33, s47
    v_and_b32 v{T}, 15, v0
    v_add_u32 v{T}, s33, v{T}
    v_cmp_gt_u32 vcc, 0x800, v{T}
    v_and_b32 v{T}, 0x7ff, v{T}
    v_lshrrev_b32 v{T+1}, 4, v{T}
    v_mul_u32_u24 v{T+1}, {18*1024}, v{T+1}
    v_and_b32 v{T}, 15, v{T}
    v_lshl_add_u32 v{T+1}, v{T}, 4, v{T+1}
    v_and_b32 v{T}, 0x30, v0
    v_lshl_add_u32 v{T+2}, v{T}, 4, v{T+1}
    """)
    for j in range(5):
        b = RES + j*4
        gelu4(a, b, BUF + (j%2)*4, T + 4, 92)
        a.I(f"v_cvt_pk_bf16_f32 v{b}, v{b}, v{b+1}\nv_cvt_pk_bf16_f32 v{b+1}, v{b+2}, v{b+3}")
        a.I(f"v_cndmask_b32 v{b}, 0, v{b}, vcc\nv_cndmask_b32 v{b+1}, 0, v{b+1}, vcc")
        piece_off(j, 35)
        a.vm_issue("H"); a.I(f"buffer_store_dwordx2 v[{b}:{b+1}], v{T+2}, s[16:19], s35 offen sc1")
    pt(a, 'c0a'); poll_check(a, "P0", 8, 32); a.I("s_barrier"); pt(a, 'c0b')
    a.bg_add(ld_x(0) + ld_x(1), front=True); a.bg_add(ld_x(2) + ld_x(3) + ld_x(4) + ld_x(5))
    pt(a, 't1')
    def abuf(y): return 128 + 32 * (y % 2)
    def w_reads(y):
        o = wq_lds(y >> 1) + (y & 1) * 8192
        base = WA + (4 if 65536 <= o < 131072 else 0); o %= 65536
        return [f"ds_read_b64_tr_b16 {ar(abuf(y) + (t*2+b)*4 + 2*m, 2)}, v{base+t} offset:{o + m*1024 + 8*b}" for t in range(4) for b in range(2) for m in range(2)]
    a.I("s_mul_i32 s33, s49, 288")
    resrd(4, P['w2'], 0, add_lo=33)
    a.I(f"""
    s_sub_u32 s6, {576*1152}, s33
    s_mul_i32 s26, s48, {2*18*1024}
    s_lshl_b32 s33, s24, 10
    s_add_u32 s26, s26, s33
    s_add_u32 s94, s26, {18*1024}
    s_add_u32 s95, s26, 16384
    s_add_u32 s47, s94, 16384
    s_cmp_ge_u32 s24, 2
    s_cselect_b32 s95, {OOB:#x}, s95
    s_cselect_b32 s47, {OOB:#x}, s47
    v_and_b32 v{T+14}, 15, v0
    v_lshlrev_b32 v{T+14}, 4, v{T+14}
    v_bfe_u32 v{T+15}, v0, 5, 1
    v_lshl_add_u32 v{T+14}, v{T+15}, 8, v{T+14}
    v_bfe_u32 v{T+15}, v0, 4, 1
    v_lshl_add_u32 v{T+14}, v{T+15}, 3, v{T+14}
    s_mul_i32 s63, s62, {18*1024}
    s_lshl_b32 s34, s60, 9
    s_add_u32 s63, s63, s34
    """)
    xl_items = [("vm", "XL", f"buffer_load_dwordx2 v[{XL+2*j}:{XL+2*j+1}], v{T+14}, s[20:23], s63 offen offset:{j*512}") for j in range(5)]
    def sig1():
        a.I("s_lshl_b32 s33, s48, 2"); signal(a, 1)
    def bT3(i): return 192 + i*8
    def pf_w2():
        a.I(f"s_mul_i32 s35, s0, 5184\ns_mul_i32 s33, s49, 288\ns_sub_u32 s56, s4, s33") if False else None
        srd(a, 56, P['w2'], 576*1152); a.I("s_mul_i32 s35, s0, 5184"); touch(a, 56, 35, 1); srd(a, 56, P['dbg'], 256)
    def pf_kv():
        a.I(f"s_lshl_b32 s33, s31, 19\ns_and_b32 s35, s0, 31\ns_lshl_b32 s35, s35, 11\ns_add_u32 s35, s35, s33\nv_and_b32 v{T}, 15, v0\nv_lshlrev_b32 v{T}, 7, v{T}")
        srd(a, 56, P['k'], 0x1000000); touch(a, 56, 35, 1, addr=T)
        srd(a, 56, P['v'], 0x1000000); touch(a, 56, 35, 1, addr=T); srd(a, 56, P['dbg'], 256)
    def iss1():
        poll_issue(a, "P1", f"v_subrev_u32 v{T+2}, s48, v0\nv_add_u32 v{T+2}, 1, v{T+2}\nv_and_b32 v{T+2}, 63, v{T+2}\nv_cmp_gt_u32 vcc, 3, v{T+2}\ns_nop 1")
    def chk1():
        pt(a, 'c1a'); poll_check(a, "P1", 0, 4); pt(a, 'c1b')
    def ldb3():
        it = []
        for i in range(5):
            for qt in range(2):
                it.append(f"s_add_u32 s3, s{(26, 94)[qt]}, {i*4096}" if i < 4 else f"s_mov_b32 s3, s{(95, 47)[qt]}")
                it.append(("vm", f"B{i}", f"buffer_load_dwordx4 {ar(bT3(i) + qt*4, 4)}, v{L16}, s[16:19], s3 offen"))
        a.bg_add(it + xl_items, front=True)
    def wa_hi():
        for t in range(4): a.I(f"v_add_u32 v{WA+t}, 0x20000, v{WA+t}")
    hooks = {(0, "pre"): [lambda: a.bg_add(dma_wq(5) + dma_wq(6) + dma_wq(7) + dma_wq(8))],
             (1, "post"): [lambda: a.bg_add(ld_x(6)), lambda: noauto(pf_w2)],
             (3, "need"): {"H"}, (3, "bar"): [sig1], (3, "post"): [lambda: a.bg_add(ld_x(7))],
             (5, "bar"): [lambda: a.bg_add(loadW13(0, "U"))], (5, "post"): [lambda: a.bg_add(ld_x(8), front=True)],
             (7, "bar"): [wa_hi], (7, "post"): [lambda: noauto(pf_kv)],
             (9, "bar"): [lambda: a.bg_add(loadW13(1, "U"))],
             (11, "bar"): [lambda: a.bg_add(loadW13(2, "U")), iss1],
             (12, "post"): [chk1], (13, "bar"): [ldb3],
             (15, "bar"): [lambda: a.bg_add(loadW13(3, "U"))]}
    if OPT.get("w2late"):
        hooks[(5, "bar")] = []; hooks[(9, "bar")] = []; hooks[(11, "bar")] = hooks[(11, "bar")][1:]; hooks[(15, "bar")] = []
        hooks[(17, "post")] = [lambda: a.bg_add(loadW13(0, "U") + loadW13(1, "U") + loadW13(2, "U") + loadW13(3, "U"))]
    if OPT.get("nox"):
        XS[:] = [27, 27, 27, 27]
    W(["Q0"]); a.I("s_barrier")
    for x in w_reads(0): a.I(x)
    for x in hooks[(0, "pre")]: x()
    for y in range(18):
        c = y >> 1
        a.C(f"qproj unit {y}"); pt(a, f"u{y}a")
        if y % 2 == 1 and y + 1 < 18:
            W({f"Q{c+1}", f"X{c}"} | hooks.get((y, "need"), set()), " lgkmcnt(0)"); a.I("s_barrier")
        else:
            W([f"X{c}"], " lgkmcnt(0)")
        for x in hooks.get((y, "bar"), []): x()
        rd = w_reads(y + 1) if y + 1 < 18 else []
        k = 0; g = 0
        for tb in range(8):
            for qt in range(4):
                d = vr(128 + (qt*8 + tb)*4, 4)
                a.I(mf(d, ar(abuf(y) + tb*4, 4), ar(xset(c) + ((y & 1)*4+qt)*4, 4), d if y else "0"))
                if g < 24 and g % 3 != 2 and k < len(rd): a.I(rd[k]); k += 1
                g += 1
        for x in hooks.get((y, "post"), []): x()
    pt(a, 'qp')
    QS = 160 * 1024 - 4096
    def cs_exchange(src, n, dst, bufs):
        a.I(f"""
        s_nop 7
        s_barrier
        v_lshrrev_b32 v{T+6}, 4, v0
        v_lshlrev_b32 v{T+6}, 4, v{T+6}
        v_add_u32 v{T+6}, {QS}, v{T+6}
        s_mul_i32 s33, s24, {n*64}
        v_add_u32 v{T+1}, s33, v{T+6}
        """)
        for t in range(n): a.I(f"ds_write_b128 v{T+1}, {src(t)} offset:{t*64}")
        a.I("s_waitcnt lgkmcnt(0)\ns_barrier")
    def cs_sum(n, dst, tmp):
        for w in range(4):
            for t in range(n): a.I(f"ds_read_b128 {vr((dst if w == 0 else tmp + (w-1)*n*4) + t*4, 4)}, v{T+6} offset:{w*n*64 + t*64}")
            if w: a.I("s_waitcnt lgkmcnt(0)") if w == 3 else None
        for t in range(n):
            for h in (0, 2):
                d = dst + t*4 + h; p = [tmp + w*n*4 + t*4 + h for w in range(3)]
                a.I(f"v_pk_add_f32 v[{d}:{d+1}], v[{d}:{d+1}], v[{p[0]}:{p[0]+1}]\nv_pk_add_f32 v[{p[1]}:{p[1]+1}], v[{p[1]}:{p[1]+1}], v[{p[2]}:{p[2]+1}]\nv_pk_add_f32 v[{d}:{d+1}], v[{d}:{d+1}], v[{p[1]}:{p[1]+1}]")
    a.I("s_nop 3")
    for qt in range(4):
        for t in range(4):
            b = 128 + (qt*8 + t*2)*4
            for i in range(4): a.I(f"v_cvt_pk_bf16_f32 v{b+i}, v{b+2*i}, v{b+2*i+1}")
            for i in range(4): a.I(f"v_accvgpr_write_b32 a{AT.A_Q + (qt*4+t)*4 + i}, v{b+i}")
    pt(a, 'qc')
    acc3 = lambda t: vr(128 + t*4, 4); AA3 = 0
    small_gemm_steps("U", acc3, AA3, lambda i, qt: ar(bT3(i) + qt*4, 4), True)
    pt(a, 't3m')
    assert not a.bg
    a.I("s_lshl_b32 s33, s31, 19\ns_mov_b32 s30, s55\ns_mov_b32 s25, s55\ns_mov_b32 s26, s55")
    srd(a, 4, P['k'], 524288, add_lo=33)
    srd(a, 8, P['v'], 524288, add_lo=33)
    AT.V_KD = KD; AT.V_VD = VD; AT.V_L16 = L16; AT.V_T = T
    AT.V_KA = 64; AT.V_VA = 68; AT.V_LS = 76; AT.V_M = 80; AT.V_NEGM = 96
    def selfc(d):
        r = []
        for x in d[1:5]: r += [d[0], "s_nop 0", x]
        return r + [d[5]]
    def kv(lst):
        it = []
        for kind, t in lst: it += selfc(AT.dma_k(a, t) if kind == "k" else AT.dma_v(a, t))
        return it
    a.bg_add(kv((("k", 0), ("k", 1), ("v", 0), ("k", 2))))
    acc_to_lds(acc3)
    reduce_tiles()
    srd(a, 16, P['ws'], SZ_ACT, add_imm=WS_X1)
    a.I(f"""
    s_mul_i32 s47, s62, {18*1024}
    v_add_u32 v{T+2}, s47, v{L16}
    v_mov_b32 v{T+6}, {f32(1.0/CQ):#x}
    """)
    for j in range(5):
        b = RES + j*4; s_ = XL + 2*j; e = BUF + (j%2)*8
        piece_off(j, 35)
        a.I(f"""
        v_lshlrev_b32 v{e}, 16, v{s_}
        v_and_b32 v{e+1}, 0xffff0000, v{s_}
        v_lshlrev_b32 v{e+2}, 16, v{s_+1}
        v_and_b32 v{e+3}, 0xffff0000, v{s_+1}
        v_pk_fma_f32 v[{b}:{b+1}], v[{e}:{e+1}], v[{T+6}:{T+7}], v[{b}:{b+1}] op_sel_hi:[1,0,1]
        v_pk_fma_f32 v[{b+2}:{b+3}], v[{e+2}:{e+3}], v[{T+6}:{T+7}], v[{b+2}:{b+3}] op_sel_hi:[1,0,1]
        v_cvt_pk_bf16_f32 v{e+4}, v{b}, v{b+1}
        v_cvt_pk_bf16_f32 v{e+5}, v{b+2}, v{b+3}
        """)
        a.vm_issue("X1"); a.I(f"buffer_store_dwordx2 v[{e+4}:{e+5}], v{T+2}, s[16:19], s35 offen sc1")
        a.I(f"""
        v_lshlrev_b32 v{b}, 16, v{e+4}
        v_and_b32 v{b+1}, 0xffff0000, v{e+4}
        v_lshlrev_b32 v{b+2}, 16, v{e+5}
        v_and_b32 v{b+3}, 0xffff0000, v{e+5}
        """)
    a.auto = False
    a.I(f"""
    s_cmp_ge_u32 s24, 2
    s_cselect_b32 s92, 0, 1.0
    s_mov_b32 s93, {f32(1/80):#x}
    s_cbranch_scc0 L_five
    s_mov_b32 s93, {f32(1/64):#x}
    v_mov_b32 v{RES+16}, 0
    v_mov_b32 v{RES+17}, 0
    v_mov_b32 v{RES+18}, 0
    v_mov_b32 v{RES+19}, 0
    """)
    a.label("L_five"); a.auto = True
    vals = [RES + e for e in range(20)]
    a.I(f"v_add_f32 v{T+4}, v{vals[0]}, v{vals[1]}")
    for v in vals[2:]: a.I(f"v_add_f32 v{T+4}, v{T+4}, v{v}")
    xlane(a, "v_add_f32", T+4)
    a.I(f"v_mul_f32 v{T+6}, s93, v{T+4}\nv_mul_f32 v{T+7}, s92, v{T+6}\nv_mov_b32 v{T+8}, 0")
    for e, v in enumerate(vals):
        a.I(f"v_sub_f32 v{v}, v{v}, v{T+6 + (1 if e >= 16 else 0)}\nv_fmac_f32 v{T+8}, v{v}, v{v}")
    xlane(a, "v_add_f32", T+8)
    srd(a, 16, P['ws'], 2048*64, add_imm=WS_ST)
    a.I(f"""
    v_mov_b32 v{T+5}, v{T+8}
    s_lshl_b32 s33, s62, 10
    s_lshl_b32 s34, s49, 4
    s_add_u32 s33, s33, s34
    s_lshr_b32 s34, s24, 1
    s_lshl_b32 s34, s34, 3
    s_add_u32 s33, s33, s34
    v_lshlrev_b32 v{T}, 6, v0
    v_cmp_gt_u32 vcc, 16, v0
    v_mov_b32 v{T+1}, {OOB:#x}
    s_nop 0
    v_cndmask_b32 v{T}, v{T+1}, v{T}, vcc
    """)
    a.vm_issue("X1"); a.I(f"buffer_store_dwordx2 v[{T+4}:{T+5}], v{T}, s[16:19], s33 offen sc1")
    pt(a, 't3')
    KA, VA, LS, NEGM = AT.V_KA, AT.V_VA, AT.V_LS, AT.V_NEGM
    a.I(f"""
    v_lshrrev_b32 v{T}, 4, v0
    v_and_b32 v{T+1}, 15, v0
    v_xor_b32 v{T+2}, v{T+1}, v{T}
    v_lshlrev_b32 v{T+2}, 4, v{T+2}
    v_lshl_add_u32 v{KA}, v{T+1}, 8, v{T+2}
    v_xor_b32 v{KA+1}, 64, v{KA}
    v_xor_b32 v{KA+2}, 0x80, v{KA}
    v_xor_b32 v{KA+3}, 0xc0, v{KA}
    v_lshrrev_b32 v{T}, 2, v0
    v_and_b32 v{T+1}, 7, v{T}
    v_and_b32 v{T+2}, 3, v0
    v_lshlrev_b32 v{T+3}, 8, v{T}
    v_lshl_add_u32 v{T+4}, v{T+1}, 5, v{T+3}
    v_lshl_add_u32 v{T+4}, v{T+2}, 3, v{T+4}
    v_add_u32 v{VA}, {AT.VREG}, v{T+4}
    """)
    for dt in range(1, 8): a.I(f"v_xor_b32 v{VA+dt}, {dt*32}, v{VA}")
    def zero_o():
        for r in range(128): a.I(f"v_accvgpr_write_b32 a{AT.A_O + r}, 0")
        for r in range(16): a.I(f"v_mov_b32 v{AT.V_LSA + r}, 0")
    for r in range(4): a.I(f"v_mov_b32 v{AT.V_ONES + r}, 0x3f803f80")
    W(["K0"]); a.I("s_barrier")
    a.bg_add(kv((("v", 1), ("k", 3), ("v", 2))))
    for x in AT.k_reads(0): a.I(x)
    zero_o()
    a.I("s_waitcnt lgkmcnt(0)")
    for x in AT.qk_mfmas(0, False): a.I(x)
    for x in AT.k_reads(1): a.I(x)
    a.force(None); a.auto = False
    PKR = 84; PKT = 80
    a.I(f"s_mov_b32 s90, {(1<<32)//6 + 1}")
    for p in range(3):
        a.I(f"""
        v_add_u32 v{T}, {p*64}, v0
        v_mul_hi_u32 v{T+1}, v{T}, s90
        v_mul_u32_u24 v{T+2}, 6, v{T+1}
        v_sub_u32 v{T+2}, v{T}, v{T+2}
        v_mul_u32_u24 v{T+1}, 1152, v{T+1}
        v_lshl_add_u32 v{PAT+p}, v{T+2}, 4, v{T+1}
        """)
        if p: a.I(f"v_subrev_u32 v{PAT+p}, {p*1024}, v{PAT+p}")
    a.I(f"""
    v_lshrrev_b32 v{T}, 2, v0
    v_mul_u32_u24 v{T}, 96, v{T}
    v_and_b32 v{T+1}, 3, v0
    v_lshl_add_u32 v{PKT}, v{T+1}, 3, v{T}
    s_add_u32 s91, s55, 0x20000
    v_add_u32 v{PKT}, s91, v{PKT}
    s_lshl_b32 s33, s2, 2
    s_add_u32 s33, s33, s24
    s_mul_i32 s63, s33, {SLAB}
    s_add_u32 s92, s33, 64
    s_mul_i32 s92, s92, {32*1152}
    s_add_u32 s92, s92, {3*288}
    s_add_u32 s93, s63, {1024*SLAB}
    s_cmp_ge_u32 s33, 64
    s_cselect_b32 s92, {OOB:#x}, s92
    s_cselect_b32 s93, {OOB:#x}, s93
    s_cmp_lt_u32 s33, 576
    s_cselect_b32 s12, s{P['w4']}, s{P['wo']}
    s_cselect_b32 s13, s{P['w4']+1}, s{P['wo']+1}
    s_mov_b32 s14, {4608*1152:#x}
    s_mov_b32 s34, {(1<<32)//144 + 1:#x}
    s_mov_b32 s35, 144
    s_cbranch_scc1 L_pk0
    s_sub_u32 s33, s33, 576
    s_mov_b32 s14, {4096*1152:#x}
    s_mov_b32 s34, {(1<<32)//128:#x}
    s_mov_b32 s35, 128
    """)
    a.label("L_pk0")
    a.I(f"""
    s_mov_b32 s15, 0x00020000
    s_mul_hi_u32 s34, s33, s34
    s_mul_i32 s35, s34, s35
    s_sub_u32 s33, s33, s35
    s_mul_i32 s33, s33, {32*1152}
    s_mul_i32 s34, s34, 288
    s_add_u32 s94, s33, s34
    s_mov_b32 s95, {OOB:#x}
    """)
    def pk_extra(k, dummy=False):
        if k in (0, 1, 2) and not dummy:
            return {6: ["s_mov_b32 m0, s91", "s_nop 0", ("vm", "PL", f"buffer_load_dwordx4 v{PAT+k}, s[12:15], s94 offen offset:{k*1024} {NT} lds")]}
        if k == 5 and not dummy:
            ex = {52: [lambda: W(["PL"])]}
            for n_ in range(6): ex[53 + 2*n_] = [f"ds_read_b64_tr_b16 {vr(PKR + (n_ >> 1)*4 + (n_ & 1)*2, 2)}, v{PKT} offset:{(n_ & 1)*16*96 + (n_ >> 1)*32}"]
            return ex
        if k in (6, 7):
            so = "s95" if dummy else "s63"
            ex = {}
            for n_ in ((0, 1) if k == 6 else (2,)):
                ex[6 + 12*(n_ & 1)] = [("vm", "PS", f"buffer_store_dwordx4 {vr(PKR + n_*4, 4)}, v{L16}, s[16:19], {so} offen offset:{n_*1024} sc1")]
            return ex
        return None
    srd(a, 20, P['ws'], 0x1000000, add_imm=WS_O)
    srd(a, 16, P['ws'], 1088*SLAB, add_imm=WS_PK)
    LSA = AT.V_LSA
    def rowmax(u, qt, dst):
        b = AT.sbuf(u) + 8*qt
        a.I(f"v_max3_f32 v{dst}, v{b}, v{b+1}, v{b+2}\nv_max3_f32 v{dst}, v{dst}, v{b+3}, v{b+4}\nv_max3_f32 v{dst}, v{dst}, v{b+5}, v{b+6}\nv_max_f32 v{dst}, v{dst}, v{b+7}")
        xlane(a, "v_max_f32", dst)
    for qt in range(4):
        rowmax(0, qt, T)
        for r in range(4): a.I(f"v_sub_f32 v{NEGM + 4*qt + r}, 0, v{T}")
        for r in range(8): a.I(f"v_sub_f32 v{AT.sbuf(0) + 8*qt + r}, v{AT.sbuf(0) + 8*qt + r}, v{T}")
    a.I("s_nop 1")
    pt(a, 'b0'); AT.body2(a, 0); AT.body2(a, 1); pt(a, 'b2')
    W(["X1"]); a.I("s_barrier\ns_lshr_b32 s33, s48, 3\ns_lshl_b32 s33, s33, 5"); signal(a, 0x100)
    for u in range(2, 8): AT.body2(a, u, extra=pk_extra(u, dummy=True))
    pt(a, 'b8')
    a.I("s_mov_b32 s27, 6")
    if 'cyc' in PTS: a.I("s_memtime s[36:37]\ns_memrealtime s[38:39]")
    a.raw(".p2align 6"); a.label("L_att_loop")
    vb = list(a.vm)
    for u in range(8, 16): AT.body2(a, u, extra=pk_extra(u - 8))
    a.I(f"""
    s_add_u32 s94, s94, 96
    s_add_u32 s63, s63, 3072
    s_cmp_eq_u32 s27, 4
    s_cselect_b32 s94, s92, s94
    s_cselect_b32 s63, s93, s63
    s_cselect_b32 s12, s{P['wo']}, s12
    s_cselect_b32 s13, s{P['wo']+1}, s13
    s_cselect_b32 s14, {4096*1152:#x}, s14
    s_sub_u32 s27, s27, 1
    s_cmp_lg_u32 s27, 0
    s_cbranch_scc1 L_att_loop
    """)
    sh = lambda tag, d: tag if tag[0] == "P" else tag[0] + str(int(tag[1:]) + d)
    assert [sh(t, 4) for t in vb] == a.vm, (vb, a.vm)
    a.vm = [sh(t, 20) for t in a.vm]
    pt(a, 'b56')
    if 'cyc' in PTS: a.I("s_memtime s[40:41]\ns_memrealtime s[100:101]")
    for u in range(56, 64):
        if u == 56:
            poll_issue(a, "P3", "s_lshl_b32 s33, s50, 3\nv_cmp_eq_u32 vcc, s33, v0\ns_nop 1"); a.force({"P3"})
        if u == 57:
            a.auto = False
            srd(a, 56, P['w3'], 576*9216)
            a.I(f"s_mul_i32 s35, s0, 81\ns_and_b32 s34, s2, 6\ns_mul_i32 s34, s34, 1152\ns_mov_b32 s33, {(1<<32)//18 + 1}")
            for i in range(2):
                a.I(f"""
                v_min_u32 v{T}, {80 - 64*i if i else 63}, v0
                v_add_u32 v{T}, s35, v{T}
                v_add_u32 v{T}, {64*i}, v{T}
                v_mul_hi_u32 v{T+1}, v{T}, s33
                v_mul_u32_u24 v{T+2}, 18, v{T+1}
                v_sub_u32 v{T}, v{T}, v{T+2}
                v_lshlrev_b32 v{T}, 7, v{T}
                v_mul_u32_u24 v{T+1}, 9216, v{T+1}
                v_add_u32 v{T}, v{T}, v{T+1}
                """)
                touch(a, 56, 34, 1, addr=T)
            srd(a, 56, P['dbg'], 256)
        if u == 58: poll_check(a, "P3", 8, 32)
        if u == 59:
            a.auto = False
            srd(a, 12, P['ws'], SZ_ACT, add_imm=WS_X1)
            a.I(f"s_and_b32 s35, s0, 31\ns_mul_i32 s35, s35, 9216\ns_mul_i32 s34, s50, {16*18*1024}\ns_add_u32 s35, s35, s34")
            touch(a, 12, 35, 2)
        AT.body2(a, u)
    a.I(AT.sm_cvt(63, 14)); a.I(AT.sm_cvt(63, 15))
    for x in AT.v_reads(63): a.I(x)
    pat_regs(a, PATB, 9216)
    a.I(f"""
    s_mul_i32 s30, s24, {SLAB}
    s_mul_i32 s33, s51, 288
    v_subrev_u32 v{TRA}, s30, v{TRA}
    v_add_u32 v{TRB}, 64512, v{TRA}
    v_add_u32 v{TRC}, 129024, v{TRA}
    s_waitcnt lgkmcnt(0)
    """)
    for qt in range(4): a.I(mf(vr(LSA + 4*qt, 4), vr(AT.V_ONES, 4), vr(AT.sbuf(63) + qt*8, 4), vr(LSA + 4*qt, 4)))
    for x in AT.pv_mfmas(63): a.I(x)
    a.I(f"""
    s_mov_b32 s33, {AT.THR:#x}
    v_cmp_nle_f32 vcc, v{LSA}, s33
    v_cmp_nle_f32 s[34:35], v{LSA+4}, s33
    v_cmp_nle_f32 s[44:45], v{LSA+8}, s33
    v_cmp_nle_f32 s[60:61], v{LSA+12}, s33
    s_nop 1
    s_or_b64 vcc, vcc, s[34:35]
    s_or_b64 s[44:45], s[44:45], s[60:61]
    s_or_b64 vcc, vcc, s[44:45]
    s_cmp_lg_u64 vcc, 0
    s_cselect_b32 s33, 1, {OPT.get('fb', 0)}
    v_mov_b32 v{T}, s33
    v_lshlrev_b32 v{T+1}, 2, v0
    v_add_u32 v{T+1}, {QS}, v{T+1}
    s_lshl_b32 s34, s24, 8
    v_add_u32 v{T+5}, s34, v{T+1}
    ds_write_b32 v{T+5}, v{T}
    s_waitcnt lgkmcnt(0)
    s_barrier
    ds_read_b32 v{T}, v{T+1}
    ds_read_b32 v{T+2}, v{T+1} offset:256
    ds_read_b32 v{T+3}, v{T+1} offset:512
    ds_read_b32 v{T+4}, v{T+1} offset:768
    s_waitcnt lgkmcnt(0)
    v_or3_b32 v{T}, v{T}, v{T+2}, v{T+3}
    v_or_b32 v{T}, v{T}, v{T+4}
    s_nop 0
    v_readfirstlane_b32 s33, v{T}
    s_nop 3
    s_cmp_lg_u32 s33, 0
    s_cbranch_scc1 L_fallback
    """)
    a.label("L_att_epi"); pt(a, 'attl')
    a.I("s_mul_i32 s33, s51, 288")
    srd(a, 4, P['w3'], 0, add_lo=33)
    srd(a, 8, P['ws'], SZ_ACT, add_imm=WS_X1)
    srd(a, 16, P['ws'], 2048*64, add_imm=WS_ST)
    a.I(f"""
    s_sub_u32 s6, {576*9216}, s33
    s_mul_i32 s25, s24, {32*9216}
    s_sub_u32 s47, s30, {SLAB}
    s_cmp_eq_u32 s24, 0
    s_cselect_b32 s47, {16*SLAB}, s47
    s_lshl_b32 s62, s50, 4
    s_lshl_b32 s34, s24, 2
    s_add_u32 s62, s62, s34
    s_mul_i32 s26, s62, {18*1024}
    s_lshl_b32 s91, s62, 10
    v_and_b32 v{T+15}, 15, v0
    v_lshlrev_b32 v{T+15}, 6, v{T+15}
    v_and_b32 v{T+9}, 0x30, v0
    v_add_u32 v{T+15}, v{T+15}, v{T+9}
    """)
    def loadW4(j):
        if j < 4: return dma_slab(PATB, 4, 25, j*128*9216, lambda o: f"s_add_u32 m0, s30, {j*4*SLAB + o}", f"Z{j}")
        return dma_slab(PATB, 4, 25, j*128*9216, lambda o: f"s_add_u32 m0, s47, {o}", f"Z{j}")
    NB4 = 11
    def bset4(i): s_ = i % NB4; return 128 + 16*s_ if s_ < 8 else 72 + 16*(s_-8)
    def loadB4(i):
        r = []
        for qt in range(4):
            r.append(f"s_add_u32 s3, s26, {qt*18*1024 + i*1024}")
            r.append(("vm", f"B{i}", f"buffer_load_dwordx4 {ar(bset4(i) + qt*4, 4)}, v{L16}, s[8:11], s3 offen"))
        return r
    STV = 84
    for qt in range(4): a.I(f"v_rcp_f32 v{T+10+qt}, v{LSA+4*qt}")
    a.pace = OPT["pace"]; a.auto = True
    a.bg_add([("vm", "ST", f"buffer_load_dwordx4 {vr(STV + qt*4, 4)}, v{T+15}, s[16:19], s91 offen offset:{qt*1024}") for qt in range(4)])
    a.bg_add(loadW4(0) + loadB4(0) + loadB4(1) + loadW4(1) + loadB4(2) + loadB4(3) + loadW4(2) + loadB4(4) + loadB4(5) + loadW4(3) + loadB4(6) + loadB4(7))
    a.I(f"s_lshl_b32 s33, s46, 17\ns_lshl_b32 s34, s31, 12\ns_add_u32 s63, s33, s34")
    tb = 128
    for qt in range(4):
        for t in range(4):
            src = AT.A_O + (qt*4+t)*8
            tt = tb; tb += 8
            for i in range(8): a.I(f"v_accvgpr_read_b32 v{tt+i}, a{src+i}")
            for i in range(0, 8, 2): a.I(f"v_pk_mul_f32 v[{tt+i}:{tt+i+1}], v[{tt+i}:{tt+i+1}], v[{T+10+(qt&2)}:{T+11+(qt&2)}] op_sel:[0,{qt&1}] op_sel_hi:[1,{qt&1}]")
            for i in range(4): a.I(f"v_cvt_pk_bf16_f32 v{tt+i}, v{tt+2*i}, v{tt+2*i+1}")
            a.vm_issue("O"); a.I(f"buffer_store_dwordx4 {vr(tt,4)}, v{L16}, s[20:23], s63 offen offset:{t*1024} sc1")
        if qt < 3: a.I("s_add_u32 s63, s63, 0x20000")
    pt(a, 'att')
    a.bg_add(loadB4(8) + loadB4(9) + loadB4(10))
    MU = 64; RS = 68; ONE4 = 72; CS = 76; ACC4 = 112; A4 = 0
    W(["ST"])
    a.I(f"s_mov_b32 s92, {f32(1/576):#x}\ns_mov_b32 s93, {f32(1/80):#x}\ns_mov_b32 s94, {f32(1/64):#x}\ns_mov_b32 s95, {f32(80.0):#x}\ns_mov_b32 s63, {f32(64.0):#x}\ns_mov_b32 s91, {f32(EPS):#x}")
    for qt in range(4):
        b = STV + qt*4
        a.I(f"v_add_f32 v{T}, v{b}, v{b+2}")
        xlane(a, "v_add_f32", T)
        a.I(f"""
        v_mul_f32 v{T}, s92, v{T}
        v_add_f32 v{T+2}, v{b+1}, v{b+3}
        v_fma_f32 v{T+4}, v{b}, s93, -v{T}
        v_mul_f32 v{T+5}, s95, v{T+4}
        v_fmac_f32 v{T+2}, v{T+5}, v{T+4}
        v_fma_f32 v{T+4}, v{b+2}, s94, -v{T}
        v_mul_f32 v{T+5}, s63, v{T+4}
        v_fmac_f32 v{T+2}, v{T+5}, v{T+4}
        v_sub_f32 v{MU+qt}, 0, v{T}
        """)
        xlane(a, "v_add_f32", T+2)
        a.I(f"v_mov_b32 v{T+4}, s91\nv_fmac_f32 v{T+4}, s92, v{T+2}\nv_rsq_f32 v{RS+qt}, v{T+4}")
    for r in range(4): a.I(f"v_mov_b32 v{ONE4+r}, 0x3f803f80")
    for r in range(36): a.I(f"v_mov_b32 v{CS+r}, 0")
    def slot4(i): return (i if i < 17 else 0) * SLAB
    COS = OPT.get("cos", 1); COC = OPT.get("coc", 10)
    pt(a, 't4a'); W(["Z0"]); a.I("s_barrier"); pt(a, 't4b')
    for x in a_reads(A4, 0): a.I(x)
    for i in range(18):
        a.C(f"T4 step {i}"); pt(a, f"f{i}")
        if i % 4 == 3:
            W([f"Z{(i+1)//4}", f"B{i}"], " lgkmcnt(0)"); a.I("s_barrier")
            if i == 3: a.bg_add(loadW4(4))
        elif i == COS:
            W([f"B{i}", "O", "PS"], " lgkmcnt(0)"); a.I("s_barrier")
            a.I("s_lshl_b32 s33, s32, 5"); signal(a, 0x1000000)
        else:
            W([f"B{i}"], " lgkmcnt(0)")
        if i == COC - 2: poll_issue(a, "P5", f"v_and_b32 v{T+2}, 7, v0\nv_cmp_eq_u32 vcc, 0, v{T+2}\ns_nop 1")
        if i == COC:
            pt(a, 'coa'); poll_check(a, "P5", 24, 32); pt(a, 'cob')
        if i == COC + 2:
            a.auto = False
            a.I(f"""
            s_and_b32 s33, s52, 8
            s_lshl_b32 s33, s33, 3
            s_lshr_b32 s35, s0, 1
            s_add_u32 s33, s33, s35
            s_lshl_b32 s33, s33, 17
            s_lshl_b32 s34, s54, 15
            s_add_u32 s33, s33, s34
            s_and_b32 s35, s0, 1
            s_lshl_b32 s35, s35, 14
            s_add_u32 s35, s35, s33
            """)
            touch(a, 20, 35, 2)
            a.auto = True
        if i == COC + 1:
            a.auto = False
            srd(a, 12, P['ws'], 1088*SLAB, add_imm=WS_PK)
            a.I(f"""
            s_lshr_b32 s33, s0, 5
            s_lshl_b32 s33, s33, 7
            s_lshl_b32 s34, s54, 5
            s_add_u32 s33, s33, s34
            s_mul_i32 s33, s33, {SLAB}
            s_and_b32 s35, s0, 31
            s_mul_i32 s35, s35, {72*128}
            s_add_u32 s35, s35, s33
            s_add_u32 s35, s35, {PK_WO}
            """)
            touch(a, 12, 35, 2)
            a.auto = True
        rd = a_reads(A4 + 36*((i+1) % 2), slot4(i+1)) if i + 1 < 18 else []
        k = 0
        for ft in range(9):
            for qt in range(4):
                d = vr(ACC4 + (qt*9+ft)*4, 4)
                a.I(mf(d, ar(A4 + 36*(i % 2) + ft*4, 4), ar(bset4(i) + qt*4, 4), d if i else "0"))
                if qt % 2 == 0 and k < len(rd): a.I(rd[k]); k += 1
        a.auto = False
        a.I(f"s_cmp_lg_u32 s24, {i % 4}\ns_cbranch_scc1 L_cs{i}")
        for ft in range(9):
            d = vr(CS + ft*4, 4)
            a.I(mf(d, ar(A4 + 36*(i % 2) + ft*4, 4), vr(ONE4, 4), d))
        a.label(f"L_cs{i}"); a.auto = True
        if i + NB4 < 18: a.bg_add(loadB4(i + NB4))
    pt(a, 't4m')
    assert not a.bg
    cs_exchange(lambda t: vr(CS + t*4, 4), 9, None, None)
    srd(a, 4, P['ws'], 1088*SLAB, add_imm=WS_PK)
    srd(a, 8, P['ws'], 0x1000000, add_imm=WS_O)
    a.I(f"""
    s_mul_i32 s95, s49, 144
    s_mul_i32 s33, s54, 36
    s_add_u32 s95, s95, s33
    s_add_u32 s95, s95, s24
    s_mul_i32 s95, s95, {SLAB}
    s_lshl_b32 s25, s49, 7
    s_lshl_b32 s33, s54, 5
    s_add_u32 s25, s25, s33
    s_add_u32 s25, s25, s24
    s_mul_i32 s25, s25, {SLAB}
    s_add_u32 s25, s25, {PK_WO}
    s_lshl_b32 s44, s52, 3
    s_lshl_b32 s34, s24, 1
    s_add_u32 s44, s44, s34
    s_lshl_b32 s26, s44, 17
    s_lshl_b32 s33, s54, 15
    s_add_u32 s26, s26, s33
    s_add_u32 s27, s26, {128*1024}
    s_mul_i32 s28, s44, {144*1024}
    s_mul_i32 s33, s54, {36*1024}
    s_add_u32 s28, s28, s33
    v_add_u32 v{T+11}, {128*1024}, v{L16}
    """)
    NS = 68; ACC5 = 184; A5 = 0; NB5 = 13; B5 = 72
    def slot5(i): return (i % 16) * SLAB
    a.I("s_and_b32 s77, s52, 7\ns_lshl_b32 s33, s49, 1\ns_add_u32 s77, s77, s33")
    if not OPT.get("rot5", 1): a.I("s_mov_b32 s77, 0")
    def rotg(j, dst):
        n, g = (8, j) if j < 8 else (9, j - 8)
        a.I(f"s_add_u32 s{dst}, s77, {g}")
        if n == 8: a.I(f"s_and_b32 s{dst}, s{dst}, 7")
        else:
            for _ in range(2): a.I(f"s_sub_u32 s33, s{dst}, 9\ns_cmp_ge_u32 s{dst}, 9\ns_cselect_b32 s{dst}, s33, s{dst}")
    GA = [66, 67, 68, 69]; GB = [70, 71, 72, 73, 76]
    def loadW5(j):
        d = GA[j % 4]
        for g in a.bg:
            for x in g: assert f"s{d}," not in str(x)
        rotg(j, d); a.I(f"s_mul_i32 s{d}, s{d}, {4*SLAB}\ns_add_u32 s{d}, s{d}, s{25 if j < 8 else 95}")
        r = []
        for p in range(9):
            if p % 4 == 0: r += [f"s_add_u32 m0, s30, {(j % 4)*4*SLAB + p*1024}", f"s_add_u32 s3, s{d}, {p*1024}"]
            r.append(("vm", f"Y{j}", f"buffer_load_dwordx4 v{L16}, s[4:7], s3 offen offset:{(p%4)*1024} lds"))
        return r
    def b5(i): return B5 + (i % NB5) * 8
    def loadB5(i):
        r = []
        d = GB[(i // 4) % 5]
        if i % 4 == 0:
            for g in a.bg:
                for x in g: assert f"s{d}," not in str(x) and f"s{d} " not in str(x)
            rotg(i // 4, d); a.I(f"s_lshl_b32 s{d}, s{d}, 12\ns_add_u32 s{d}, s{d}, s{26 if i < 32 else 28}")
        sr = f"s[{8 if i < 32 else 12}:{11 if i < 32 else 15}]"
        r.append(("vm", f"B{i}", f"buffer_load_dwordx4 {ar(b5(i), 4)}, v{L16}, {sr}, s{d} offen offset:{(i%4)*1024}"))
        r.append(("vm", f"B{i}", f"buffer_load_dwordx4 {ar(b5(i) + 4, 4)}, v{T+11 if i < 32 else T+14}, {sr}, s{d} offen offset:{(i%4)*1024}"))
        return r
    it = loadW5(0)
    for i in range(4): it += loadB5(i)
    it += loadW5(1)
    for i in range(4, 8): it += loadB5(i)
    it += loadW5(2)
    for i in range(8, NB5): it += loadB5(i)
    it += loadW5(3)
    it5 = it
    if not OPT.get("t5late"): a.bg_add(it)
    a.pace = OPT.get("pacee", OPT["pace"])
    for ft in range(9): a.I(f"ds_read_b128 {vr(CS + ft*4, 4)}, v{T+6} offset:{ft*64}")
    for w in range(1, 4):
        for grp in ((0, 1, 2, 3, 4), (5, 6, 7, 8)):
            bufs = (28, 40, 44, 52, 56)
            for k_, ft in enumerate(grp): a.I(f"ds_read_b128 {vr(bufs[k_], 4)}, v{T+6} offset:{w*576 + ft*64}")
            a.I("s_waitcnt lgkmcnt(0)")
            for k_, ft in enumerate(grp):
                e = bufs[k_]
                for h in (0, 2): a.I(f"v_pk_add_f32 v[{CS+ft*4+h}:{CS+ft*4+h+1}], v[{CS+ft*4+h}:{CS+ft*4+h+1}], v[{e+h}:{e+h+1}]")
    srd(a, 16, P['ws'], 0x1200000, add_imm=WS_H3)
    srd(a, 12, P['ws'], 0x1200000, add_imm=WS_H3)
    a.I(f"s_mov_b32 s92, {f32(C2):#x}\ns_mov_b32 s93, {f32(C2):#x}\nv_mov_b32 v{T+4}, {f32(C1):#x}\nv_mov_b32 v{T+5}, {f32(C1):#x}")
    a.auto = False
    a.I(f"""
    s_mul_i32 s60, s51, 9
    s_lshr_b32 s33, s60, 1
    s_lshl_b32 s33, s33, 10
    s_mul_i32 s47, s62, {144*1024}
    s_add_u32 s47, s47, s33
    v_add_u32 v{T+10}, 0x1000, v{L16}
    s_bitcmp1_b32 s51, 0
    s_cbranch_scc1 L_t4odd
    """)
    a.auto = True
    import copy
    st0 = (list(a.vm), copy.deepcopy(a.bg), a.cyc, a.last_bg)
    ends = []
    for par in range(2):
        a.vm, a.bg, a.cyc, a.last_bg = list(st0[0]), copy.deepcopy(st0[1]), st0[2], st0[3]
        if par: a.label("L_t4odd")
        for qt in range(4):
            pt(a, f"e{qt}")
            a.I(f"v_mov_b32 v{T+6}, v{MU+qt}\nv_mov_b32 v{T+8}, v{RS+qt}")
            for ft in range(9):
                b = ACC4 + (qt*9+ft)*4; c = CS + ft*4; t = T + 12
                for h in (0, 2):
                    a.I(f"v_pk_fma_f32 v[{b+h}:{b+h+1}], v[{c+h}:{c+h+1}], v[{T+6}:{T+7}], v[{b+h}:{b+h+1}] op_sel_hi:[1,0,1]")
                for h in (0, 2):
                    a.I(f"v_pk_mul_f32 v[{b+h}:{b+h+1}], v[{b+h}:{b+h+1}], v[{T+8}:{T+9}] op_sel_hi:[1,0]")
                gelu4(a, b, t, T + 4, 92)
                gt = ft + par; ks = gt >> 1; half = gt & 1
                ad = f"v{L16 if ks < 4 else T+10}"; off = (ks % 4) * 1024
                if half == 0 and ft < 8:
                    a.I(f"v_cvt_pk_bf16_f32 v{b}, v{b}, v{b+1}\nv_cvt_pk_bf16_f32 v{b+1}, v{b+2}, v{b+3}")
                elif half == 1 and ft > 0:
                    pb = b - 4
                    a.I(f"v_cvt_pk_bf16_f32 v{pb+2}, v{b}, v{b+1}\nv_cvt_pk_bf16_f32 v{pb+3}, v{b+2}, v{b+3}")
                    a.vm_issue("H3"); a.I(f"buffer_store_dwordx4 v[{pb}:{pb+3}], {ad}, s[16:19], s47 offen offset:{off} sc1") if not OPT.get("nost") else None
                else:
                    a.I(f"v_cvt_pk_bf16_f32 v{b}, v{b}, v{b+1}\nv_cvt_pk_bf16_f32 v{b+1}, v{b+2}, v{b+3}")
                    a.vm_issue("H3"); a.I(f"buffer_store_dwordx2 v[{b}:{b+1}], {ad}, s[16:19], s47 offen offset:{off + half*8} sc1") if not OPT.get("nost") else None
            if qt < 3: a.I(f"s_add_u32 s47, s47, {144*1024}")
        pt(a, "e4")
        if OPT.get("t5late"): a.bg_add(it5)
        a.force(None)
        a.vm_issue("H3L"); a.I(f"buffer_load_dword v{PFD}, v{L16}, s[4:7], 0 offen")
        ends.append(list(a.vm))
        if par == 0: a.I("s_branch L_t4done")
    a.label("L_t4done")
    a.vm = [t for t in ends[0] if t != "H3"]
    assert a.vm == [t for t in ends[1] if t != "H3"]
    pt(a, 't4')
    a.pace = OPT["pace5"]
    srd(a, 16, P['ws'], 0x2800000, add_imm=WS_PART)
    srd(a, 20, P['x'], SZ_ACT)
    PCS = [(0, 1), (2, 3), (4,), (5, 6), (7, 8)]
    PSZ = 10*1024
    GOFF = 64*16*PSZ
    a.I(f"""
    s_lshl_b32 s47, s52, 2
    s_add_u32 s47, s47, s49
    s_lshl_b32 s93, s47, 2
    s_add_u32 s93, s93, s24
    s_lshl_b32 s93, s93, 2
    s_add_u32 s93, s93, s54
    s_mul_i32 s93, s93, {PSZ}
    s_lshl_b32 s92, s47, 8
    s_cmp_ge_u32 s24, 2
    s_cselect_b32 s34, 5, 0
    s_mul_i32 s60, s49, 9
    s_add_u32 s60, s60, s34
    s_lshl_b32 s44, s52, 3
    s_lshl_b32 s33, s54, 1
    s_add_u32 s44, s44, s33
    s_and_b32 s61, s24, 1
    s_add_u32 s44, s44, s61
    s_mul_i32 s45, s44, {16*1152}
    s_lshl_b32 s34, s60, 5
    s_add_u32 s45, s45, s34
    s_mul_i32 s34, s44, {18*1024}
    v_add_u32 v{T+10}, s34, v{L16}
    s_lshl_b32 s94, s47, 2
    s_add_u32 s94, s94, s54
    s_mul_i32 s94, s94, {4*PSZ}
    s_mul_i32 s33, s61, 5120
    s_add_u32 s94, s94, s33
    s_add_u32 s91, s94, 3072
    s_cmp_ge_u32 s24, 2
    s_cselect_b32 s94, s91, s94
    s_add_u32 s91, s94, 2048
    s_cselect_b32 s91, {OOB:#x}, s91
    """)
    def flush_global():
        for qt in range(2):
            for k_, tl in enumerate(PCS):
                b = ACC5 + (qt*9 + tl[0])*4
                a.I(f"v_cvt_pk_bf16_f32 v{b}, v{b}, v{b+1}\nv_cvt_pk_bf16_f32 v{b+1}, v{b+2}, v{b+3}")
                if len(tl) == 2: a.I(f"v_cvt_pk_bf16_f32 v{b+2}, v{b+4}, v{b+5}\nv_cvt_pk_bf16_f32 v{b+3}, v{b+6}, v{b+7}")
                p = qt*5 + k_
                a.vm_issue("PT0"); a.I(f"buffer_store_dwordx4 {vr(b, 4)}, v{L16}, s[16:19], s93 offen offset:{(p%4)*1024} sc1")
                if p % 4 == 3: a.I("s_add_u32 s93, s93, 4096")
    XV = 28; X1V = 38
    a.I(f"v_add_u32 v{T+14}, {144*1024}, v{L16}\nv_mov_b32 v{TRA}, v{L16}\nv_add_u32 v{TRB}, 64512, v{L16}\nv_add_u32 v{TRC}, 129024, v{L16}")
    def f_reads(dst, off):
        base = off // 64512; o = off - base * 64512
        return [f"ds_read_b128 {ar(dst + nt*4, 4)}, v{TRA+base} offset:{o + nt*1024}" for nt in range(9)]
    W(["Y0"]); a.I("s_barrier")
    for x in f_reads(A5, 0): a.I(x)
    for i in range(NS):
        a.C(f"T5 step {i}"); pt(a, f"s{i}a")
        if i % 4 == 3 and i + 1 < NS:
            b = (i + 1) // 4
            need = {f"Y{b}", f"B{i}"}
            if i == 3: need |= {"H3L"}
            if i == 39: need |= {"PT0"}
            W(need, " lgkmcnt(0)"); a.I("s_barrier")
            if i == 3:
                a.I("s_lshl_b32 s33, s50, 5"); signal(a, 0x10000)
            if i == 39:
                srd(a, 56, P['ws'], 0x10000, add_imm=WS_CX)
                a.I("s_mov_b32 s33, s92"); signal(a, 1)
            if b + 3 < 17: a.bg_add(loadW5(b + 3))
        else:
            W([f"B{i}"], " lgkmcnt(0)")
        if i == 5:
            for j in range(5):
                a.vm_issue("XL"); a.I(f"buffer_load_dwordx2 v[{XV+2*j}:{XV+2*j+1}], v{XD}, s[20:23], s45 offen offset:{j*32}")
            srd(a, 20, P['ws'], SZ_ACT, add_imm=WS_X1)
        if i == 6:
            for j in range(5):
                piece_off(j, 35)
                a.vm_issue("XL"); a.I(f"buffer_load_dwordx2 v[{X1V+2*j}:{X1V+2*j+1}], v{T+10}, s[20:23], s35 offen")
        if i == 8:
            a.I(f"""
            s_lshr_b32 s33, s0, 5
            s_mul_i32 s33, s33, 144
            s_mul_i32 s34, s54, 36
            s_add_u32 s33, s33, s34
            s_mul_i32 s33, s33, {SLAB}
            s_and_b32 s35, s0, 31
            s_mul_i32 s35, s35, {81*128}
            s_add_u32 s35, s35, s33
            """)
            touch(a, 4, 35, 2)
        if i == 15: poll_issue(a, "P4", "s_lshr_b32 s33, s52, 1\ns_lshl_b32 s33, s33, 3\nv_cmp_eq_u32 vcc, s33, v0\ns_nop 1")
        if i == 18:
            pt(a, 'c4a'); poll_check(a, "P4", 16, 32); pt(a, 'c4b')
        if i == 19 and OPT.get("pfh3", 1):
            a.I(f"""
            s_and_b32 s35, s0, 15
            s_lshr_b32 s33, s35, 1
            s_lshl_b32 s34, s52, 3
            s_add_u32 s33, s33, s34
            s_mul_i32 s33, s33, {144*1024}
            s_mul_i32 s34, s54, {36*1024}
            s_add_u32 s33, s33, s34
            s_and_b32 s35, s35, 1
            s_mul_i32 s35, s35, 18432
            s_add_u32 s35, s35, s33
            """)
            touch(a, 12, 35, 3)
        if i == 51: poll_issue(a, "P6", "v_cmp_eq_u32 vcc, 0, v0\ns_nop 1", 56, "s92")
        if i == 54: poll_check(a, "P6", 0, 4, 56, "s92")
        if i == 55:
            it = []
            for src in range(4):
                for k_ in range(3):
                    it.append(f"s_add_u32 s78, s{94 if k_ < 2 else 91}, {src*PSZ}")
                    it.append(("vm", "HP", f"buffer_load_dwordx4 {vr(128 + (src*3+k_)*4, 4)}, v{L16}, s[16:19], s78 offen offset:{(k_%2)*1024}"))
            a.bg_add(it)
        rd = f_reads(A5 + 36*((i+1) % 2), slot5(i+1)) if i + 1 < NS else []
        first = i in (0, 32)
        k = 0
        for nt in range(9):
            for qt in range(2):
                d = vr(ACC5 + (qt*9+nt)*4, 4)
                if qt == 0 and k < len(rd) and nt < 7: a.auto = False
                a.I(mf(d, ar(A5 + 36*(i % 2) + nt*4, 4), ar(b5(i) + qt*4, 4), "0" if first else d))
                if (qt == 0 or nt < 2) and k < len(rd):
                    a.auto = False; a.I(rd[k]); k += 1
                a.auto = True
        assert not (i + NB5 >= 32 and i < 19)
        if i + NB5 < NS: a.bg_add(loadB5(i + NB5), front=True)
        if i == 31:
            a.auto = False
            a.I("s_nop 7")
            flush_global()
            a.I(f"s_add_u32 s93, s93, {GOFF - 8192}\ns_nop 0"); a.auto = True
    a.force(None); a.auto = False
    pt(a, 't5')
    a.I("s_nop 7\ns_barrier\ns_cmp_eq_u32 s24, s54\ns_cbranch_scc1 L_own")
    flush_global()
    a.I("s_waitcnt vmcnt(10)\ns_branch L_own_done")
    a.label("L_own")
    for t in range(18): a.I(f"ds_write_b128 v{L16}, {vr(ACC5 + t*4, 4)} offset:{t*1024}")
    a.I("s_waitcnt vmcnt(0)")
    a.label("L_own_done")
    SV = 64; XF = 84; X1F = 104
    def add_pieces(dst, base, nsrc, first):
        for j in range(5):
            for s_ in range(nsrc):
                p = base + (s_*3 + j//2)*4 + (j % 2)*2; d = dst + j*4; e = T + 2*((j*nsrc + s_) % 2)*2
                if first and s_ == 0:
                    a.I(f"v_lshlrev_b32 v{d}, 16, v{p}\nv_and_b32 v{d+1}, 0xffff0000, v{p}\nv_lshlrev_b32 v{d+2}, 16, v{p+1}\nv_and_b32 v{d+3}, 0xffff0000, v{p+1}")
                else:
                    a.I(f"v_lshlrev_b32 v{e}, 16, v{p}\nv_and_b32 v{e+1}, 0xffff0000, v{p}\nv_lshlrev_b32 v{e+2}, 16, v{p+1}\nv_and_b32 v{e+3}, 0xffff0000, v{p+1}")
                    a.I(f"v_pk_add_f32 v[{d}:{d+1}], v[{d}:{d+1}], v[{e}:{e+1}]\nv_pk_add_f32 v[{d+2}:{d+3}], v[{d+2}:{d+3}], v[{e+2}:{e+3}]")
    add_pieces(SV, 128, 4, True)
    for j in range(5):
        for (src, dst) in ((XV + 2*j, XF + 4*j), (X1V + 2*j, X1F + 4*j)):
            a.I(f"v_lshlrev_b32 v{dst}, 16, v{src}\nv_and_b32 v{dst+1}, 0xffff0000, v{src}\nv_lshlrev_b32 v{dst+2}, 16, v{src+1}\nv_and_b32 v{dst+3}, 0xffff0000, v{src+1}")
    srd(a, 20, P['out'], SZ_ACT)
    a.I(f"s_mov_b32 s63, {f32(-1.4426950408889634):#x}\ns_waitcnt vmcnt(0) lgkmcnt(0)"); pt(a, 'pst')
    a.I(f"""
    s_barrier
    v_mov_b32 v{T}, 0
    v_add_u32 v{T+8}, s53, v{L16}
    s_cmp_lg_u32 s24, 0
    s_cbranch_scc1 L_cx_wait
    v_mov_b32 v{T+1}, 0x100
    s_mov_b64 exec, 1
    buffer_atomic_add v{T+1}, v{T}, s[56:59], s92 offen
    s_mov_b64 exec, -1
    s_mov_b32 s35, 400000
    """)
    a.label("L_cx_poll")
    a.I(f"""
    buffer_load_dword v{T+1}, v{T}, s[56:59], s92 offen sc1
    s_waitcnt vmcnt(0)
    v_readfirstlane_b32 s34, v{T+1}
    s_cmp_ge_u32 s34, 0x400
    s_cbranch_scc1 L_cx_wait
    s_sleep 1
    s_sub_u32 s35, s35, 1
    s_cmp_lg_u32 s35, 0
    s_cbranch_scc1 L_cx_poll
    """)
    a.label("L_cx_wait"); pt(a, 'cx')
    PR = 128
    a.I("s_barrier")
    for d in range(1, 4):
        a.I(f"s_add_u32 s33, s54, {d}\ns_and_b32 s33, s33, 3\ns_mul_i32 s33, s33, {PSZ}\ns_add_u32 s33, s33, {GOFF}\ns_add_u32 s34, s33, s94\ns_add_u32 s35, s33, s91")
        for k_ in range(3):
            a.I(f"buffer_load_dwordx4 {vr(PR + ((d-1)*3+k_)*4, 4)}, v{L16}, s[16:19], s{34 if k_ < 2 else 35} offen offset:{(k_%2)*1024}")
    for j in range(5): a.I(f"ds_read_b128 {vr(192 + j*4, 4)}, v{T+8} offset:{j*1024}")
    a.I("s_waitcnt lgkmcnt(0)")
    for j in range(5):
        b = 192 + j*4
        for h in (0, 2): a.I(f"v_pk_add_f32 v[{X1F+4*j+h}:{X1F+4*j+h+1}], v[{X1F+4*j+h}:{X1F+4*j+h+1}], v[{b+h}:{b+h+1}]")
    a.I("s_waitcnt vmcnt(0)")
    add_pieces(X1F, PR, 3, False)
    for j in range(5):
        b = 192 + j*4; e = XF + j*4; g = SV + j*4; y = X1F + 4*j
        for r in range(4): a.I(f"v_mul_f32 v{b+r}, s63, v{y+r}")
        for r in range(4): a.I(f"v_exp_f32 v{b+r}, v{b+r}")
        for h in (0, 2): a.I(f"v_pk_mul_f32 v[{y+h}:{y+h+1}], v[{y+h}:{y+h+1}], v[{g+h}:{g+h+1}]")
        for r in range(4): a.I(f"v_add_f32 v{b+r}, 1.0, v{b+r}")
        for r in range(4): a.I(f"v_rcp_f32 v{b+r}, v{b+r}")
        a.I("s_nop 0")
        for h in (0, 2): a.I(f"v_pk_fma_f32 v[{e+h}:{e+h+1}], v[{y+h}:{y+h+1}], v[{b+h}:{b+h+1}], v[{e+h}:{e+h+1}]")
        a.I(f"v_cvt_pk_bf16_f32 v{b}, v{e}, v{e+1}\nv_cvt_pk_bf16_f32 v{b+1}, v{e+2}, v{e+3}")
        if j == 4: a.I(f"s_cmp_ge_u32 s24, 2\ns_cselect_b32 s45, {OOB:#x}, s45")
        a.I(f"buffer_store_dwordx2 v[{b}:{b+1}], v{XD}, s[20:23], s45 offen offset:{j*32}")
    g_end(a, 1, wsreg=P['ws'])
    a.label("L_exit")
    a.I("s_endpgm")
    a.label("L_fallback")
    zero_o()
    M = AT.V_M
    AT.V_LS = LS = 84
    for qt in range(4): a.I(f"v_mov_b32 v{M+qt}, 0xff800000\nv_mov_b32 v{LS+qt}, 0")
    a.I("s_mov_b32 s30, s55\ns_mov_b32 s25, s30\ns_mov_b32 s26, s30\ns_mov_b32 s27, 64")
    a.label("L_fb_loop")
    a.I("s_bitcmp1_b32 s27, 0\ns_cbranch_scc1 L_fb_odd\ns_barrier")
    for x in AT.dma_k(a, 0) + AT.dma_v(a, 0): a.I(x[2] if isinstance(x, tuple) else x + "\ns_nop 0")
    a.I("s_waitcnt vmcnt(0)\ns_barrier")
    a.label("L_fb_odd")
    for x in AT.k_reads(0): a.I(x)
    a.I("s_waitcnt lgkmcnt(0)")
    for x in AT.v_reads(0): a.I(x)
    a.I("s_waitcnt lgkmcnt(0)")
    for r in range(12): a.I(f"v_xor_b32 v{KA+r}, 0x2000, v{KA+r}")
    for x in AT.qk_mfmas(0, False): a.I(x)
    a.I("s_nop 7\ns_nop 7")
    for qt in range(4):
        rowmax(0, qt, T)
        a.I(f"v_max_f32 v{T}, v{T}, v{M+qt}\nv_sub_f32 v{T+2}, v{M+qt}, v{T}\nv_exp_f32 v{T+2}, v{T+2}\nv_mov_b32 v{M+qt}, v{T}\nv_mul_f32 v{LS+qt}, v{LS+qt}, v{T+2}")
        for r in range(0, 32, 4):
            o = AT.A_O + qt*32 + r
            for i in range(4): a.I(f"v_accvgpr_read_b32 v{T+4+i}, a{o+i}")
            for i in range(4): a.I(f"v_mul_f32 v{T+4+i}, v{T+4+i}, v{T+2}")
            for i in range(4): a.I(f"v_accvgpr_write_b32 a{o+i}, v{T+4+i}")
        for r in range(8):
            e = 8*qt + r
            a.I(f"v_sub_f32 v{AT.sbuf(0)+e}, v{AT.sbuf(0)+e}, v{T}"); a.I(AT.sm_exp(0, e))
        a.I("s_nop 0")
        for r in range(8): a.I(AT.sm_add(0, 8*qt + r))
        for p in range(4): a.I(AT.sm_cvt(0, 4*qt + p))
    a.I("s_nop 1")
    for x in AT.pv_mfmas(0): a.I(x)
    a.I("s_nop 7\ns_nop 7")
    a.I("s_sub_u32 s27, s27, 1\ns_cmp_lg_u32 s27, 0\ns_cbranch_scc1 L_fb_loop")
    for qt in range(4):
        a.I(f"v_mov_b32 v{T}, v{LS+qt}"); xlane(a, "v_add_f32", T); a.I(f"v_mov_b32 v{LSA+4*qt}, v{T}")
    a.I(f"s_mul_i32 s30, s24, {SLAB}\ns_barrier\ns_branch L_att_epi")
    a.label("L_code_end")
    return a

def build(path):
    a = gen()
    hdr = open("recurrent_scan__mha_block_cached__mixer_s_mlp__prompt.s.ref").read().split("; Override launch")[0]
    hdr += "; @launch grid=(256,1,1) block=(256,1,1) lds=163840\n"
    hdr += '.amdgcn_target "amdgcn-amd-amdhsa--gfx950"\n'
    txt = "\n".join(l[4:] if l.startswith("    ") else l for l in a.L) + "\n"
    open(path, "w").write(hdr + txt + kernel_desc(NAME, 512, 256))
if __name__ == "__main__":
    GSTAMP[0] = "stamp" in sys.argv
    MIDS[:] = [36, 38, 40, 100, 98]; ENDR[0] = 64
    for x in sys.argv:
        if x.startswith("pts="): PTS[:] = x[4:].split(",")
        elif "=" in x: k, v = x.split("="); OPT[k] = int(v)
    build(sys.argv[1])
```

```python
import sys; sys.path.insert(0, "dev")
from gen_common import *
from gen_gemm import f32, mf, SLAB, EPS, C1, C2, xlane, gelu4, emit
import gen_attn16 as AT

WS_ST1 = 0x0950000
WS_PK  = 0x4000000
PK_WO  = 4 * 144 * SLAB
WS_PART = 0x5000000
WS_CX  = 0x7800000
CQ = 1.4426950408889634 / 128 ** 0.5
NAME = "recurrent_scan__mha_block_cached__mixer_s_mlp__prompt_kernel"
P = dict(x=64, k=66, v=68, wq=70, wo=72, w1=76, w2=78, w3=80, w4=82, out=84, dbg=86, ws=88)
PAT = 1; PFD = 10; L16 = 11; T = 12; ST1 = 28
KD = 32; VD = 36; WD = 38; WA = 40; XA = 48; TRA = 49; TRB = 50; TRC = 51; PATB = 52; PCNT = 61; XD = 63
OOB = 0x7fff0000
PTS = []
OPT = dict(pace=72, pace5=64)
def pt(a, name):
    if name in PTS: g_mid(a, PTS.index(name))
    if "CA:" + name in PTS: a.I("s_memtime s[36:37]\ns_memrealtime s[38:39]")
    if "CB:" + name in PTS: a.I("s_memtime s[40:41]\ns_memrealtime s[100:101]")

def pat_regs(a, dst, pitch):
    a.I(f"s_mov_b32 s90, {(1<<32)//18 + 1}\ns_mov_b32 s91, {pitch}")
    for p in range(9):
        a.I(f"""
        v_add_u32 v{T}, {p*64}, v0
        v_mul_hi_u32 v{T+1}, v{T}, s90
        v_mul_u32_u24 v{T+2}, 18, v{T+1}
        v_sub_u32 v{T+2}, v{T}, v{T+2}
        v_mul_lo_u32 v{T+1}, v{T+1}, s91
        v_lshl_add_u32 v{dst+p}, v{T+2}, 4, v{T+1}
        """)
        if p % 4: a.I(f"v_subrev_u32 v{dst+p}, {(p%4)*1024}, v{dst+p}")

def dma_slab(pat, srdW, s_soff, goff, m0expr, tag):
    r = []
    for p in range(9):
        r.append(m0expr((p // 4) * 4096))
        r.append(f"s_add_u32 s3, s{s_soff}, {goff + (0 if pat is not None else (p // 4) * 4096)}")
        r.append(("vm", tag, f"buffer_load_dwordx4 v{pat+p if pat is not None else L16}, s[{srdW}:{srdW+3}], s3 offen offset:{(p%4)*1024} lds"))
    return r

def a_reads(dst, off):
    base = off // 64512; o = off - base * 64512
    assert o + 16*288 + 256 < 65536, off
    return [f"ds_read_b64_tr_b16 {ar(dst + nt*4 + 2*m, 2)}, v{TRA+base} offset:{o + m*16*288 + nt*32}" for nt in range(9) for m in range(2)]

_lbl = [0]
def signal(a, inc, srd_=56):
    _lbl[0] += 1; l = f"L_sig{_lbl[0]}"
    au = a.auto; a.auto = False
    a.I(f"""
    s_cmp_lg_u32 s24, 0
    s_cbranch_scc1 {l}
    v_mov_b32 v{T}, 0
    v_mov_b32 v{T+1}, {inc:#x}
    s_mov_b64 exec, 1
    buffer_atomic_add v{T+1}, v{T}, s[{srd_}:{srd_+3}], s33 offen
    s_mov_b64 exec, -1
    """)
    a.label(l); a.auto = au

def poll_issue(a, tag, mask_code, srd_=56, soff="0", front=True):
    au = a.auto; a.auto = False
    a.I(mask_code)
    a.I(f"""
    s_mov_b64 s[42:43], vcc
    s_cmp_eq_u32 s24, 0
    s_cselect_b64 vcc, s[42:43], 0
    v_mov_b32 v{T}, {OOB:#x}
    v_lshlrev_b32 v{T+1}, 2, v0
    v_cndmask_b32 v{PCNT+1}, v{T}, v{T+1}, vcc
    """)
    a.auto = au
    a.bg_add([("vm", tag, f"buffer_load_dword v{PCNT}, v{PCNT+1}, s[{srd_}:{srd_+3}], {soff} offen sc1")], front=front)

def poll_check(a, tag, shift, want, srd_=56, soff="0"):
    _lbl[0] += 1; l = f"L_poll{_lbl[0]}"
    n = a.vm_wait({tag})
    au = a.auto; a.auto = False
    a.I(f"s_cmp_lg_u32 s24, 0\ns_cbranch_scc1 {l}_ok\ns_waitcnt vmcnt({n})\ns_mov_b32 s35, 400000")
    a.label(l)
    a.I(f"""
    v_bfe_u32 v{T}, v{PCNT}, {shift}, 8
    v_cmp_gt_u32 vcc, {want}, v{T}
    s_nop 1
    s_and_b64 vcc, vcc, s[42:43]
    s_cmp_eq_u64 vcc, 0
    s_cbranch_scc1 {l}_ok
    s_sleep 2
    buffer_load_dword v{PCNT}, v{PCNT+1}, s[{srd_}:{srd_+3}], {soff} offen sc1
    s_waitcnt vmcnt(0)
    s_sub_u32 s35, s35, 1
    s_cmp_lg_u32 s35, 0
    s_cbranch_scc1 {l}
    """)
    a.label(l + "_ok"); a.auto = au

def touch(a, srd_, soff, n, addr=None):
    if not OPT.get("pf", 1): return
    au = a.auto; a.auto = False
    if addr is None:
        a.I(f"v_lshlrev_b32 v{T+9}, 7, v0"); addr = T + 9
    for i in range(n):
        if i: a.I(f"s_add_u32 s{soff}, s{soff}, 8192")
        a.vm_issue("PF"); a.I(f"buffer_load_dword v{PFD}, v{addr}, s[{srd_}:{srd_+3}], s{soff} offen")
    a.auto = au


NTT = set()
class Asm2(Asm):
    def vm_issue(self, tag):
        self._tag = tag; super().vm_issue(tag)
    def I(self, s_):
        t = getattr(self, "_tag", None)
        if t and s_.startswith("buffer_load") and " nt" not in s_ and "sc1" not in s_ and (t.rstrip("0123456789") in NTT):
            s_ = s_.replace(" lds", " nt lds") if s_.endswith(" lds") else s_ + " nt"
        self._tag = None
        super().I(s_)

def gen():
    a = Asm2(); kernel_begin(a, NAME); g_begin(a)
    a.pace = OPT["pace"]
    NT = "nt" if OPT.get("nt", 1) else ""
    def resrd(d, *args, **kw):
        for g in a.bg:
            for x in g:
                assert f"s[{d}:{d+3}]" not in (x[2] if isinstance(x, tuple) else x), ("pending bg item uses SRD", d, x)
        srd(a, d, *args, **kw)
    def W(tags, extra=""):
        n = a.vm_wait(set(tags)); a.I(f"s_waitcnt vmcnt({n}){extra}")
    def noauto(f):
        au = a.auto; a.auto = False; f(); a.auto = au
    a.I(f"""
    s_cmp_ge_u32 s2, 256
    s_cbranch_scc1 L_exit
    s_load_dwordx16 s[64:79], s[0:1], 0
    s_load_dwordx8 s[80:87], s[0:1], 64
    s_load_dwordx2 s[88:89], s[0:1], 96
    s_getpc_b64 s[12:13]
    """)
    a.label("L_pc0")
    a.I(f"""
    s_sub_u32 s12, s12, L_pc0-{NAME}
    s_subb_u32 s13, s13, 0
    s_mov_b32 s14, L_code_end-{NAME}
    s_mov_b32 s15, 0x00020000
    s_lshr_b32 s34, s2, 3
    s_lshl_b32 s33, s34, 12
    v_lshlrev_b32 v2, 4, v0
    buffer_load_dwordx4 v[252:255], v2, s[12:15], s33 offen
    v_lshrrev_b32 v1, 6, v0
    v_and_b32 v0, 63, v0
    s_and_b32 s33, s2, 7
    v_readfirstlane_b32 s24, v1
    s_lshl_b32 s48, s33, 3
    s_lshr_b32 s35, s34, 2
    s_add_u32 s48, s48, s35               ; qb32
    v_lshrrev_b32 v{T}, 3, v0
    v_mul_u32_u24 v{T+2}, 1152, v{T}
    v_and_b32 v{T+1}, 7, v0
    v_lshl_add_u32 v{XA}, v{T+1}, 4, v{T+2}
    s_lshl_b32 s26, s48, 2
    s_add_u32 s26, s26, s24
    s_mul_i32 s26, s26, {8*1152}
    s_mov_b32 s10, {SZ_ACT:#x}
    s_mov_b32 s11, 0x00020000
    s_waitcnt lgkmcnt(0)
    s_mov_b32 s8, s{P['x']}
    s_mov_b32 s9, s{P['x']+1}
    """)
    a.vm_issue("PF"); pt(a, 'ka')
    V_B = 64; V_X = 128; ACC1 = 96; AA1 = 168; RAW = 208
    for j in range(9):
        a.vm_issue("B"); a.I(f"buffer_load_dwordx4 {vr(RAW + j*4, 4)}, v{XA}, s[8:11], s26 offen offset:{j*128}")
    a.I(f"""
    s_lshl_b32 s0, s34, 2
    s_add_u32 s0, s0, s24
    s_mul_i32 s35, s0, 5184
    """)
    pt(a, 'xi')
    srd(a, 16, P['w1'], 576*1152)
    touch(a, 16, 35, 1); pt(a, 'tw1')
    a.I(f"""
    s_lshl_b32 s31, s33, 2
    s_lshr_b32 s35, s34, 3
    s_add_u32 s31, s31, s35               ; head
    s_and_b32 s32, s34, 7                 ; Q (attention)
    s_and_b32 s49, s34, 3                 ; nb
    s_and_b32 s50, s33, 1
    s_lshl_b32 s50, s50, 2
    s_add_u32 s50, s50, s35               ; Q4
    s_lshr_b32 s51, s33, 1
    s_lshl_b32 s51, s51, 3
    s_add_u32 s51, s51, s32               ; fb
    s_lshr_b32 s52, s33, 2
    s_lshl_b32 s52, s52, 3
    s_lshr_b32 s35, s34, 2
    s_add_u32 s52, s52, s35
    s_and_b32 s54, s33, 3                 ; kq
    s_mul_i32 s30, s24, {SLAB}
    s_lshl_b32 s55, s24, 12
    s_mul_i32 s33, s49, 288
    s_cmp_ge_u32 s24, 2
    s_cselect_b32 s34, 5, 0
    s_mul_i32 s60, s49, 9
    s_add_u32 s60, s60, s34               ; ntg0
    s_and_b32 s61, s24, 1                 ; qt
    s_mul_i32 s53, s61, 9
    s_add_u32 s53, s53, s34
    s_lshl_b32 s53, s53, 10
    s_lshl_b32 s62, s48, 1
    s_add_u32 s62, s62, s61
    """)
    srd(a, 4, P['w1'], 0, add_lo=33)
    a.I(f"s_sub_u32 s6, {576*1152}, s33")
    pat_regs(a, PAT, 1152)
    a.I(f"v_lshlrev_b32 v{L16}, 4, v0\ns_mul_i32 s25, s24, {32*1152}")
    def slot13(j): return (j % 4) * 4 * SLAB
    def loadW13(j, tagp):
        return dma_slab(PAT, 4, 25, j*128*1152, lambda o: f"s_add_u32 m0, s30, {slot13(j) + o}", f"{tagp}{j}")
    pt(a, 'w0a')
    NW0 = OPT.get("nw0", 3)
    for j in range(NW0):
        for x in loadW13(j, "W"): emit(a, x)
    pt(a, 'w1b')
    for j in range(NW0, 3): a.bg_add(loadW13(j, "W"))
    srd(a, 56, P['dbg'], 256)
    srd(a, 12, P['ws'], 0x10000, add_imm=WS_CX)
    XIMG = 3*4*SLAB; XQL = 16*SLAB
    XW = T + 12; XR = T + 13; XQW = T + 14
    a.I(f"""
    v_lshrrev_b32 v{T}, 4, v0
    v_bfe_u32 v{T+1}, v0, 2, 2
    v_lshl_add_u32 v{T}, v{T}, 3, v{T+1}
    v_mul_u32_u24 v{T}, 288, v{T}
    v_and_b32 v{T+1}, 3, v0
    v_lshl_add_u32 v{TRA}, v{T+1}, 3, v{T}
    v_lshlrev_b32 v{PCNT+1}, 2, v0
    v_add_u32 v{TRA}, s30, v{TRA}
    v_add_u32 v{TRB}, 64512, v{TRA}
    s_lshl_b32 s33, s52, 2
    s_add_u32 s33, s33, s49
    s_lshl_b32 s33, s33, 8
    s_or_b32 s34, s24, s54
    s_cmp_eq_u32 s34, 0
    s_cselect_b32 s33, s33, {OOB:#x}
    v_mov_b32 v{T}, 0
    """)
    a.vm_issue("CLR"); a.I(f"buffer_store_dword v{T}, v{PCNT+1}, s[12:15], s33 offen sc1")
    a.I(f"""
    v_and_b32 v{T}, 15, v0
    v_mul_u32_u24 v{T}, 1152, v{T}
    v_lshrrev_b32 v{T+1}, 4, v0
    v_lshl_add_u32 v{XD}, v{T+1}, 3, v{T}
    s_lshl_b32 s33, s24, 3
    v_lshrrev_b32 v{T}, 3, v0
    v_add_u32 v{T}, s33, v{T}
    v_bfe_u32 v{T+1}, v{T}, 1, 3
    v_and_b32 v{T+2}, 7, v0
    v_xor_b32 v{T+1}, v{T+1}, v{T+2}
    v_mul_u32_u24 v{T+3}, 1152, v{T}
    v_lshl_add_u32 v{XW}, v{T+1}, 4, v{T+3}
    v_add_u32 v{XW}, {XIMG}, v{XW}
    v_and_b32 v{T}, 15, v{T}
    v_and_b32 v{T+1}, 3, v0
    v_lshl_add_u32 v{T}, v{T+1}, 4, v{T}
    v_lshlrev_b32 v{T}, 4, v{T}
    s_lshr_b32 s33, s24, 1
    s_mul_i32 s33, s33, 5120
    s_add_u32 s33, s33, {XQL}
    v_add_u32 v{XQW}, s33, v{T}
    v_and_b32 v{T}, 15, v0
    v_lshrrev_b32 v{T+1}, 4, v0
    s_lshl_b32 s33, s61, 2
    v_add_u32 v{T+1}, s33, v{T+1}
    v_lshrrev_b32 v{T+2}, 1, v{T}
    v_xor_b32 v{T+1}, v{T+1}, v{T+2}
    v_mul_u32_u24 v{T}, 1152, v{T}
    v_lshl_add_u32 v{XR}, v{T+1}, 4, v{T}
    s_lshr_b32 s33, s24, 1
    s_lshl_b32 s33, s33, 7
    s_add_u32 s33, s33, {XIMG}
    v_add_u32 v{XR}, s33, v{XR}
    v_lshrrev_b32 v{T}, 4, v0
    v_and_b32 v{T+1}, 15, v0
    v_xor_b32 v{T+2}, v{T+1}, v{T}
    v_lshlrev_b32 v{T+2}, 4, v{T+2}
    v_lshl_add_u32 v{KD}, v{T}, 8, v{T+2}
    v_xor_b32 v{KD+1}, 64, v{KD}
    v_xor_b32 v{KD+2}, 0x80, v{KD}
    v_xor_b32 v{KD+3}, 0xc0, v{KD}
    v_lshlrev_b32 v{T+2}, 1, v{T}
    v_xor_b32 v{T+2}, v{T+1}, v{T+2}
    v_lshlrev_b32 v{T+2}, 4, v{T+2}
    v_lshl_add_u32 v{VD}, v{T}, 8, v{T+2}
    v_xor_b32 v{VD+1}, 0x80, v{VD}
    v_lshl_add_u32 v{WD}, v{T}, 13, v{T+2}
    v_xor_b32 v{WD+1}, 0x80, v{WD}
    v_bfe_u32 v{T+1}, v0, 2, 2
    v_lshl_add_u32 v{T+2}, v{T}, 3, v{T+1}
    v_and_b32 v{T}, 1, v{T}
    v_lshl_add_u32 v{T}, v{T}, 2, v{T+1}
    v_lshlrev_b32 v{T}, 1, v{T}
    v_and_b32 v{T+1}, 3, v0
    v_xor_b32 v{T}, v{T}, v{T+1}
    v_lshlrev_b32 v{T}, 4, v{T}
    v_lshl_add_u32 v{WA}, v{T+2}, 8, v{T}
    s_lshl_b32 s33, s32, 4
    s_lshl_b32 s34, s24, 2
    s_add_u32 s46, s33, s34              ; first q tile of this wave (attention rows)
    s_mul_i32 s27, s46, {18*1024}
    s_add_u32 s28, s27, {18*1024}
    s_add_u32 s29, s27, {36*1024}
    s_add_u32 s45, s27, {54*1024}
    s_lshl_b32 s34, s31, 8
    s_lshl_b32 s44, s24, 17
    """)
    srd(a, 12, P['wq'], 0, add_lo=34)
    a.I("s_sub_u32 s14, 0x480000, s34")
    srd(a, 20, P['ws'], SZ_ACT, add_imm=WS_XQ)
    for t in range(1, 4): a.I(f"v_xor_b32 v{WA+t}, {t*64}, v{WA}")
    for t in range(4): a.I(f"v_add_u32 v{WA+4+t}, 0x10000, v{WA+t}")
    XS = [27, 28, 29, 45]
    TBL = [74, 75, 1]
    a.I("s_and_b32 s33, s31, 3\ns_lshl_b32 s33, s33, 1\ns_add_u32 s33, s33, s32\ns_mov_b32 s74, 0\ns_mov_b32 s75, 0\ns_mov_b32 s1, 0")
    if not OPT.get("rot", 0): a.I("s_mov_b32 s33, 0")
    for c in range(9):
        a.I(f"s_add_u32 s34, s33, {c}\ns_sub_u32 s35, s34, 9\ns_cmp_ge_u32 s34, 9\ns_cselect_b32 s34, s35, s34\ns_sub_u32 s35, s34, 9\ns_cmp_ge_u32 s34, 9\ns_cselect_b32 s34, s35, s34\ns_lshl_b32 s34, s34, {3 + 8*(c%4)}\ns_or_b32 s{TBL[c//4]}, s{TBL[c//4]}, s34")
    def cbfe(c): return f"s_bfe_u32 s3, s{TBL[c//4]}, {(8 << 16) | (8*(c%4)):#x}"
    def xset(c): s_ = c % 6; return 32 * s_ if s_ < 4 else 192 + 32*(s_-4)
    def ld_x(c):
        r = []
        for qt in range(4):
            for kl in range(2):
                r += [cbfe(c), "s_lshl_b32 s3, s3, 8", f"s_add_u32 s3, s3, s{XS[qt]}",
                      ("vm", f"X{c}", f"buffer_load_dwordx4 {ar(xset(c) + (kl*4+qt)*4, 4)}, v{L16}, s[20:23], s3 offen offset:{kl*1024}")]
        return r
    def wq_lds(c): return 16384*c if c < 5 else 98304 + 16384*(c-5)
    def dma_wq(c):
        r = []
        for i in range(4):
            r.append(f"s_add_u32 m0, s55, {wq_lds(c) + i*1024}")
            r += [cbfe(c), "s_lshl_b32 s3, s3, 16", "s_add_u32 s3, s3, s44", f"s_add_u32 s3, s3, {i*4*8192}"] if i else [cbfe(c), "s_lshl_b32 s3, s3, 16", "s_add_u32 s3, s3, s44"]
            r.append(("vm", f"Q{c}", f"buffer_load_dwordx4 v{WD+(i>>1)}, s[12:15], s3 offen lds"))
        return r
    def pf_wq():
        srd(a, 16, P['wq'], 0x480000)
        a.I(f"""
        s_mul_i32 s35, s0, 36
        v_min_u32 v{T}, 35, v0
        v_add_u32 v{T}, s35, v{T}
        v_lshrrev_b32 v{T+1}, 3, v{T}
        v_and_b32 v{T}, 7, v{T}
        v_lshlrev_b32 v{T}, 7, v{T}
        v_lshl_add_u32 v{T}, v{T+1}, 13, v{T}
        s_and_b32 s35, s2, 7
        s_lshl_b32 s35, s35, 10
        """)
        touch(a, 16, 35, 1, addr=T)
    if OPT.get('pfwq', 2) == 1: pf_wq()
    pt(a, 'xw'); W(["B"]); pt(a, 'xarr')
    a.auto = True
    for r in range(36): a.I(f"v_lshlrev_b32 v{V_X+2*r}, 16, v{RAW+r}\nv_and_b32 v{V_X+2*r+1}, 0xffff0000, v{RAW+r}")
    def red8(d):
        a.I(f"""v_add_f32 v{d}, v{d}, v{d+1}
        s_nop 1
        v_add_f32_dpp v{d}, v{d}, v{d} quad_perm:[1,0,3,2] row_mask:0xf bank_mask:0xf
        s_nop 1
        v_add_f32_dpp v{d}, v{d}, v{d} quad_perm:[2,3,0,1] row_mask:0xf bank_mask:0xf
        s_nop 1
        v_add_f32_dpp v{d}, v{d}, v{d} row_half_mirror row_mask:0xf bank_mask:0xf""")
    d = T + 4
    a.I(f"v_pk_add_f32 v[{d}:{d+1}], v[{V_X}:{V_X+1}], v[{V_X+2}:{V_X+3}]\nv_pk_add_f32 v[{d+2}:{d+3}], v[{V_X+4}:{V_X+5}], v[{V_X+6}:{V_X+7}]")
    for e in range(8, 72, 2): a.I(f"v_pk_add_f32 v[{d+(e&2)}:{d+(e&2)+1}], v[{d+(e&2)}:{d+(e&2)+1}], v[{V_X+e}:{V_X+e+1}]")
    a.I(f"v_pk_add_f32 v[{d}:{d+1}], v[{d}:{d+1}], v[{d+2}:{d+3}]")
    red8(d)
    a.I(f"s_mov_b32 s47, {f32(-1.0/576):#x}\nv_mul_f32 v{d}, s47, v{d}")
    for e in range(0, 72, 2): a.I(f"v_pk_add_f32 v[{V_X+e}:{V_X+e+1}], v[{V_X+e}:{V_X+e+1}], v[{d}:{d+1}] op_sel_hi:[1,0]")
    a.I(f"v_pk_mul_f32 v[{d}:{d+1}], v[{V_X}:{V_X+1}], v[{V_X}:{V_X+1}]\nv_pk_mul_f32 v[{d+2}:{d+3}], v[{V_X+2}:{V_X+3}], v[{V_X+2}:{V_X+3}]")
    for e in range(4, 72, 2): a.I(f"v_pk_fma_f32 v[{d+(e&2)}:{d+(e&2)+1}], v[{V_X+e}:{V_X+e+1}], v[{V_X+e}:{V_X+e+1}], v[{d+(e&2)}:{d+(e&2)+1}]")
    a.I(f"v_pk_add_f32 v[{d}:{d+1}], v[{d}:{d+1}], v[{d+2}:{d+3}]")
    red8(d)
    a.I(f"""
    s_mov_b32 s34, {f32(EPS):#x}
    s_mov_b32 s47, {f32(1.0/576):#x}
    s_mov_b32 s33, {f32(CQ):#x}
    v_mul_f32 v{d}, s47, v{d}
    v_add_f32 v{d+2}, s34, v{d}
    v_fma_f32 v{d+3}, v{d+2}, s34, v{d}
    v_rsq_f32 v{d+2}, v{d+2}
    v_rsq_f32 v{d}, v{d+3}
    s_nop 0
    v_mul_f32 v{d+2}, s33, v{d+2}
    """)
    a.auto = False
    a.I(f"""
    s_mov_b32 s34, 0x0f0f0f0f
    s_bitcmp1_b32 s49, 0
    s_cselect_b32 s34, 0xf0f0f0f0, s34
    s_mov_b32 s35, s34
    s_bitcmp1_b32 s49, 1
    s_cbranch_scc1 L_xq_odd
    """)
    for par in range(2):
        if par: a.label("L_xq_odd")
        for j in range(par, 9, 2):
            b = V_X + j*8; o = RAW + (j >> 1)*4; t = V_B
            for r in range(4): a.I(f"v_pk_mul_f32 v[{t+2*r}:{t+2*r+1}], v[{b+2*r}:{b+2*r+1}], v[{d+2}:{d+3}] op_sel_hi:[1,0]")
            for r in range(4): a.I(f"v_cvt_pk_bf16_f32 v{o+r}, v{t+2*r}, v{t+2*r+1}")
        a.I("s_mov_b64 exec, s[34:35]")
        for j in range(par, 9, 2): a.I(f"ds_write_b128 v{XQW}, {vr(RAW + (j >> 1)*4, 4)} offset:{(j >> 1)*1024}")
        a.I("s_mov_b64 exec, -1")
        if par == 0: a.I("s_branch L_xq_done")
    a.label("L_xq_done"); a.auto = True
    for j in range(9):
        b = V_X + j*8
        for r in range(4): a.I(f"v_pk_mul_f32 v[{b+2*r}:{b+2*r+1}], v[{b+2*r}:{b+2*r+1}], v[{d}:{d+1}] op_sel_hi:[1,0]")
        for r in range(4): a.I(f"v_cvt_pk_bf16_f32 v{b+r}, v{b+2*r}, v{b+2*r+1}")
        a.I(f"ds_write_b128 v{XW}, {vr(b, 4)} offset:{j*128}")
    W(["W0"], " lgkmcnt(0)"); a.I("s_barrier")
    a.I(f"s_lshl_b32 s33, s24, 10\ns_add_u32 s33, s33, {XQL}\nv_add_u32 v{T}, s33, v{L16}")
    for k_ in range(3): a.I(f"ds_read_b128 {vr(RAW + k_*4, 4)}, v{T} offset:{k_*4096}")
    for i in range(5):
        for qt in range(2): a.I(f"ds_read_b128 {vr(V_B + (i*2+qt)*4, 4)}, v{XR} offset:{qt*18432 + i*256}")
    a.auto = False
    a.I("s_waitcnt lgkmcnt(10)")
    for k_ in range(3):
        a.I(f"""
        s_add_u32 s33, s24, {4*k_}
        s_cmp_ge_u32 s33, 5
        s_cselect_b32 s34, 1, 0
        s_mul_i32 s35, s34, 5
        s_sub_u32 s35, s33, s35
        s_lshl_b32 s35, s35, 2
        s_add_u32 s35, s35, s49               ; ks
        s_lshl_b32 s47, s48, 1
        s_add_u32 s34, s34, s47
        s_mul_i32 s34, s34, 18
        s_add_u32 s34, s34, s35
        s_lshl_b32 s34, s34, 10
        s_cmp_ge_u32 s35, 18
        s_cselect_b32 s34, {OOB:#x}, s34
        s_cmp_ge_u32 s33, 10
        s_cselect_b32 s34, {OOB:#x}, s34
        """)
        a.vm_issue("XQ"); a.I(f"buffer_store_dwordx4 {vr(RAW + k_*4, 4)}, v{L16}, s[20:23], s34 offen sc1")
    def nat_reads(dst, off):
        base = off // 64512; o = off - base * 64512
        return [f"ds_read_b64_tr_b16 {ar(dst + nt*4 + 2*m, 2)}, v{TRA+base} offset:{o + m*4*288 + nt*32}" for nt in range(9) for m in range(2)]
    for x in nat_reads(AA1, 0): a.I(x)
    a.I(f"s_waitcnt lgkmcnt(0)\ns_barrier\ns_cmp_lt_u32 s24, 2\ns_cbranch_scc1 L_b4ok")
    for r in range(8): a.I(f"v_mov_b32 v{V_B+32+r}, 0")
    a.label("L_b4ok"); a.auto = True
    a.bg_add(loadW13(3, "W") + loadW13(4, "W"), front=True)
    pt(a, 'ln')
    if OPT.get('pfwq', 2) == 2: a.force(None); noauto(pf_wq)
    RED = 90112; XQS = OPT.get('xqs', 2)
    def small_gemm_steps(tagp, accr, AA, bfrag, late_w4, a_reads=a_reads, last_need=()):
        if late_w4:
            W([f"{tagp}0"])
            for x in a_reads(AA, 0): a.I(x)
        for i in range(5):
            W([f"{tagp}{min(i+1, 4)}", f"B{i}"] + (list(last_need) if i == XQS else []), " lgkmcnt(0)")
            if last_need and i == XQS:
                a.I("s_barrier\ns_lshr_b32 s33, s48, 3\ns_lshl_b32 s33, s33, 5\ns_add_u32 s33, s33, 4"); signal(a, 0x100)
            if late_w4 and i == 0: a.bg_add(loadW13(4, tagp), front=True)
            rd = a_reads(AA + 36*((i+1) % 2), slot13(i+1)) if i < 4 else []
            k = 0
            for nt in range(9):
                for qt in range(2):
                    d = accr(qt*9+nt)
                    a.I(mf(d, ar(AA + 36*(i % 2) + nt*4, 4), bfrag(i, qt), d if i else "0"))
                    if k < len(rd): a.I(rd[k]); k += 1
        a.I(f"s_nop 7\ns_barrier\ns_mul_i32 s33, s24, {18*1024}\ns_add_u32 s33, s33, {RED}\nv_add_u32 v{T}, s33, v{L16}")
    def acc_to_lds(accr):
        for t in range(18): a.I(f"ds_write_b128 v{T}, {accr(t)} offset:{t*1024}")
    RES = 64; BUF = 84; XL = 116; S1V = 64
    def reduce_tiles():
        a.I(f"s_waitcnt lgkmcnt(0)\ns_barrier\ns_add_u32 s33, s53, {RED}\nv_add_u32 v{T}, s33, v{L16}")
        def rd(j):
            for w in range(4): a.I(f"ds_read_b128 {vr(BUF + (j%2)*16 + w*4, 4)}, v{T} offset:{w*18*1024 + j*1024}")
        rd(0)
        for j in range(5):
            if j < 4: rd(j + 1)
            a.I(f"s_waitcnt lgkmcnt({4 if j < 4 else 0})")
            b = BUF + (j%2)*16
            for h in (0, 2):
                a.I(f"v_pk_add_f32 v[{b+h}:{b+h+1}], v[{b+h}:{b+h+1}], v[{b+4+h}:{b+5+h}]")
                a.I(f"v_pk_add_f32 v[{b+8+h}:{b+9+h}], v[{b+8+h}:{b+9+h}], v[{b+12+h}:{b+13+h}]")
                a.I(f"v_pk_add_f32 v[{RES+j*4+h}:{RES+j*4+h+1}], v[{b+h}:{b+h+1}], v[{b+8+h}:{b+9+h}]")
    def piece_off(j, dst):
        a.I(f"s_add_u32 s33, s60, {j}\ns_lshr_b32 s{dst}, s33, 1\ns_lshl_b32 s{dst}, s{dst}, 10\ns_and_b32 s33, s33, 1\ns_lshl_b32 s33, s33, 3\ns_add_u32 s{dst}, s{dst}, s33")
        if j == 4: a.I(f"s_cmp_ge_u32 s24, 2\ns_cselect_b32 s{dst}, {OOB:#x}, s{dst}")
    acc1 = lambda t: ar(ACC1 + t*4, 4)
    small_gemm_steps("W", acc1, AA1, lambda i, qt: vr(V_B + (i*2+qt)*4, 4), False, nat_reads, ["XQ", "CLR"]); pt(a, 't1m')
    acc_to_lds(acc1)
    NQ0 = OPT.get("nq0", 2)
    for c in range(NQ0): a.bg_add(dma_wq(c))
    a.I(f"""
    v_lshrrev_b32 v{T+2}, 2, v0
    v_mul_u32_u24 v{T+2}, 288, v{T+2}
    v_and_b32 v{T+3}, 3, v0
    v_lshl_add_u32 v{TRA}, v{T+3}, 3, v{T+2}
    v_add_u32 v{TRA}, s30, v{TRA}
    v_add_u32 v{TRB}, 64512, v{TRA}
    v_add_u32 v{TRC}, 129024, v{TRA}
    """)
    reduce_tiles()
    poll_issue(a, "P0", "s_lshl_b32 s33, s32, 3\ns_add_u32 s33, s33, 1\nv_cmp_eq_u32 vcc, s33, v0\ns_nop 1", front=False)
    a.I(f"s_mov_b32 s92, {f32(C2):#x}\ns_mov_b32 s93, {f32(C2):#x}\nv_mov_b32 v{T+4}, {f32(C1):#x}\nv_mov_b32 v{T+5}, {f32(C1):#x}")
    srd(a, 16, P['ws'], SZ_ACT, add_imm=WS_H)
    a.I(f"""
    s_cmp_eq_u32 s49, 0
    s_cselect_b32 s47, 1, -1
    s_cmp_eq_u32 s49, 2
    s_cselect_b32 s47, 2, s47
    s_cmp_eq_u32 s49, 3
    s_cselect_b32 s47, -2, s47
    s_lshl_b32 s33, s62, 4
    s_add_u32 s33, s33, s47
    v_and_b32 v{T}, 15, v0
    v_add_u32 v{T}, s33, v{T}
    v_cmp_gt_u32 vcc, 0x800, v{T}
    v_and_b32 v{T}, 0x7ff, v{T}
    v_lshrrev_b32 v{T+1}, 4, v{T}
    v_mul_u32_u24 v{T+1}, {18*1024}, v{T+1}
    v_and_b32 v{T}, 15, v{T}
    v_lshl_add_u32 v{T+1}, v{T}, 4, v{T+1}
    v_and_b32 v{T}, 0x30, v0
    v_lshl_add_u32 v{T+2}, v{T}, 4, v{T+1}
    """)
    for j in range(5):
        b = RES + j*4
        gelu4(a, b, BUF + (j%2)*4, T + 4, 92)
        a.I(f"v_cvt_pk_bf16_f32 v{b}, v{b}, v{b+1}\nv_cvt_pk_bf16_f32 v{b+1}, v{b+2}, v{b+3}")
        a.I(f"v_cndmask_b32 v{b}, 0, v{b}, vcc\nv_cndmask_b32 v{b+1}, 0, v{b+1}, vcc")
        piece_off(j, 35)
        a.vm_issue("H"); a.I(f"buffer_store_dwordx2 v[{b}:{b+1}], v{T+2}, s[16:19], s35 offen sc1")
    pt(a, 'c0a'); poll_check(a, "P0", 8, 32); a.I("s_barrier"); pt(a, 'c0b')
    a.bg_add(ld_x(0) + ld_x(1), front=True)
    for c in range(2, 6): a.bg_add((dma_wq(c) if NQ0 <= c < 5 else []) + ld_x(c))
    pt(a, 't1')
    def abuf(y): return 128 + 32 * (y % 2)
    def w_reads(y):
        o = wq_lds(y >> 1) + (y & 1) * 8192
        base = WA + (4 if 65536 <= o < 131072 else 0); o %= 65536
        return [f"ds_read_b64_tr_b16 {ar(abuf(y) + (t*2+b)*4 + 2*m, 2)}, v{base+t} offset:{o + m*1024 + 8*b}" for t in range(4) for b in range(2) for m in range(2)]
    a.I("s_mul_i32 s33, s49, 288")
    resrd(4, P['w2'], 0, add_lo=33)
    a.I(f"""
    s_sub_u32 s6, {576*1152}, s33
    s_mul_i32 s26, s48, {2*18*1024}
    s_lshl_b32 s33, s24, 10
    s_add_u32 s26, s26, s33
    s_add_u32 s94, s26, {18*1024}
    s_add_u32 s95, s26, 16384
    s_add_u32 s47, s94, 16384
    s_cmp_ge_u32 s24, 2
    s_cselect_b32 s95, {OOB:#x}, s95
    s_cselect_b32 s47, {OOB:#x}, s47
    v_and_b32 v{T+14}, 15, v0
    v_lshlrev_b32 v{T+14}, 4, v{T+14}
    v_bfe_u32 v{T+15}, v0, 5, 1
    v_lshl_add_u32 v{T+14}, v{T+15}, 8, v{T+14}
    v_bfe_u32 v{T+15}, v0, 4, 1
    v_lshl_add_u32 v{T+14}, v{T+15}, 3, v{T+14}
    s_mul_i32 s63, s62, {18*1024}
    s_lshl_b32 s34, s60, 9
    s_add_u32 s63, s63, s34
    """)
    xl_items = [("vm", "XL", f"buffer_load_dwordx2 v[{XL+2*j}:{XL+2*j+1}], v{T+14}, s[20:23], s63 offen offset:{j*512}") for j in range(5)]
    def sig1():
        a.I("s_lshl_b32 s33, s48, 2"); signal(a, 1)
    def bT3(i): return 192 + i*8
    def pf_w2():
        a.I(f"s_mul_i32 s35, s0, 5184\ns_mul_i32 s33, s49, 288\ns_sub_u32 s56, s4, s33") if False else None
        srd(a, 56, P['w2'], 576*1152); a.I("s_mul_i32 s35, s0, 5184"); touch(a, 56, 35, 1); srd(a, 56, P['dbg'], 256)
    def pf_kv():
        a.I(f"s_lshl_b32 s33, s31, 19\ns_and_b32 s35, s0, 31\ns_lshl_b32 s35, s35, 11\ns_add_u32 s35, s35, s33\nv_and_b32 v{T}, 15, v0\nv_lshlrev_b32 v{T}, 7, v{T}")
        srd(a, 56, P['k'], 0x1000000); touch(a, 56, 35, 1, addr=T)
        srd(a, 56, P['v'], 0x1000000); touch(a, 56, 35, 1, addr=T); srd(a, 56, P['dbg'], 256)
    def iss1():
        poll_issue(a, "P1", f"v_subrev_u32 v{T+2}, s48, v0\nv_add_u32 v{T+2}, 1, v{T+2}\nv_and_b32 v{T+2}, 63, v{T+2}\nv_cmp_gt_u32 vcc, 3, v{T+2}\ns_nop 1")
    def chk1():
        pt(a, 'c1a'); poll_check(a, "P1", 0, 4); pt(a, 'c1b')
    def ldb3():
        it = []
        for i in range(5):
            for qt in range(2):
                it.append(f"s_add_u32 s3, s{(26, 94)[qt]}, {i*4096}" if i < 4 else f"s_mov_b32 s3, s{(95, 47)[qt]}")
                it.append(("vm", f"B{i}", f"buffer_load_dwordx4 {ar(bT3(i) + qt*4, 4)}, v{L16}, s[16:19], s3 offen"))
        a.bg_add(it + xl_items, front=True)
    def wa_hi():
        for t in range(4): a.I(f"v_add_u32 v{WA+t}, 0x20000, v{WA+t}")
    hooks = {(0, "pre"): [lambda: a.bg_add(dma_wq(5) + dma_wq(6) + dma_wq(7) + dma_wq(8))],
             (1, "post"): [lambda: a.bg_add(ld_x(6)), lambda: noauto(pf_w2)],
             (3, "need"): {"H"}, (3, "bar"): [sig1], (3, "post"): [lambda: a.bg_add(ld_x(7))],
             (5, "bar"): [lambda: a.bg_add(loadW13(0, "U"))], (5, "post"): [lambda: a.bg_add(ld_x(8), front=True)],
             (7, "bar"): [wa_hi], (7, "post"): [lambda: noauto(pf_kv)],
             (9, "bar"): [lambda: a.bg_add(loadW13(1, "U"))],
             (11, "bar"): [lambda: a.bg_add(loadW13(2, "U")), iss1],
             (12, "post"): [chk1], (13, "bar"): [ldb3],
             (15, "bar"): [lambda: a.bg_add(loadW13(3, "U"))]}
    if OPT.get("w2late"):
        hooks[(5, "bar")] = []; hooks[(9, "bar")] = []; hooks[(11, "bar")] = hooks[(11, "bar")][1:]; hooks[(15, "bar")] = []
        hooks[(17, "post")] = [lambda: a.bg_add(loadW13(0, "U") + loadW13(1, "U") + loadW13(2, "U") + loadW13(3, "U"))]
    if OPT.get("nox"):
        XS[:] = [27, 27, 27, 27]
    W(["Q0"]); a.I("s_barrier")
    for x in w_reads(0): a.I(x)
    for x in hooks[(0, "pre")]: x()
    for y in range(18):
        c = y >> 1
        a.C(f"qproj unit {y}"); pt(a, f"u{y}a")
        if y % 2 == 1 and y + 1 < 18:
            W({f"Q{c+1}", f"X{c}"} | hooks.get((y, "need"), set()), " lgkmcnt(0)"); a.I("s_barrier")
        else:
            W([f"X{c}"], " lgkmcnt(0)")
        for x in hooks.get((y, "bar"), []): x()
        rd = w_reads(y + 1) if y + 1 < 18 else []
        k = 0; g = 0
        for tb in range(8):
            for qt in range(4):
                d = vr(128 + (qt*8 + tb)*4, 4)
                a.I(mf(d, ar(abuf(y) + tb*4, 4), ar(xset(c) + ((y & 1)*4+qt)*4, 4), d if y else "0"))
                if g < 24 and g % 3 != 2 and k < len(rd): a.I(rd[k]); k += 1
                g += 1
        for x in hooks.get((y, "post"), []): x()
    pt(a, 'qp')
    QS = 160 * 1024 - 4096
    def cs_exchange(src, n, dst, bufs):
        a.I(f"""
        s_nop 7
        s_barrier
        v_lshrrev_b32 v{T+6}, 4, v0
        v_lshlrev_b32 v{T+6}, 4, v{T+6}
        v_add_u32 v{T+6}, {QS}, v{T+6}
        s_mul_i32 s33, s24, {n*64}
        v_add_u32 v{T+1}, s33, v{T+6}
        """)
        for t in range(n): a.I(f"ds_write_b128 v{T+1}, {src(t)} offset:{t*64}")
        a.I("s_waitcnt lgkmcnt(0)\ns_barrier")
    def cs_sum(n, dst, tmp):
        for w in range(4):
            for t in range(n): a.I(f"ds_read_b128 {vr((dst if w == 0 else tmp + (w-1)*n*4) + t*4, 4)}, v{T+6} offset:{w*n*64 + t*64}")
            if w: a.I("s_waitcnt lgkmcnt(0)") if w == 3 else None
        for t in range(n):
            for h in (0, 2):
                d = dst + t*4 + h; p = [tmp + w*n*4 + t*4 + h for w in range(3)]
                a.I(f"v_pk_add_f32 v[{d}:{d+1}], v[{d}:{d+1}], v[{p[0]}:{p[0]+1}]\nv_pk_add_f32 v[{p[1]}:{p[1]+1}], v[{p[1]}:{p[1]+1}], v[{p[2]}:{p[2]+1}]\nv_pk_add_f32 v[{d}:{d+1}], v[{d}:{d+1}], v[{p[1]}:{p[1]+1}]")
    a.I("s_nop 3")
    for qt in range(4):
        for t in range(4):
            b = 128 + (qt*8 + t*2)*4
            for i in range(4): a.I(f"v_cvt_pk_bf16_f32 v{b+i}, v{b+2*i}, v{b+2*i+1}")
            for i in range(4): a.I(f"v_accvgpr_write_b32 a{AT.A_Q + (qt*4+t)*4 + i}, v{b+i}")
    pt(a, 'qc')
    acc3 = lambda t: vr(128 + t*4, 4); AA3 = 0
    small_gemm_steps("U", acc3, AA3, lambda i, qt: ar(bT3(i) + qt*4, 4), True)
    pt(a, 't3m')
    assert not a.bg
    a.I("s_lshl_b32 s33, s31, 19\ns_mov_b32 s30, s55\ns_mov_b32 s25, s55\ns_mov_b32 s26, s55")
    srd(a, 4, P['k'], 524288, add_lo=33)
    srd(a, 8, P['v'], 524288, add_lo=33)
    AT.V_KD = KD; AT.V_VD = VD; AT.V_L16 = L16; AT.V_T = T
    AT.V_KA = 64; AT.V_VA = 68; AT.V_LS = 76; AT.V_M = 80; AT.V_NEGM = 96
    def selfc(d):
        r = []
        for x in d[1:5]: r += [d[0], "s_nop 0", x]
        return r + [d[5]]
    def kv(lst):
        it = []
        for kind, t in lst: it += selfc(AT.dma_k(a, t) if kind == "k" else AT.dma_v(a, t))
        return it
    a.bg_add(kv((("k", 0), ("k", 1), ("v", 0), ("k", 2))))
    acc_to_lds(acc3)
    reduce_tiles()
    srd(a, 16, P['ws'], SZ_ACT, add_imm=WS_X1)
    a.I(f"""
    s_mul_i32 s47, s62, {18*1024}
    v_add_u32 v{T+2}, s47, v{L16}
    v_mov_b32 v{T+6}, {f32(1.0/CQ):#x}
    """)
    for j in range(5):
        b = RES + j*4; s_ = XL + 2*j; e = BUF + (j%2)*8
        piece_off(j, 35)
        a.I(f"""
        v_lshlrev_b32 v{e}, 16, v{s_}
        v_and_b32 v{e+1}, 0xffff0000, v{s_}
        v_lshlrev_b32 v{e+2}, 16, v{s_+1}
        v_and_b32 v{e+3}, 0xffff0000, v{s_+1}
        v_pk_fma_f32 v[{b}:{b+1}], v[{e}:{e+1}], v[{T+6}:{T+7}], v[{b}:{b+1}] op_sel_hi:[1,0,1]
        v_pk_fma_f32 v[{b+2}:{b+3}], v[{e+2}:{e+3}], v[{T+6}:{T+7}], v[{b+2}:{b+3}] op_sel_hi:[1,0,1]
        v_cvt_pk_bf16_f32 v{e+4}, v{b}, v{b+1}
        v_cvt_pk_bf16_f32 v{e+5}, v{b+2}, v{b+3}
        """)
        a.vm_issue("X1"); a.I(f"buffer_store_dwordx2 v[{e+4}:{e+5}], v{T+2}, s[16:19], s35 offen sc1")
        a.I(f"""
        v_lshlrev_b32 v{b}, 16, v{e+4}
        v_and_b32 v{b+1}, 0xffff0000, v{e+4}
        v_lshlrev_b32 v{b+2}, 16, v{e+5}
        v_and_b32 v{b+3}, 0xffff0000, v{e+5}
        """)
    a.auto = False
    a.I(f"""
    s_cmp_ge_u32 s24, 2
    s_cselect_b32 s92, 0, 1.0
    s_mov_b32 s93, {f32(1/80):#x}
    s_cbranch_scc0 L_five
    s_mov_b32 s93, {f32(1/64):#x}
    v_mov_b32 v{RES+16}, 0
    v_mov_b32 v{RES+17}, 0
    v_mov_b32 v{RES+18}, 0
    v_mov_b32 v{RES+19}, 0
    """)
    a.label("L_five"); a.auto = True
    vals = [RES + e for e in range(20)]
    a.I(f"v_add_f32 v{T+4}, v{vals[0]}, v{vals[1]}")
    for v in vals[2:]: a.I(f"v_add_f32 v{T+4}, v{T+4}, v{v}")
    xlane(a, "v_add_f32", T+4)
    a.I(f"v_mul_f32 v{T+6}, s93, v{T+4}\nv_mul_f32 v{T+7}, s92, v{T+6}\nv_mov_b32 v{T+8}, 0")
    for e, v in enumerate(vals):
        a.I(f"v_sub_f32 v{v}, v{v}, v{T+6 + (1 if e >= 16 else 0)}\nv_fmac_f32 v{T+8}, v{v}, v{v}")
    xlane(a, "v_add_f32", T+8)
    srd(a, 16, P['ws'], 2048*64, add_imm=WS_ST)
    a.I(f"""
    v_mov_b32 v{T+5}, v{T+8}
    s_lshl_b32 s33, s62, 10
    s_lshl_b32 s34, s49, 4
    s_add_u32 s33, s33, s34
    s_lshr_b32 s34, s24, 1
    s_lshl_b32 s34, s34, 3
    s_add_u32 s33, s33, s34
    v_lshlrev_b32 v{T}, 6, v0
    v_cmp_gt_u32 vcc, 16, v0
    v_mov_b32 v{T+1}, {OOB:#x}
    s_nop 0
    v_cndmask_b32 v{T}, v{T+1}, v{T}, vcc
    """)
    a.vm_issue("X1"); a.I(f"buffer_store_dwordx2 v[{T+4}:{T+5}], v{T}, s[16:19], s33 offen sc1")
    pt(a, 't3')
    KA, VA, LS, NEGM = AT.V_KA, AT.V_VA, AT.V_LS, AT.V_NEGM
    a.I(f"""
    v_lshrrev_b32 v{T}, 4, v0
    v_and_b32 v{T+1}, 15, v0
    v_xor_b32 v{T+2}, v{T+1}, v{T}
    v_lshlrev_b32 v{T+2}, 4, v{T+2}
    v_lshl_add_u32 v{KA}, v{T+1}, 8, v{T+2}
    v_xor_b32 v{KA+1}, 64, v{KA}
    v_xor_b32 v{KA+2}, 0x80, v{KA}
    v_xor_b32 v{KA+3}, 0xc0, v{KA}
    v_lshrrev_b32 v{T}, 2, v0
    v_and_b32 v{T+1}, 7, v{T}
    v_and_b32 v{T+2}, 3, v0
    v_lshlrev_b32 v{T+3}, 8, v{T}
    v_lshl_add_u32 v{T+4}, v{T+1}, 5, v{T+3}
    v_lshl_add_u32 v{T+4}, v{T+2}, 3, v{T+4}
    v_add_u32 v{VA}, {AT.VREG}, v{T+4}
    """)
    for dt in range(1, 8): a.I(f"v_xor_b32 v{VA+dt}, {dt*32}, v{VA}")
    def zero_o():
        for r in range(128): a.I(f"v_accvgpr_write_b32 a{AT.A_O + r}, 0")
        for r in range(16): a.I(f"v_mov_b32 v{AT.V_LSA + r}, 0")
    for r in range(4): a.I(f"v_mov_b32 v{AT.V_ONES + r}, 0x3f803f80")
    W(["K0"]); a.I("s_barrier")
    a.bg_add(kv((("v", 1), ("k", 3), ("v", 2))))
    for x in AT.k_reads(0): a.I(x)
    zero_o()
    a.I("s_waitcnt lgkmcnt(0)")
    for x in AT.qk_mfmas(0, False): a.I(x)
    for x in AT.k_reads(1): a.I(x)
    a.force(None); a.auto = False
    PKR = 84; PKT = 80
    a.I(f"s_mov_b32 s90, {(1<<32)//6 + 1}")
    for p in range(3):
        a.I(f"""
        v_add_u32 v{T}, {p*64}, v0
        v_mul_hi_u32 v{T+1}, v{T}, s90
        v_mul_u32_u24 v{T+2}, 6, v{T+1}
        v_sub_u32 v{T+2}, v{T}, v{T+2}
        v_mul_u32_u24 v{T+1}, 1152, v{T+1}
        v_lshl_add_u32 v{PAT+p}, v{T+2}, 4, v{T+1}
        """)
        if p: a.I(f"v_subrev_u32 v{PAT+p}, {p*1024}, v{PAT+p}")
    a.I(f"""
    v_lshrrev_b32 v{T}, 2, v0
    v_mul_u32_u24 v{T}, 96, v{T}
    v_and_b32 v{T+1}, 3, v0
    v_lshl_add_u32 v{PKT}, v{T+1}, 3, v{T}
    s_add_u32 s91, s55, 0x20000
    v_add_u32 v{PKT}, s91, v{PKT}
    s_lshl_b32 s33, s2, 2
    s_add_u32 s33, s33, s24
    s_mul_i32 s63, s33, {SLAB}
    s_add_u32 s92, s33, 64
    s_mul_i32 s92, s92, {32*1152}
    s_add_u32 s92, s92, {3*288}
    s_add_u32 s93, s63, {1024*SLAB}
    s_cmp_ge_u32 s33, 64
    s_cselect_b32 s92, {OOB:#x}, s92
    s_cselect_b32 s93, {OOB:#x}, s93
    s_cmp_lt_u32 s33, 576
    s_cselect_b32 s12, s{P['w4']}, s{P['wo']}
    s_cselect_b32 s13, s{P['w4']+1}, s{P['wo']+1}
    s_mov_b32 s14, {4608*1152:#x}
    s_mov_b32 s34, {(1<<32)//144 + 1:#x}
    s_mov_b32 s35, 144
    s_cbranch_scc1 L_pk0
    s_sub_u32 s33, s33, 576
    s_mov_b32 s14, {4096*1152:#x}
    s_mov_b32 s34, {(1<<32)//128:#x}
    s_mov_b32 s35, 128
    """)
    a.label("L_pk0")
    a.I(f"""
    s_mov_b32 s15, 0x00020000
    s_mul_hi_u32 s34, s33, s34
    s_mul_i32 s35, s34, s35
    s_sub_u32 s33, s33, s35
    s_mul_i32 s33, s33, {32*1152}
    s_mul_i32 s34, s34, 288
    s_add_u32 s94, s33, s34
    s_mov_b32 s95, {OOB:#x}
    """)
    def pk_extra(k, dummy=False):
        if k in (0, 1, 2) and not dummy:
            return {6: ["s_mov_b32 m0, s91", "s_nop 0", ("vm", "PL", f"buffer_load_dwordx4 v{PAT+k}, s[12:15], s94 offen offset:{k*1024} {NT} lds")]}
        if k == 5 and not dummy:
            ex = {52: [lambda: W(["PL"])]}
            for n_ in range(6): ex[53 + 2*n_] = [f"ds_read_b64_tr_b16 {vr(PKR + (n_ >> 1)*4 + (n_ & 1)*2, 2)}, v{PKT} offset:{(n_ & 1)*16*96 + (n_ >> 1)*32}"]
            return ex
        if k in (6, 7):
            so = "s95" if dummy else "s63"
            ex = {}
            for n_ in ((0, 1) if k == 6 else (2,)):
                ex[6 + 12*(n_ & 1)] = [("vm", "PS", f"buffer_store_dwordx4 {vr(PKR + n_*4, 4)}, v{L16}, s[16:19], {so} offen offset:{n_*1024} sc1")]
            return ex
        return None
    srd(a, 20, P['ws'], 0x1000000, add_imm=WS_O)
    srd(a, 16, P['ws'], 1088*SLAB, add_imm=WS_PK)
    LSA = AT.V_LSA
    def rowmax(u, qt, dst):
        b = AT.sbuf(u) + 8*qt
        a.I(f"v_max3_f32 v{dst}, v{b}, v{b+1}, v{b+2}\nv_max3_f32 v{dst}, v{dst}, v{b+3}, v{b+4}\nv_max3_f32 v{dst}, v{dst}, v{b+5}, v{b+6}\nv_max_f32 v{dst}, v{dst}, v{b+7}")
        xlane(a, "v_max_f32", dst)
    for qt in range(4):
        rowmax(0, qt, T)
        for r in range(4): a.I(f"v_sub_f32 v{NEGM + 4*qt + r}, 0, v{T}")
        for r in range(8): a.I(f"v_sub_f32 v{AT.sbuf(0) + 8*qt + r}, v{AT.sbuf(0) + 8*qt + r}, v{T}")
    a.I("s_nop 1")
    pt(a, 'b0'); AT.body2(a, 0); AT.body2(a, 1); pt(a, 'b2')
    W(["X1"]); a.I("s_barrier\ns_lshr_b32 s33, s48, 3\ns_lshl_b32 s33, s33, 5"); signal(a, 0x100)
    for u in range(2, 8): AT.body2(a, u, extra=pk_extra(u, dummy=True))
    pt(a, 'b8')
    a.I("s_mov_b32 s27, 6")
    if 'cyc' in PTS: a.I("s_memtime s[36:37]\ns_memrealtime s[38:39]")
    a.raw(".p2align 6"); a.label("L_att_loop")
    vb = list(a.vm)
    for u in range(8, 16): AT.body2(a, u, extra=pk_extra(u - 8))
    a.I(f"""
    s_add_u32 s94, s94, 96
    s_add_u32 s63, s63, 3072
    s_cmp_eq_u32 s27, 4
    s_cselect_b32 s94, s92, s94
    s_cselect_b32 s63, s93, s63
    s_cselect_b32 s12, s{P['wo']}, s12
    s_cselect_b32 s13, s{P['wo']+1}, s13
    s_cselect_b32 s14, {4096*1152:#x}, s14
    s_sub_u32 s27, s27, 1
    s_cmp_lg_u32 s27, 0
    s_cbranch_scc1 L_att_loop
    """)
    sh = lambda tag, d: tag if tag[0] == "P" else tag[0] + str(int(tag[1:]) + d)
    assert [sh(t, 4) for t in vb] == a.vm, (vb, a.vm)
    a.vm = [sh(t, 20) for t in a.vm]
    pt(a, 'b56')
    if 'cyc' in PTS: a.I("s_memtime s[40:41]\ns_memrealtime s[100:101]")
    for u in range(56, 64):
        if u == 56:
            poll_issue(a, "P3", "s_lshl_b32 s33, s50, 3\nv_cmp_eq_u32 vcc, s33, v0\ns_nop 1"); a.force({"P3"})
        if u == 57:
            a.auto = False
            srd(a, 56, P['w3'], 576*9216)
            a.I(f"s_mul_i32 s35, s0, 81\ns_and_b32 s34, s2, 6\ns_mul_i32 s34, s34, 1152\ns_mov_b32 s33, {(1<<32)//18 + 1}")
            for i in range(2):
                a.I(f"""
                v_min_u32 v{T}, {80 - 64*i if i else 63}, v0
                v_add_u32 v{T}, s35, v{T}
                v_add_u32 v{T}, {64*i}, v{T}
                v_mul_hi_u32 v{T+1}, v{T}, s33
                v_mul_u32_u24 v{T+2}, 18, v{T+1}
                v_sub_u32 v{T}, v{T}, v{T+2}
                v_lshlrev_b32 v{T}, 7, v{T}
                v_mul_u32_u24 v{T+1}, 9216, v{T+1}
                v_add_u32 v{T}, v{T}, v{T+1}
                """)
                touch(a, 56, 34, 1, addr=T)
            srd(a, 56, P['dbg'], 256)
        if u == 58: poll_check(a, "P3", 8, 32)
        if u == 59:
            a.auto = False
            srd(a, 12, P['ws'], SZ_ACT, add_imm=WS_X1)
            a.I(f"s_and_b32 s35, s0, 31\ns_mul_i32 s35, s35, 9216\ns_mul_i32 s34, s50, {16*18*1024}\ns_add_u32 s35, s35, s34")
            touch(a, 12, 35, 2)
        AT.body2(a, u)
    a.I(AT.sm_cvt(63, 14)); a.I(AT.sm_cvt(63, 15))
    for x in AT.v_reads(63): a.I(x)
    pat_regs(a, PATB, 9216)
    a.I(f"""
    s_mul_i32 s30, s24, {SLAB}
    s_mul_i32 s33, s51, 288
    v_subrev_u32 v{TRA}, s30, v{TRA}
    v_add_u32 v{TRB}, 64512, v{TRA}
    v_add_u32 v{TRC}, 129024, v{TRA}
    s_waitcnt lgkmcnt(0)
    """)
    for qt in range(4): a.I(mf(vr(LSA + 4*qt, 4), vr(AT.V_ONES, 4), vr(AT.sbuf(63) + qt*8, 4), vr(LSA + 4*qt, 4)))
    for x in AT.pv_mfmas(63): a.I(x)
    a.I(f"""
    s_mov_b32 s33, {AT.THR:#x}
    v_cmp_nle_f32 vcc, v{LSA}, s33
    v_cmp_nle_f32 s[34:35], v{LSA+4}, s33
    v_cmp_nle_f32 s[44:45], v{LSA+8}, s33
    v_cmp_nle_f32 s[60:61], v{LSA+12}, s33
    s_nop 1
    s_or_b64 vcc, vcc, s[34:35]
    s_or_b64 s[44:45], s[44:45], s[60:61]
    s_or_b64 vcc, vcc, s[44:45]
    s_cmp_lg_u64 vcc, 0
    s_cselect_b32 s33, 1, {OPT.get('fb', 0)}
    v_mov_b32 v{T}, s33
    v_lshlrev_b32 v{T+1}, 2, v0
    v_add_u32 v{T+1}, {QS}, v{T+1}
    s_lshl_b32 s34, s24, 8
    v_add_u32 v{T+5}, s34, v{T+1}
    ds_write_b32 v{T+5}, v{T}
    s_waitcnt lgkmcnt(0)
    s_barrier
    ds_read_b32 v{T}, v{T+1}
    ds_read_b32 v{T+2}, v{T+1} offset:256
    ds_read_b32 v{T+3}, v{T+1} offset:512
    ds_read_b32 v{T+4}, v{T+1} offset:768
    s_waitcnt lgkmcnt(0)
    v_or3_b32 v{T}, v{T}, v{T+2}, v{T+3}
    v_or_b32 v{T}, v{T}, v{T+4}
    s_nop 0
    v_readfirstlane_b32 s33, v{T}
    s_nop 3
    s_cmp_lg_u32 s33, 0
    s_cbranch_scc1 L_fallback
    """)
    a.label("L_att_epi"); pt(a, 'attl')
    a.I("s_mul_i32 s33, s51, 288")
    srd(a, 4, P['w3'], 0, add_lo=33)
    srd(a, 8, P['ws'], SZ_ACT, add_imm=WS_X1)
    srd(a, 16, P['ws'], 2048*64, add_imm=WS_ST)
    a.I(f"""
    s_sub_u32 s6, {576*9216}, s33
    s_mul_i32 s25, s24, {32*9216}
    s_sub_u32 s47, s30, {SLAB}
    s_cmp_eq_u32 s24, 0
    s_cselect_b32 s47, {16*SLAB}, s47
    s_lshl_b32 s62, s50, 4
    s_lshl_b32 s34, s24, 2
    s_add_u32 s62, s62, s34
    s_mul_i32 s26, s62, {18*1024}
    s_lshl_b32 s91, s62, 10
    v_and_b32 v{T+15}, 15, v0
    v_lshlrev_b32 v{T+15}, 6, v{T+15}
    v_and_b32 v{T+9}, 0x30, v0
    v_add_u32 v{T+15}, v{T+15}, v{T+9}
    """)
    def loadW4(j):
        if j < 4: return dma_slab(PATB, 4, 25, j*128*9216, lambda o: f"s_add_u32 m0, s30, {j*4*SLAB + o}", f"Z{j}")
        return dma_slab(PATB, 4, 25, j*128*9216, lambda o: f"s_add_u32 m0, s47, {o}", f"Z{j}")
    NB4 = 11
    def bset4(i): s_ = i % NB4; return 128 + 16*s_ if s_ < 8 else 72 + 16*(s_-8)
    def loadB4(i):
        r = []
        for qt in range(4):
            r.append(f"s_add_u32 s3, s26, {qt*18*1024 + i*1024}")
            r.append(("vm", f"B{i}", f"buffer_load_dwordx4 {ar(bset4(i) + qt*4, 4)}, v{L16}, s[8:11], s3 offen"))
        return r
    STV = 84
    for qt in range(4): a.I(f"v_rcp_f32 v{T+10+qt}, v{LSA+4*qt}")
    a.pace = OPT["pace"]; a.auto = True
    a.bg_add([("vm", "ST", f"buffer_load_dwordx4 {vr(STV + qt*4, 4)}, v{T+15}, s[16:19], s91 offen offset:{qt*1024}") for qt in range(4)])
    a.bg_add(loadW4(0) + loadB4(0) + loadB4(1))
    if OPT.get("t4first", 1): a.force(None)
    a.bg_add(loadW4(1) + loadB4(2) + loadB4(3) + loadW4(2) + loadB4(4) + loadB4(5) + loadW4(3) + loadB4(6) + loadB4(7))
    a.I(f"s_lshl_b32 s33, s46, 17\ns_lshl_b32 s34, s31, 12\ns_add_u32 s63, s33, s34")
    tb = 128
    for qt in range(4):
        for t in range(4):
            src = AT.A_O + (qt*4+t)*8
            tt = tb; tb += 8
            for i in range(8): a.I(f"v_accvgpr_read_b32 v{tt+i}, a{src+i}")
            for i in range(0, 8, 2): a.I(f"v_pk_mul_f32 v[{tt+i}:{tt+i+1}], v[{tt+i}:{tt+i+1}], v[{T+10+(qt&2)}:{T+11+(qt&2)}] op_sel:[0,{qt&1}] op_sel_hi:[1,{qt&1}]")
            for i in range(4): a.I(f"v_cvt_pk_bf16_f32 v{tt+i}, v{tt+2*i}, v{tt+2*i+1}")
            a.vm_issue("O"); a.I(f"buffer_store_dwordx4 {vr(tt,4)}, v{L16}, s[20:23], s63 offen offset:{t*1024} sc1")
        if qt < 3: a.I("s_add_u32 s63, s63, 0x20000")
    pt(a, 'att')
    a.bg_add(loadB4(8) + loadB4(9) + loadB4(10))
    MU = 64; RS = 68; ONE4 = 72; CS = 76; ACC4 = 112; A4 = 0
    W(["ST"])
    a.I(f"s_mov_b32 s92, {f32(1/576):#x}\ns_mov_b32 s93, {f32(1/80):#x}\ns_mov_b32 s94, {f32(1/64):#x}\ns_mov_b32 s95, {f32(80.0):#x}\ns_mov_b32 s63, {f32(64.0):#x}\ns_mov_b32 s91, {f32(EPS):#x}")
    for qt in range(4):
        b = STV + qt*4
        a.I(f"v_add_f32 v{T}, v{b}, v{b+2}")
        xlane(a, "v_add_f32", T)
        a.I(f"""
        v_mul_f32 v{T}, s92, v{T}
        v_add_f32 v{T+2}, v{b+1}, v{b+3}
        v_fma_f32 v{T+4}, v{b}, s93, -v{T}
        v_mul_f32 v{T+5}, s95, v{T+4}
        v_fmac_f32 v{T+2}, v{T+5}, v{T+4}
        v_fma_f32 v{T+4}, v{b+2}, s94, -v{T}
        v_mul_f32 v{T+5}, s63, v{T+4}
        v_fmac_f32 v{T+2}, v{T+5}, v{T+4}
        v_sub_f32 v{MU+qt}, 0, v{T}
        """)
        xlane(a, "v_add_f32", T+2)
        a.I(f"v_mov_b32 v{T+4}, s91\nv_fmac_f32 v{T+4}, s92, v{T+2}\nv_rsq_f32 v{RS+qt}, v{T+4}")
    for r in range(4): a.I(f"v_mov_b32 v{ONE4+r}, 0x3f803f80")
    for r in range(36): a.I(f"v_mov_b32 v{CS+r}, 0")
    def slot4(i): return (i if i < 17 else 0) * SLAB
    COS = OPT.get("cos", 1); COC = OPT.get("coc", 10)
    srd(a, 16, P['ws'], 1088*SLAB, add_imm=WS_PK)
    a.I(f"""
    s_mul_i32 s78, s49, 144
    s_mul_i32 s33, s54, 36
    s_add_u32 s78, s78, s33
    s_add_u32 s78, s78, s24
    s_mul_i32 s78, s78, {SLAB}
    s_lshl_b32 s79, s49, 7
    s_lshl_b32 s33, s54, 5
    s_add_u32 s79, s79, s33
    s_add_u32 s79, s79, s24
    s_mul_i32 s79, s79, {SLAB}
    s_add_u32 s79, s79, {PK_WO}
    s_lshl_b32 s44, s52, 3
    s_lshl_b32 s34, s24, 1
    s_add_u32 s44, s44, s34
    s_lshl_b32 s27, s44, 17
    s_lshl_b32 s33, s54, 15
    s_add_u32 s27, s27, s33
    s_mul_i32 s28, s44, {144*1024}
    s_mul_i32 s33, s54, {36*1024}
    s_add_u32 s28, s28, s33
    v_add_u32 v{XA}, {128*1024}, v{L16}
    """)
    NS = 68; ACC5 = 184; A5 = 0; NB5 = 13; B5 = 72
    def slot5(i): return ((i + 4) % 16) * SLAB
    a.I("s_and_b32 s77, s52, 7\ns_lshl_b32 s33, s49, 1\ns_add_u32 s77, s77, s33")
    if not OPT.get("rot5", 0): a.I("s_mov_b32 s77, 0")
    def rotg(j, dst):
        n, g = (8, j) if j < 8 else (9, j - 8)
        a.I(f"s_add_u32 s{dst}, s77, {g}")
        if n == 8: a.I(f"s_and_b32 s{dst}, s{dst}, 7")
        else:
            for _ in range(2): a.I(f"s_sub_u32 s33, s{dst}, 9\ns_cmp_ge_u32 s{dst}, 9\ns_cselect_b32 s{dst}, s33, s{dst}")
    GA = [66, 67, 68, 69]; GB = [70, 71, 72, 73, 76]
    def loadW5(j):
        d = GA[j % 4]
        for g in a.bg:
            for x in g: assert f"s{d}," not in str(x)
        rotg(j, d); a.I(f"s_mul_i32 s{d}, s{d}, {4*SLAB}\ns_add_u32 s{d}, s{d}, s{79 if j < 8 else 78}")
        r = []
        for p in range(9):
            if p % 4 == 0: r += [f"s_add_u32 m0, s30, {((j + 1) % 4)*4*SLAB + p*1024}", f"s_add_u32 s83, s{d}, {p*1024}"]
            r.append(("vm", f"Y{j}", f"buffer_load_dwordx4 v{L16}, {'s[16:19]' if j < 3 else 's[4:7]'}, s83 offen offset:{(p%4)*1024} lds"))
        return r
    def b5(i): return B5 + (i % NB5) * 8
    def loadB5(i):
        r = []
        d = GB[(i // 4) % 5]
        if i % 4 == 0:
            for g in a.bg:
                for x in g: assert f"s{d}," not in str(x) and f"s{d} " not in str(x)
            rotg(i // 4, d); a.I(f"s_lshl_b32 s{d}, s{d}, 12\ns_add_u32 s{d}, s{d}, s{27 if i < 32 else 28}")
        sr = "s[20:23]" if i < NB5 else "s[8:11]" if i < 32 else "s[12:15]"
        r.append(("vm", f"C{i}", f"buffer_load_dwordx4 {ar(b5(i), 4)}, v{L16}, {sr}, s{d} offen offset:{(i%4)*1024}"))
        r.append(("vm", f"C{i}", f"buffer_load_dwordx4 {ar(b5(i) + 4, 4)}, v{XA if i < 32 else T+14}, {sr}, s{d} offen offset:{(i%4)*1024}"))
        return r
    pt(a, 't4a'); W(["Z0"]); a.I("s_barrier"); pt(a, 't4b')
    for x in a_reads(A4, 0): a.I(x)
    for i in range(18):
        a.C(f"T4 step {i}"); pt(a, f"f{i}")
        if i % 4 == 3:
            W([f"Z{(i+1)//4}", f"B{i}"], " lgkmcnt(0)"); a.I("s_barrier")
            if i == 3: a.bg_add(loadW4(4))
        elif i == COS:
            W([f"B{i}", "O", "PS"], " lgkmcnt(0)"); a.I("s_barrier")
            a.I("s_lshl_b32 s33, s32, 5"); signal(a, 0x1000000)
        else:
            W([f"B{i}"], " lgkmcnt(0)")
        if i == COC - 2: poll_issue(a, "P5", f"v_and_b32 v{T+2}, 7, v0\nv_cmp_eq_u32 vcc, 0, v{T+2}\ns_nop 1")
        if i == COC:
            pt(a, 'coa'); poll_check(a, "P5", 24, 32); pt(a, 'cob')
        if i == 11:
            assert COC == 10
            it = loadW5(0)
            for k_ in range(4): it += loadB5(k_)
            it += loadW5(1)
            for k_ in range(4, 7): it += loadB5(k_)
            a.bg_add(it)
        if i == 14:
            it = []
            for k_ in range(7, NB5): it += loadB5(k_)
            a.bg_add(it)
        if i == 15: a.bg_add(loadW5(2))
        rd = a_reads(A4 + 36*((i+1) % 2), slot4(i+1)) if i + 1 < 18 else []
        k = 0
        for ft in range(9):
            for qt in range(4):
                d = vr(ACC4 + (qt*9+ft)*4, 4)
                a.I(mf(d, ar(A4 + 36*(i % 2) + ft*4, 4), ar(bset4(i) + qt*4, 4), d if i else "0"))
                if (ft*4+qt) % 3 != 2 and k < len(rd):
                    a.auto = False; a.I(rd[k]); k += 1; a.auto = True
        a.auto = False
        a.I(f"s_cmp_lg_u32 s24, {i % 4}\ns_cbranch_scc1 L_cs{i}")
        for ft in range(9):
            d = vr(CS + ft*4, 4)
            a.I(mf(d, ar(A4 + 36*(i % 2) + ft*4, 4), vr(ONE4, 4), d))
        a.label(f"L_cs{i}"); a.auto = True
        if i + NB4 < 18: a.bg_add(loadB4(i + NB4))
    pt(a, 't4m')
    cs_exchange(lambda t: vr(CS + t*4, 4), 9, None, None)
    a.force(None)
    srd(a, 4, P['ws'], 1088*SLAB, add_imm=WS_PK)
    srd(a, 8, P['ws'], 0x1000000, add_imm=WS_O)
    a.bg_add(loadW5(3))
    a.pace = OPT.get("pacee", OPT["pace"])
    for ft in range(9): a.I(f"ds_read_b128 {vr(CS + ft*4, 4)}, v{T+6} offset:{ft*64}")
    for w in range(1, 4):
        for grp in ((0, 1, 2, 3, 4), (5, 6, 7, 8)):
            bufs = (28, 40, 44, 52, 56)
            for k_, ft in enumerate(grp): a.I(f"ds_read_b128 {vr(bufs[k_], 4)}, v{T+6} offset:{w*576 + ft*64}")
            a.I("s_waitcnt lgkmcnt(0)")
            for k_, ft in enumerate(grp):
                e = bufs[k_]
                for h in (0, 2): a.I(f"v_pk_add_f32 v[{CS+ft*4+h}:{CS+ft*4+h+1}], v[{CS+ft*4+h}:{CS+ft*4+h+1}], v[{e+h}:{e+h+1}]")
    srd(a, 16, P['ws'], 0x1200000, add_imm=WS_H3)
    srd(a, 12, P['ws'], 0x1200000, add_imm=WS_H3)
    a.I(f"s_mov_b32 s92, {f32(C2):#x}\ns_mov_b32 s93, {f32(C2):#x}\nv_mov_b32 v{T+4}, {f32(C1):#x}\nv_mov_b32 v{T+5}, {f32(C1):#x}")
    a.auto = False
    a.I(f"""
    s_mul_i32 s60, s51, 9
    s_lshr_b32 s33, s60, 1
    s_lshl_b32 s33, s33, 10
    s_mul_i32 s47, s62, {144*1024}
    s_add_u32 s47, s47, s33
    v_add_u32 v{T+10}, 0x1000, v{L16}
    s_bitcmp1_b32 s51, 0
    s_cbranch_scc1 L_t4odd
    """)
    a.auto = True
    import copy
    st0 = (list(a.vm), copy.deepcopy(a.bg), a.cyc, a.last_bg)
    ends = []
    for par in range(2):
        a.vm, a.bg, a.cyc, a.last_bg = list(st0[0]), copy.deepcopy(st0[1]), st0[2], st0[3]
        if par: a.label("L_t4odd")
        for qt in range(4):
            pt(a, f"e{qt}")
            a.I(f"v_mov_b32 v{T+6}, v{MU+qt}\nv_mov_b32 v{T+8}, v{RS+qt}")
            for ft in range(9):
                b = ACC4 + (qt*9+ft)*4; c = CS + ft*4; t = T + 12
                for h in (0, 2):
                    a.I(f"v_pk_fma_f32 v[{b+h}:{b+h+1}], v[{c+h}:{c+h+1}], v[{T+6}:{T+7}], v[{b+h}:{b+h+1}] op_sel_hi:[1,0,1]")
                for h in (0, 2):
                    a.I(f"v_pk_mul_f32 v[{b+h}:{b+h+1}], v[{b+h}:{b+h+1}], v[{T+8}:{T+9}] op_sel_hi:[1,0]")
                gelu4(a, b, t, T + 4, 92)
                gt = ft + par; ks = gt >> 1; half = gt & 1
                ad = f"v{L16 if ks < 4 else T+10}"; off = (ks % 4) * 1024
                if half == 0 and ft < 8:
                    a.I(f"v_cvt_pk_bf16_f32 v{b}, v{b}, v{b+1}\nv_cvt_pk_bf16_f32 v{b+1}, v{b+2}, v{b+3}")
                elif half == 1 and ft > 0:
                    pb = b - 4
                    a.I(f"v_cvt_pk_bf16_f32 v{pb+2}, v{b}, v{b+1}\nv_cvt_pk_bf16_f32 v{pb+3}, v{b+2}, v{b+3}")
                    a.vm_issue("H3"); a.I(f"buffer_store_dwordx4 v[{pb}:{pb+3}], {ad}, s[16:19], s47 offen offset:{off} sc1") if not OPT.get("nost") else None
                else:
                    a.I(f"v_cvt_pk_bf16_f32 v{b}, v{b}, v{b+1}\nv_cvt_pk_bf16_f32 v{b+1}, v{b+2}, v{b+3}")
                    a.vm_issue("H3"); a.I(f"buffer_store_dwordx2 v[{b}:{b+1}], {ad}, s[16:19], s47 offen offset:{off + half*8} sc1") if not OPT.get("nost") else None
            if qt < 3: a.I(f"s_add_u32 s47, s47, {144*1024}")
        pt(a, "e4")
        a.force(None)
        a.vm_issue("H3L"); a.I(f"buffer_load_dword v{PFD}, v{L16}, s[4:7], 0 offen")
        ends.append(list(a.vm))
        if par == 0: a.I("s_branch L_t4done")
    a.label("L_t4done")
    a.vm = [t for t in ends[0] if t != "H3"]
    assert a.vm == [t for t in ends[1] if t != "H3"]
    pt(a, 't4')
    a.pace = OPT["pace5"]
    srd(a, 16, P['ws'], 0x2800000, add_imm=WS_PART)
    srd(a, 20, P['x'], SZ_ACT)
    PCS = [(0, 1), (2, 3), (4,), (5, 6), (7, 8)]
    PSZ = 10*1024
    GOFF = 64*16*PSZ
    a.I(f"""
    s_lshl_b32 s47, s52, 2
    s_add_u32 s47, s47, s49
    s_lshl_b32 s93, s47, 2
    s_add_u32 s93, s93, s24
    s_lshl_b32 s93, s93, 2
    s_add_u32 s93, s93, s54
    s_mul_i32 s93, s93, {PSZ}
    s_lshl_b32 s92, s47, 8
    s_cmp_ge_u32 s24, 2
    s_cselect_b32 s34, 5, 0
    s_mul_i32 s60, s49, 9
    s_add_u32 s60, s60, s34
    s_lshl_b32 s44, s52, 3
    s_lshl_b32 s33, s54, 1
    s_add_u32 s44, s44, s33
    s_and_b32 s61, s24, 1
    s_add_u32 s44, s44, s61
    s_mul_i32 s45, s44, {16*1152}
    s_lshl_b32 s34, s60, 5
    s_add_u32 s45, s45, s34
    s_mul_i32 s34, s44, {18*1024}
    v_add_u32 v{T+10}, s34, v{L16}
    s_lshl_b32 s94, s47, 2
    s_add_u32 s94, s94, s54
    s_mul_i32 s94, s94, {4*PSZ}
    s_mul_i32 s33, s61, 5120
    s_add_u32 s94, s94, s33
    s_add_u32 s91, s94, 3072
    s_cmp_ge_u32 s24, 2
    s_cselect_b32 s94, s91, s94
    s_add_u32 s91, s94, 2048
    s_cselect_b32 s91, {OOB:#x}, s91
    """)
    def flush_global():
        for qt in range(2):
            for k_, tl in enumerate(PCS):
                b = ACC5 + (qt*9 + tl[0])*4
                a.I(f"v_cvt_pk_bf16_f32 v{b}, v{b}, v{b+1}\nv_cvt_pk_bf16_f32 v{b+1}, v{b+2}, v{b+3}")
                if len(tl) == 2: a.I(f"v_cvt_pk_bf16_f32 v{b+2}, v{b+4}, v{b+5}\nv_cvt_pk_bf16_f32 v{b+3}, v{b+6}, v{b+7}")
                p = qt*5 + k_
                a.vm_issue("PT0"); a.I(f"buffer_store_dwordx4 {vr(b, 4)}, v{L16}, s[16:19], s93 offen offset:{(p%4)*1024} sc1")
                if p % 4 == 3: a.I("s_add_u32 s93, s93, 4096")
    XV = 28; X1V = 38
    a.I(f"v_add_u32 v{T+14}, {144*1024}, v{L16}\nv_mov_b32 v{TRA}, v{L16}\nv_add_u32 v{TRB}, 64512, v{L16}\nv_add_u32 v{TRC}, 129024, v{L16}")
    def f_reads(dst, off):
        base = off // 64512; o = off - base * 64512
        return [f"ds_read_b128 {ar(dst + nt*4, 4)}, v{TRA+base} offset:{o + nt*1024}" for nt in range(9)]
    W(["Y0"]); a.I("s_barrier")
    for x in f_reads(A5, slot5(0)): a.I(x)
    for i in range(NS):
        a.C(f"T5 step {i}"); pt(a, f"s{i}a")
        if i % 4 == 3 and i + 1 < NS:
            b = (i + 1) // 4
            need = {f"Y{b}", f"C{i}"}
            if i == 3: need |= {"H3L"}
            if i == 39: need |= {"PT0"}
            W(need, " lgkmcnt(0)"); a.I("s_barrier")
            if i == 3:
                a.I("s_lshl_b32 s33, s50, 5"); signal(a, 0x10000)
            if i == 39:
                srd(a, 56, P['ws'], 0x10000, add_imm=WS_CX)
                a.I("s_mov_b32 s33, s92"); signal(a, 1)
            if b + 3 < 17: a.bg_add(loadW5(b + 3))
        else:
            W([f"C{i}"], " lgkmcnt(0)")
        if i == 5:
            for j in range(5):
                a.vm_issue("XL"); a.I(f"buffer_load_dwordx2 v[{XV+2*j}:{XV+2*j+1}], v{XD}, s[20:23], s45 offen offset:{j*32}")
            srd(a, 20, P['ws'], SZ_ACT, add_imm=WS_X1)
        if i == 6:
            for j in range(5):
                piece_off(j, 35)
                a.vm_issue("XL"); a.I(f"buffer_load_dwordx2 v[{X1V+2*j}:{X1V+2*j+1}], v{T+10}, s[20:23], s35 offen")
        if i == 8:
            a.I(f"""
            s_lshr_b32 s33, s0, 5
            s_mul_i32 s33, s33, 144
            s_mul_i32 s34, s54, 36
            s_add_u32 s33, s33, s34
            s_mul_i32 s33, s33, {SLAB}
            s_and_b32 s35, s0, 31
            s_mul_i32 s35, s35, {81*128}
            s_add_u32 s35, s35, s33
            """)
            touch(a, 4, 35, 2)
        if i == 15: poll_issue(a, "P4", "s_lshr_b32 s33, s52, 1\ns_lshl_b32 s33, s33, 3\nv_cmp_eq_u32 vcc, s33, v0\ns_nop 1")
        if i == 18:
            pt(a, 'c4a'); poll_check(a, "P4", 16, 32); pt(a, 'c4b')
        if i == 19 and OPT.get("pfh3", 0):
            a.I(f"""
            s_and_b32 s35, s0, 15
            s_lshr_b32 s33, s35, 1
            s_lshl_b32 s34, s52, 3
            s_add_u32 s33, s33, s34
            s_mul_i32 s33, s33, {144*1024}
            s_mul_i32 s34, s54, {36*1024}
            s_add_u32 s33, s33, s34
            s_and_b32 s35, s35, 1
            s_mul_i32 s35, s35, 18432
            s_add_u32 s35, s35, s33
            """)
            touch(a, 12, 35, 3)
        if i == 51: poll_issue(a, "P6", "v_cmp_eq_u32 vcc, 0, v0\ns_nop 1", 56, "s92")
        if i == 54: poll_check(a, "P6", 0, 4, 56, "s92")
        if i == 55:
            it = []
            for src in range(4):
                for k_ in range(3):
                    it.append(f"s_add_u32 s82, s{94 if k_ < 2 else 91}, {src*PSZ}")
                    it.append(("vm", "HP", f"buffer_load_dwordx4 {vr(128 + (src*3+k_)*4, 4)}, v{L16}, s[16:19], s82 offen offset:{(k_%2)*1024}"))
            a.bg_add(it)
        rd = f_reads(A5 + 36*((i+1) % 2), slot5(i+1)) if i + 1 < NS else []
        first = i in (0, 32)
        k = 0
        for nt in range(9):
            for qt in range(2):
                d = vr(ACC5 + (qt*9+nt)*4, 4)
                if qt == 0 and k < len(rd) and nt < 7: a.auto = False
                a.I(mf(d, ar(A5 + 36*(i % 2) + nt*4, 4), ar(b5(i) + qt*4, 4), "0" if first else d))
                if (qt == 0 or nt < 2) and k < len(rd):
                    a.auto = False; a.I(rd[k]); k += 1
                a.auto = True
        assert not (i + NB5 >= 32 and i < 19)
        if i + NB5 < NS: a.bg_add(loadB5(i + NB5), front=True)
        if i == 31:
            a.auto = False
            a.I("s_nop 7")
            flush_global()
            a.I(f"s_add_u32 s93, s93, {GOFF - 8192}\ns_nop 0"); a.auto = True
    a.force(None); a.auto = False
    pt(a, 't5')
    a.I("s_nop 7\ns_barrier\ns_cmp_eq_u32 s24, s54\ns_cbranch_scc1 L_own")
    flush_global()
    a.I("s_waitcnt vmcnt(10)\ns_branch L_own_done")
    a.label("L_own")
    for t in range(18): a.I(f"ds_write_b128 v{L16}, {vr(ACC5 + t*4, 4)} offset:{t*1024}")
    a.I("s_waitcnt vmcnt(0)")
    a.label("L_own_done")
    SV = 64; XF = 84; X1F = 104
    def add_pieces(dst, base, nsrc, first):
        for j in range(5):
            for s_ in range(nsrc):
                p = base + (s_*3 + j//2)*4 + (j % 2)*2; d = dst + j*4; e = T + 2*((j*nsrc + s_) % 2)*2
                if first and s_ == 0:
                    a.I(f"v_lshlrev_b32 v{d}, 16, v{p}\nv_and_b32 v{d+1}, 0xffff0000, v{p}\nv_lshlrev_b32 v{d+2}, 16, v{p+1}\nv_and_b32 v{d+3}, 0xffff0000, v{p+1}")
                else:
                    a.I(f"v_lshlrev_b32 v{e}, 16, v{p}\nv_and_b32 v{e+1}, 0xffff0000, v{p}\nv_lshlrev_b32 v{e+2}, 16, v{p+1}\nv_and_b32 v{e+3}, 0xffff0000, v{p+1}")
                    a.I(f"v_pk_add_f32 v[{d}:{d+1}], v[{d}:{d+1}], v[{e}:{e+1}]\nv_pk_add_f32 v[{d+2}:{d+3}], v[{d+2}:{d+3}], v[{e+2}:{e+3}]")
    add_pieces(SV, 128, 4, True)
    for j in range(5):
        for (src, dst) in ((XV + 2*j, XF + 4*j), (X1V + 2*j, X1F + 4*j)):
            a.I(f"v_lshlrev_b32 v{dst}, 16, v{src}\nv_and_b32 v{dst+1}, 0xffff0000, v{src}\nv_lshlrev_b32 v{dst+2}, 16, v{src+1}\nv_and_b32 v{dst+3}, 0xffff0000, v{src+1}")
    srd(a, 20, P['out'], SZ_ACT)
    a.I(f"s_mov_b32 s63, {f32(-1.4426950408889634):#x}\ns_waitcnt vmcnt(0) lgkmcnt(0)"); pt(a, 'pst')
    a.I(f"""
    s_barrier
    v_mov_b32 v{T}, 0
    v_add_u32 v{T+8}, s53, v{L16}
    s_cmp_lg_u32 s24, 0
    s_cbranch_scc1 L_cx_wait
    v_mov_b32 v{T+1}, 0x100
    s_mov_b64 exec, 1
    buffer_atomic_add v{T+1}, v{T}, s[56:59], s92 offen
    s_mov_b64 exec, -1
    s_mov_b32 s35, 400000
    """)
    a.label("L_cx_poll")
    a.I(f"""
    buffer_load_dword v{T+1}, v{T}, s[56:59], s92 offen sc1
    s_waitcnt vmcnt(0)
    v_readfirstlane_b32 s34, v{T+1}
    s_cmp_ge_u32 s34, 0x400
    s_cbranch_scc1 L_cx_wait
    s_sleep 1
    s_sub_u32 s35, s35, 1
    s_cmp_lg_u32 s35, 0
    s_cbranch_scc1 L_cx_poll
    """)
    a.label("L_cx_wait"); pt(a, 'cx')
    PR = 128
    a.I("s_barrier")
    for d in range(1, 4):
        a.I(f"s_add_u32 s33, s54, {d}\ns_and_b32 s33, s33, 3\ns_mul_i32 s33, s33, {PSZ}\ns_add_u32 s33, s33, {GOFF}\ns_add_u32 s34, s33, s94\ns_add_u32 s35, s33, s91")
        for k_ in range(3):
            a.I(f"buffer_load_dwordx4 {vr(PR + ((d-1)*3+k_)*4, 4)}, v{L16}, s[16:19], s{34 if k_ < 2 else 35} offen offset:{(k_%2)*1024}")
    for j in range(5): a.I(f"ds_read_b128 {vr(192 + j*4, 4)}, v{T+8} offset:{j*1024}")
    a.I("s_waitcnt lgkmcnt(0)")
    for j in range(5):
        b = 192 + j*4
        for h in (0, 2): a.I(f"v_pk_add_f32 v[{X1F+4*j+h}:{X1F+4*j+h+1}], v[{X1F+4*j+h}:{X1F+4*j+h+1}], v[{b+h}:{b+h+1}]")
    a.I("s_waitcnt vmcnt(0)")
    add_pieces(X1F, PR, 3, False)
    for j in range(5):
        b = 192 + j*4; e = XF + j*4; g = SV + j*4; y = X1F + 4*j
        for r in range(4): a.I(f"v_mul_f32 v{b+r}, s63, v{y+r}")
        for r in range(4): a.I(f"v_exp_f32 v{b+r}, v{b+r}")
        for h in (0, 2): a.I(f"v_pk_mul_f32 v[{y+h}:{y+h+1}], v[{y+h}:{y+h+1}], v[{g+h}:{g+h+1}]")
        for r in range(4): a.I(f"v_add_f32 v{b+r}, 1.0, v{b+r}")
        for r in range(4): a.I(f"v_rcp_f32 v{b+r}, v{b+r}")
        a.I("s_nop 0")
        for h in (0, 2): a.I(f"v_pk_fma_f32 v[{e+h}:{e+h+1}], v[{y+h}:{y+h+1}], v[{b+h}:{b+h+1}], v[{e+h}:{e+h+1}]")
        a.I(f"v_cvt_pk_bf16_f32 v{b}, v{e}, v{e+1}\nv_cvt_pk_bf16_f32 v{b+1}, v{e+2}, v{e+3}")
        if j == 4: a.I(f"s_cmp_ge_u32 s24, 2\ns_cselect_b32 s45, {OOB:#x}, s45")
        a.I(f"buffer_store_dwordx2 v[{b}:{b+1}], v{XD}, s[20:23], s45 offen offset:{j*32} {('sc1', 'nt', '')[OPT.get('outst', 2)]}")
    g_end(a, 1, wsreg=P['ws'])
    a.label("L_exit")
    a.I("s_endpgm")
    a.label("L_fallback")
    zero_o()
    M = AT.V_M
    AT.V_LS = LS = 84
    for qt in range(4): a.I(f"v_mov_b32 v{M+qt}, 0xff800000\nv_mov_b32 v{LS+qt}, 0")
    a.I("s_mov_b32 s30, s55\ns_mov_b32 s25, s30\ns_mov_b32 s26, s30\ns_mov_b32 s27, 64")
    a.label("L_fb_loop")
    a.I("s_bitcmp1_b32 s27, 0\ns_cbranch_scc1 L_fb_odd\ns_barrier")
    for x in AT.dma_k(a, 0) + AT.dma_v(a, 0): a.I(x[2] if isinstance(x, tuple) else x + "\ns_nop 0")
    a.I("s_waitcnt vmcnt(0)\ns_barrier")
    a.label("L_fb_odd")
    for x in AT.k_reads(0): a.I(x)
    a.I("s_waitcnt lgkmcnt(0)")
    for x in AT.v_reads(0): a.I(x)
    a.I("s_waitcnt lgkmcnt(0)")
    for r in range(12): a.I(f"v_xor_b32 v{KA+r}, 0x2000, v{KA+r}")
    for x in AT.qk_mfmas(0, False): a.I(x)
    a.I("s_nop 7\ns_nop 7")
    for qt in range(4):
        rowmax(0, qt, T)
        a.I(f"v_max_f32 v{T}, v{T}, v{M+qt}\nv_sub_f32 v{T+2}, v{M+qt}, v{T}\nv_exp_f32 v{T+2}, v{T+2}\nv_mov_b32 v{M+qt}, v{T}\nv_mul_f32 v{LS+qt}, v{LS+qt}, v{T+2}")
        for r in range(0, 32, 4):
            o = AT.A_O + qt*32 + r
            for i in range(4): a.I(f"v_accvgpr_read_b32 v{T+4+i}, a{o+i}")
            for i in range(4): a.I(f"v_mul_f32 v{T+4+i}, v{T+4+i}, v{T+2}")
            for i in range(4): a.I(f"v_accvgpr_write_b32 a{o+i}, v{T+4+i}")
        for r in range(8):
            e = 8*qt + r
            a.I(f"v_sub_f32 v{AT.sbuf(0)+e}, v{AT.sbuf(0)+e}, v{T}"); a.I(AT.sm_exp(0, e))
        a.I("s_nop 0")
        for r in range(8): a.I(AT.sm_add(0, 8*qt + r))
        for p in range(4): a.I(AT.sm_cvt(0, 4*qt + p))
    a.I("s_nop 1")
    for x in AT.pv_mfmas(0): a.I(x)
    a.I("s_nop 7\ns_nop 7")
    a.I("s_sub_u32 s27, s27, 1\ns_cmp_lg_u32 s27, 0\ns_cbranch_scc1 L_fb_loop")
    for qt in range(4):
        a.I(f"v_mov_b32 v{T}, v{LS+qt}"); xlane(a, "v_add_f32", T); a.I(f"v_mov_b32 v{LSA+4*qt}, v{T}")
    a.I(f"s_mul_i32 s30, s24, {SLAB}\ns_barrier\ns_branch L_att_epi")
    a.label("L_code_end")
    return a

def build(path):
    a = gen()
    hdr = open("recurrent_scan__mha_block_cached__mixer_s_mlp__prompt.s.ref").read().split("; Override launch")[0]
    hdr += "; @launch grid=(256,1,1) block=(256,1,1) lds=163840\n"
    hdr += '.amdgcn_target "amdgcn-amd-amdhsa--gfx950"\n'
    txt = "\n".join(l[4:] if l.startswith("    ") else l for l in a.L) + "\n"
    open(path, "w").write(hdr + txt + kernel_desc(NAME, 512, 256))
if __name__ == "__main__":
    GSTAMP[0] = "stamp" in sys.argv
    MIDS[:] = [36, 38, 40, 100, 98]; ENDR[0] = 64
    for x in sys.argv:
        if x.startswith("pts="): PTS[:] = x[4:].split(",")
        elif x.startswith("ntt="): NTT.update(x[4:].split(","))
        elif "=" in x: k, v = x.split("="); OPT[k] = int(v)
    build(sys.argv[1])
```

```python
from gen_common import *
A_O = 0
A_Q = 128
A_K = 192
A_V = 224
V_KD = 1
V_VD = 5
V_KA = 7
V_VA = 11
V_LS = 19
V_T = 24
V_WD = 40
V_L16 = 42
V_L16B = 43
V_M = 44
V_WA = 48
V_NEGM = 96
V_S = 128
KREG = 0; VREG = 65536
THR = 0x4B800000
def mf(d, A, B, c): return f"v_mfma_f32_16x16x32_bf16 {d}, {A}, {B}, {c}"
def sbuf(u): return V_S + 32 * (u % 4)
STAMP = False
def stamp(a, i):
    if STAMP:
        a.I(f"s_memtime s[{60+4*i}:{61+4*i}]")
        a.I(f"s_memrealtime s[{62+4*i}:{63+4*i}]")

def k_reads(u):
    t = u >> 1; off = KREG + (t % 4) * 16384 + (u & 1) * 8192
    return [f"ds_read_b128 {ar(A_K + (kt*4+ks)*4, 4)}, v{V_KA+ks} offset:{off + kt*4096}" for kt in range(2) for ks in range(4)]
def v_reads(u):
    t = u >> 1; off = (t % 4) * 16384 + (u & 1) * 8192
    return [f"ds_read_b64_tr_b16 {ar(A_V + dt*4 + 2*m, 2)}, v{V_VA+dt} offset:{off + m*4096}" for dt in range(8) for m in range(2)]
def qk_mfmas(u, cinit):
    M = []
    for qt in range(4):
        for kt in range(2):
            for ks in range(4):
                d = vr(sbuf(u) + (qt*2+kt)*4, 4)
                c = d if ks else (vr(V_NEGM + 4*qt, 4) if cinit else "0")
                M.append(mf(d, ar(A_K + (kt*4+ks)*4, 4), ar(A_Q + (qt*4+ks)*4, 4), c))
    return M
def oacc(dt, qt): return A_O + ((qt*4 + (dt >> 1))*2 + (dt & 1))*4
FIRST0 = [False]
def pv_mfmas(u, first=False):
    M = []
    for dt in range(8):
        for qt in range(4):
            o = ar(oacc(dt, qt), 4)
            M.append(mf(o, ar(A_V + dt*4, 4), vr(sbuf(u) + qt*8, 4), "0" if first else o))
    return M
def sm_exp(u, e): r = sbuf(u) + e; return f"v_exp_f32_e64 v{r}, v{r}"
def sm_add(u, e):
    r = sbuf(u) + e; l = V_LS + (e >> 3)
    return f"v_add_f32 v{l}, v{l}, v{r}"
def sm_cvt(u, p):
    qt = p >> 2; i = p & 3; b = sbuf(u) + 8*qt
    return f"v_cvt_pk_bf16_f32 v{b+i}, v{b+2*i}, v{b+2*i+1}"
def dma_k(a, t):
    r = [f"s_add_u32 m0, s30, {KREG + (t % 4) * 16384}"]
    for i in range(4):
        r.append(("vm", f"K{t}", f"buffer_load_dwordx4 v{V_KD+i}, s[4:7], s25 offen offset:{i*1024} lds"))
    r.append("s_add_u32 s25, s25, 16384")
    return r
def dma_v(a, t):
    r = [f"s_add_u32 m0, s30, {VREG + (t % 4) * 16384}"]
    for i in range(4):
        r.append(("vm", f"V{t}", f"buffer_load_dwordx4 v{V_VD+(i&1)}, s[8:11], s26 offen offset:{i*1024} lds"))
    r.append("s_add_u32 s26, s26, 16384")
    return r
def emit(a, x):
    if isinstance(x, tuple):
        a.vm_issue(x[1]); a.I(x[2])
    else: a.I(x)

NU = 64
def body(a, u, steady=False):
    do_qk = u + 1 < NU; do_pv = u >= 1
    M = (qk_mfmas(u + 1, True) if do_qk else [None]*32) + (pv_mfmas(u - 1) if do_pv else [None]*32)
    G = [[] for _ in range(64)]
    pre = [[] for _ in range(64)]
    for p in range(32):
        G[2*p].append(sm_exp(u, p))
        if p >= 1: G[2*p+1].append(sm_add(u, p - 1))
        elif u >= 1: G[1].append(sm_add(u - 1, 31))
        if p >= 2 and p % 2 == 0: G[2*p+1].append(sm_cvt(u, p // 2 - 1))
        elif p == 0 and u >= 1: G[1].append(sm_cvt(u - 1, 15))
    if do_pv:
        vr_ = v_reads(u - 1); k = 0
        for p in range(12):
            n = 2 if p in (1, 3, 5, 7) else 1
            for _ in range(n): G[2*p+1].append(vr_[k]); k += 1
        assert k == 16
    if u + 2 < NU:
        kr = k_reads(u + 2)
        for k, p in enumerate((16, 17, 19, 20, 21, 23, 25, 27)): G[2*p+1].append(kr[k])
    T = u >> 1
    if u % 2 == 0:
        need = {f"K{T+1}", f"V{T}"}
        pre[32].append(("wait", need, 16))
        if T + 4 < 32:
            d = dma_k(a, T + 4)
            G[53].append(d[0]); G[57].append(d[1]); G[59].append(d[2]); G[61].append(d[3]); G[63].append(d[4]); G[63].append(d[5])
    else:
        pre[32].append("s_waitcnt lgkmcnt(0)")
        if T + 3 < 32:
            d = dma_v(a, T + 3)
            G[25].append(d[0]); G[27].append(d[1]); G[31].append(d[2]); G[59].append(d[3]); G[63].append(d[4]); G[63].append(d[5])
    pre[0].append("s_waitcnt lgkmcnt(0)")
    a.C(f"---- body {u}")
    for g in range(64):
        for x in pre[g]:
            if isinstance(x, tuple):
                _, need, n = x
                n2 = a.vm_wait(need)
                if steady: assert n2 == n
                a.I(f"s_waitcnt vmcnt({n2}) lgkmcnt(0)")
                a.I("s_barrier")
            else: a.I(x)
        if M[g]: a.I(M[g])
        for x in G[g]: emit(a, x)

V_LSA = 112; V_ONES = 76
SCHED = {}
def body2(a, u, steady=False, extra=None):
    do_qk = u + 1 < NU; do_pv = u >= 1
    pv = pv_mfmas(u - 1, first=(u == 1 and FIRST0[0])) if do_pv else [None]*32
    M = (qk_mfmas(u + 1, True) if do_qk else [None]*32)
    for dt in range(8):
        M += pv[dt*4:dt*4+4]
        if dt % 2 == 1:
            qt = dt // 2; l = vr(V_LSA + 4*qt, 4)
            M.append(mf(l, vr(V_ONES, 4), vr(sbuf(u - 1) + qt*8, 4), "0" if (u == 1 and FIRST0[0]) else l) if do_pv else None)
    pat = SCHED.get("pat", "EVCVEVEVEVEVEVCVEVEVEVEVCVEVEVEV" + "ECKEKEECKEKEEDECKEKEDEECKEKEDEECEDEE")
    assert len(pat) == 68 and pat.count("E") == 32 and pat.count("V") == 16 - 0 and pat.count("K") == 8, (len(pat), pat.count("E"), pat.count("V"), pat.count("K"), pat.count("C"), pat.count("D"))
    vr_ = v_reads(u - 1) if do_pv else []
    kr = k_reads(u + 2) if u + 2 < NU else []
    T = u >> 1
    if u % 2 == 0: d = dma_k(a, T + 4) if T + 4 < 32 else None
    else: d = dma_v(a, T + 3) if T + 3 < 32 else None
    e = 0; nv = 0; nk = 0; nd = 0
    cq = [(u - 1, p) for p in (14, 15)] if u >= 1 else []
    done_c = 0
    lg = []
    a.C(f"---- body {u}")
    a.I("s_waitcnt lgkmcnt(0)")
    for g in range(68):
        if g == 32:
            n = len(lg) - min(len(lg), 8)
            if u % 2 == 0:
                n2 = a.vm_wait({f"K{T+1}", f"V{T}"})
                if steady: assert n2 == steady, (n2, steady)
                a.I(f"s_waitcnt vmcnt({n2}) lgkmcnt({n})\ns_barrier")
            else: a.I(f"s_waitcnt lgkmcnt({n})")
        if g == 50 and do_pv: a.I(f"s_waitcnt lgkmcnt({nk})")
        if M[g]: a.I(M[g])
        c = pat[g]
        if c == "E":
            a.I(sm_exp(u, e)); e += 1
            while done_c < 14 and 2*done_c + 2 <= e - 1: cq.append((u, done_c)); done_c += 1
        elif c == "V":
            if vr_: a.I(vr_[nv]); lg.append("V")
            nv += 1
        elif c == "K":
            if kr: a.I(kr[nk]); lg.append("K"); nk += 1
        elif c == "C":
            for _ in range(2):
                if cq: uu, p = cq.pop(0); a.I(sm_cvt(uu, p))
        elif c == "D" and d:
            if nd == 0: a.I(d[0] + "\ns_nop 0")
            emit(a, d[1 + nd]); nd += 1
            if nd == 4: a.I(d[5])
        for x in (extra or {}).get(g, []): x() if callable(x) else emit(a, x)
    assert not cq and done_c == 14, (cq, done_c)

WSLOT = [1, 4, 2, 5, 3, 6, 7, 8, 9]
def xset(c): s = c % 5; return 32 * s if s < 4 else 192

USE2 = [False]
def gen_attn(name="attn_kernel", force_fallback=False):
    global body
    if USE2[0]:
        body = lambda a, u, steady=False: body2(a, u, 16 if steady else False)
    a = Asm()
    kernel_begin(a, name); g_begin(a)
    stamp(a, 0)
    a.I(f"""
    s_cmp_ge_u32 s2, 256
    s_cbranch_scc1 L_{name}_done
    s_load_dwordx4 s[36:39], s[0:1], {KA['k']}
    s_load_dwordx2 s[40:41], s[0:1], {KA['wq']}
    s_load_dwordx2 s[42:43], s[0:1], {KA['ws']}
    v_lshrrev_b32 v1, 6, v0
    v_and_b32 v0, 63, v0
    s_and_b32 s31, s2, 7
    v_readfirstlane_b32 s24, v1
    s_lshr_b32 s32, s2, 3
    s_lshl_b32 s31, s31, 2
    s_lshr_b32 s33, s32, 3
    s_add_u32 s31, s31, s33
    s_and_b32 s32, s32, 7
    s_lshl_b32 s30, s24, 12
    s_lshl_b32 s33, s31, 19
    s_lshl_b32 s34, s31, 8
    s_waitcnt lgkmcnt(0)
    """)
    srd(a, 4, 36, 524288, add_lo=33)
    srd(a, 8, 38, 524288, add_lo=33)
    srd(a, 12, 40, 0, add_lo=34)
    a.I("s_sub_u32 s14, 0x480000, s34")
    srd(a, 16, 42, SZ_ACT, add_imm=WS_XQ)
    srd(a, 20, 42, 0x1000000, add_imm=WS_O)
    T = V_T
    a.I(f"""
    v_lshrrev_b32 v{T}, 4, v0            ; g = r4 = lane>>4
    v_and_b32 v{T+1}, 15, v0
    v_xor_b32 v{T+2}, v{T+1}, v{T}
    v_lshlrev_b32 v{T+2}, 4, v{T+2}      ; (pos^r4)*16
    v_lshl_add_u32 v{V_KD}, v{T}, 8, v{T+2}
    v_xor_b32 v{V_KD+1}, 64, v{V_KD}
    v_xor_b32 v{V_KD+2}, 0x80, v{V_KD}
    v_xor_b32 v{V_KD+3}, 0xc0, v{V_KD}
    v_lshl_add_u32 v{V_KA}, v{T+1}, 8, v{T+2}   ; K read: i*256 + ((g^i)*16)
    v_xor_b32 v{V_KA+1}, 64, v{V_KA}
    v_xor_b32 v{V_KA+2}, 0x80, v{V_KA}
    v_xor_b32 v{V_KA+3}, 0xc0, v{V_KA}
    v_lshlrev_b32 v{T+2}, 1, v{T}
    v_xor_b32 v{T+2}, v{T+1}, v{T+2}     ; pos ^ (r4<<1)
    v_lshlrev_b32 v{T+2}, 4, v{T+2}
    v_lshl_add_u32 v{V_VD}, v{T}, 8, v{T+2}
    v_xor_b32 v{V_VD+1}, 0x80, v{V_VD}
    v_lshl_add_u32 v{V_WD}, v{T}, 13, v{T+2}
    v_xor_b32 v{V_WD+1}, 0x80, v{V_WD}
    v_lshlrev_b32 v{V_L16}, 4, v0
    v_add_u32 v{V_L16B}, 0x1000, v{V_L16}
    v_lshrrev_b32 v{T}, 2, v0            ; row 0..15
    v_and_b32 v{T+1}, 7, v{T}            ; row7
    v_and_b32 v{T+2}, 3, v0              ; c
    v_lshlrev_b32 v{T+3}, 8, v{T}        ; row*256
    v_lshl_add_u32 v{T+4}, v{T+1}, 5, v{T+3}   ; + row7*32
    v_lshl_add_u32 v{T+4}, v{T+2}, 3, v{T+4}   ; + c*8
    v_add_u32 v{V_VA}, {VREG}, v{T+4}
    v_lshlrev_b32 v{T+1}, 1, v{T+1}
    v_xor_b32 v{T+1}, v{T+1}, v{T+2}     ; c ^ (row7<<1)
    v_lshl_add_u32 v{V_WA}, v{T+1}, 4, v{T+3}
    """)
    for dt in range(1, 8): a.I(f"v_xor_b32 v{V_VA+dt}, {dt*32}, v{V_VA}")
    for t in range(1, 4): a.I(f"v_xor_b32 v{V_WA+t}, {t*64}, v{V_WA}")
    for t in range(4): a.I(f"v_add_u32 v{V_WA+4+t}, 0x10000, v{V_WA+t}")
    for t in range(4): a.I(f"v_add_u32 v{V_WA+8+t}, 0x20000, v{V_WA+t}")
    a.I(f"""
    s_lshl_b32 s33, s32, 4
    s_lshl_b32 s34, s24, 2
    s_add_u32 s33, s33, s34
    s_mul_i32 s27, s33, {18*1024}
    s_lshl_b32 s29, s24, 17
    s_mov_b32 s25, s30
    s_mov_b32 s26, s30
    """)
    def dma_w(c):
        for i in range(4):
            a.I(f"s_add_u32 m0, s30, {WSLOT[c]*16384 + i*1024}")
            a.I(f"s_add_u32 s35, s29, {c*64*8192 + i*4*8192}")
            a.vm_issue(f"W{c}")
            a.I(f"buffer_load_dwordx4 v{V_WD+(i&1)}, s[12:15], s35 offen lds")
    def ld_x(c):
        for kl in range(2):
            for qt in range(4):
                a.I(f"s_add_u32 s35, s27, {qt*18*1024 + (c*2+kl)*1024}")
                a.vm_issue(f"X{c}")
                a.I(f"buffer_load_dwordx4 {ar(xset(c) + (kl*4+qt)*4, 4)}, v{V_L16}, s[16:19], s35 offen")
    for c in range(4):
        dma_w(c); ld_x(c)
    for x in dma_k(a, 0): emit(a, x)
    def abuf(y): return A_V if y % 2 == 0 else A_Q
    def w_reads(y):
        s = WSLOT[y >> 1]; base = V_WA + 4 * (s >> 2); off = (s % 4) * 16384 + (y & 1) * 8192
        return [f"ds_read_b64_tr_b16 {ar(abuf(y) + (t*2+b)*4 + 2*m, 2)}, v{base+t} offset:{off + m*4096 + 8*b}"
                for t in range(4) for b in range(2) for m in range(2)]
    n = a.vm_wait({"W0"})
    a.I(f"s_waitcnt vmcnt({n})\ns_barrier")
    for x in w_reads(0): a.I(x)
    post_bar = {1: ("k", 1), 2: ("v", 0), 3: ("k", 2), 4: ("v", 1), 5: ("k", 3), 6: ("v", 2)}
    for y in range(18):
        c = y >> 1
        a.C(f"---- qproj unit {y}")
        if y % 2 == 1 and c + 1 < 9:
            n = a.vm_wait({f"W{c+1}", f"X{c}"})
            a.I(f"s_waitcnt vmcnt({n}) lgkmcnt(0)\ns_barrier")
        else:
            n = a.vm_wait({f"X{c}"})
            a.I(f"s_waitcnt vmcnt({n}) lgkmcnt(0)")
        rd = w_reads(y + 1) if y + 1 < 18 else []
        M = []
        for tb in range(8):
            for qt in range(4):
                d = vr(V_S + (qt*8 + tb)*4, 4)
                M.append(mf(d, ar(abuf(y) + tb*4, 4), ar(xset(c) + ((y & 1)*4+qt)*4, 4), d if y else "0"))
        k = 0
        for g in range(32):
            a.I(M[g])
            if g < 24 and g % 3 != 2 and k < len(rd): a.I(rd[k]); k += 1
            if y % 2 == 1 and g == 24 and (c + 1) in post_bar:
                kind, t = post_bar[c + 1]
                for x in (dma_k(a, t) if kind == "k" else dma_v(a, t)): emit(a, x)
            if y % 2 == 0 and g == 24 and c + 4 < 9: dma_w(c + 4)
            if y % 2 == 0 and g == 26 and c + 4 < 9: ld_x(c + 4)
        assert k == len(rd)
    stamp(a, 1); g_mid(a, 0)
    a.I("s_nop 7\ns_nop 7")
    for qt in range(4):
        for t in range(4):
            b = V_S + (qt*8 + t*2)*4
            for i in range(4): a.I(f"v_cvt_pk_bf16_f32 v{b+i}, v{b+2*i}, v{b+2*i+1}")
            for i in range(4): a.I(f"v_accvgpr_write_b32 a{A_Q + (qt*4+t)*4 + i}, v{b+i}")
    def zero_o():
        for r in range(128): a.I(f"v_accvgpr_write_b32 a{A_O + r}, 0")
        for r in range(4): a.I(f"v_mov_b32 v{V_LS + r}, 0")
    n = a.vm_wait({"K0"})
    a.I(f"s_waitcnt vmcnt({n})\ns_barrier")
    for x in k_reads(0): a.I(x)
    zero_o()
    a.I("s_waitcnt lgkmcnt(0)")
    for x in qk_mfmas(0, False): a.I(x)
    for x in k_reads(1): a.I(x)
    a.I("s_nop 7\ns_nop 7")
    def xlane(op, dst):
        a.I(f"""v_mov_b32 v{dst+1}, v{dst}
        s_nop 1
        v_permlane16_swap_b32 v{dst}, v{dst+1}
        s_nop 1
        {op} v{dst}, v{dst}, v{dst+1}
        v_mov_b32 v{dst+1}, v{dst}
        s_nop 1
        v_permlane32_swap_b32 v{dst}, v{dst+1}
        s_nop 1
        {op} v{dst}, v{dst}, v{dst+1}""")
    def rowmax(u, qt, dst):
        b = sbuf(u) + 8*qt
        a.I(f"v_max3_f32 v{dst}, v{b}, v{b+1}, v{b+2}")
        a.I(f"v_max3_f32 v{dst}, v{dst}, v{b+3}, v{b+4}")
        a.I(f"v_max3_f32 v{dst}, v{dst}, v{b+5}, v{b+6}")
        a.I(f"v_max_f32 v{dst}, v{dst}, v{b+7}")
        xlane("v_max_f32", dst)
    for qt in range(4):
        rowmax(0, qt, T)
        for r in range(4): a.I(f"v_sub_f32 v{V_NEGM + 4*qt + r}, 0, v{T}")
        for r in range(8): a.I(f"v_sub_f32 v{sbuf(0) + 8*qt + r}, v{sbuf(0) + 8*qt + r}, v{T}")
    if USE2[0]:
        for r in range(16): a.I(f"v_mov_b32 v{V_LSA+r}, 0")
        for r in range(4): a.I(f"v_mov_b32 v{V_ONES+r}, 0x3f803f80")
    a.I("s_nop 1")
    stamp(a, 2)
    for u in range(0, 8): body(a, u)
    a.I("s_mov_b32 s27, 6")
    a.raw(".p2align 6")
    a.label(f"L_{name}_loop")
    vm_before = list(a.vm)
    for u in range(8, 16): body(a, u, steady=True)
    a.I(f"s_sub_u32 s27, s27, 1\ns_cmp_lg_u32 s27, 0\ns_cbranch_scc1 L_{name}_loop")
    def shift(tag, d): return tag[0] + str(int(tag[1:]) + d)
    assert [shift(t, 4) for t in vm_before] == a.vm, (vm_before, a.vm)
    a.vm = [shift(t, 20) for t in a.vm]
    for u in range(56, 64): body(a, u)
    a.C("---- tail PV(63)")
    if USE2[0]: a.I(sm_cvt(63, 14)); a.I(sm_cvt(63, 15))
    else: a.I(sm_add(63, 31)); a.I(sm_cvt(63, 15))
    for x in v_reads(63): a.I(x)
    a.I("s_waitcnt lgkmcnt(0)")
    if USE2[0]:
        for qt in range(4): a.I(mf(vr(V_LSA + 4*qt, 4), vr(V_ONES, 4), vr(sbuf(63) + qt*8, 4), vr(V_LSA + 4*qt, 4)))
    for x in pv_mfmas(63): a.I(x)
    stamp(a, 3); g_mid(a, 1)
    def lsum_total():
        for qt in range(4):
            a.I(f"v_mov_b32 v{T}, v{V_LS+qt}")
            xlane("v_add_f32", T)
            a.I(f"v_mov_b32 v{V_LS+qt}, v{T}")
    if USE2[0]:
        for qt in range(4): a.I(f"v_mov_b32 v{V_LS+qt}, v{V_LSA+4*qt}")
    else: lsum_total()
    a.I(f"""
    s_mov_b32 s33, {THR:#x}
    v_cmp_nle_f32 vcc, v{V_LS}, s33
    v_cmp_nle_f32 s[34:35], v{V_LS+1}, s33
    v_cmp_nle_f32 s[44:45], v{V_LS+2}, s33
    v_cmp_nle_f32 s[46:47], v{V_LS+3}, s33
    s_nop 1
    s_or_b64 vcc, vcc, s[34:35]
    s_or_b64 s[44:45], s[44:45], s[46:47]
    s_or_b64 vcc, vcc, s[44:45]
    s_cmp_lg_u64 vcc, 0
    s_cselect_b32 s33, 1, {1 if force_fallback else 0}
    v_mov_b32 v{T}, s33
    v_lshlrev_b32 v{T+1}, 2, v0
    s_lshl_b32 s34, s24, 8
    v_add_u32 v{T+1}, s34, v{T+1}
    ds_write_b32 v{T+1}, v{T}
    s_waitcnt lgkmcnt(0)
    s_barrier
    v_lshlrev_b32 v{T+1}, 2, v0
    ds_read_b32 v{T}, v{T+1}
    ds_read_b32 v{T+2}, v{T+1} offset:256
    ds_read_b32 v{T+3}, v{T+1} offset:512
    ds_read_b32 v{T+4}, v{T+1} offset:768
    s_waitcnt lgkmcnt(0)
    v_or3_b32 v{T}, v{T}, v{T+2}, v{T+3}
    v_or_b32 v{T}, v{T}, v{T+4}
    s_nop 0
    v_readfirstlane_b32 s33, v{T}
    s_nop 3
    s_cmp_lg_u32 s33, 0
    s_cbranch_scc1 L_{name}_fallback
    """)
    a.label(f"L_{name}_epi")
    for qt in range(4): a.I(f"v_rcp_f32 v{V_LS+qt}, v{V_LS+qt}")
    a.I(f"""
    s_lshl_b32 s33, s32, 4
    s_lshl_b32 s34, s24, 2
    s_add_u32 s33, s33, s34
    s_lshl_b32 s33, s33, 17              ; qt16*128*1024
    s_lshl_b32 s34, s31, 12              ; head*4*1024
    s_add_u32 s33, s33, s34
    """)
    tb = V_S
    for qt in range(4):
        for t in range(4):
            src = A_O + (qt*4+t)*8
            tt = tb; tb += 8
            for i in range(8): a.I(f"v_accvgpr_read_b32 v{tt+i}, a{src+i}")
            for i in range(8): a.I(f"v_mul_f32 v{tt+i}, v{tt+i}, v{V_LS+qt}")
            for i in range(4): a.I(f"v_cvt_pk_bf16_f32 v{tt+i}, v{tt+2*i}, v{tt+2*i+1}")
            a.I(f"buffer_store_dwordx4 {vr(tt,4)}, v{V_L16}, s[20:23], s33 offen offset:{t*1024}")
        if qt < 3: a.I("s_add_u32 s33, s33, 0x20000")
    if STAMP:
        a.I("s_waitcnt vmcnt(0)")
        stamp(a, 4)
        a.I("s_waitcnt lgkmcnt(0)")
        srd(a, 16, 42, 0x100000, add_imm=0x8000000)
        a.I("s_lshl_b32 s33, s2, 2\ns_add_u32 s33, s33, s24\ns_lshl_b32 s33, s33, 7")
        a.I("v_mov_b32 v1, 0")
        for i in range(20):
            a.I(f"v_mov_b32 v2, s{60+i}")
            a.I(f"buffer_store_dword v2, v1, s[16:19], s33 offen offset:{4*i}")
    g_end(a, 4)
    a.I("s_endpgm")
    a.label(f"L_{name}_fallback")
    zero_o()
    for qt in range(4): a.I(f"v_mov_b32 v{V_M+qt}, 0xff800000")
    a.I("s_mov_b32 s25, s30\ns_mov_b32 s26, s30\ns_mov_b32 s27, 32")
    a.label(f"L_{name}_fb_loop")
    a.I("s_barrier")
    sv = list(a.vm)
    for x in dma_k(a, 0) + dma_v(a, 0): emit(a, x)
    a.vm = sv
    a.I("s_waitcnt vmcnt(0)\ns_barrier")
    for kb in range(2):
        for x in k_reads(kb): a.I(x)
        a.I("s_waitcnt lgkmcnt(0)")
        for x in v_reads(kb): a.I(x)
        a.I("s_waitcnt lgkmcnt(0)")
        for x in qk_mfmas(0, False): a.I(x)
        a.I("s_nop 7\ns_nop 7")
        for qt in range(4):
            rowmax(0, qt, T)
            a.I(f"""
            v_max_f32 v{T}, v{T}, v{V_M+qt}
            v_sub_f32 v{T+2}, v{V_M+qt}, v{T}
            v_exp_f32 v{T+2}, v{T+2}
            v_mov_b32 v{V_M+qt}, v{T}
            v_mul_f32 v{V_LS+qt}, v{V_LS+qt}, v{T+2}
            """)
            for r in range(32):
                o = A_O + qt*32 + r
                a.I(f"v_accvgpr_read_b32 v{T+3}, a{o}\ns_nop 0\nv_mul_f32 v{T+3}, v{T+3}, v{T+2}\ns_nop 0\nv_accvgpr_write_b32 a{o}, v{T+3}")
            for r in range(8):
                e = 8*qt + r
                a.I(f"v_sub_f32 v{sbuf(0)+e}, v{sbuf(0)+e}, v{T}")
                a.I(sm_exp(0, e))
            a.I("s_nop 0")
            for r in range(8): a.I(sm_add(0, 8*qt + r))
            for p in range(4): a.I(sm_cvt(0, 4*qt + p))
        a.I("s_nop 1")
        for x in pv_mfmas(0): a.I(x)
        a.I("s_nop 7\ns_nop 7")
    a.I(f"s_sub_u32 s27, s27, 1\ns_cmp_lg_u32 s27, 0\ns_cbranch_scc1 L_{name}_fb_loop")
    lsum_total()
    a.I(f"s_branch L_{name}_epi")
    a.label(f"L_{name}_done")
    a.I("s_endpgm")
    return a.text(), kernel_desc(name, 512, 256)

if __name__ == "__main__":
    import sys
    STAMP = "stamp" in sys.argv
    USE2[0] = "v2" in sys.argv
    for x in sys.argv:
        if x.startswith("pat="): SCHED["pat"] = x[4:]
    t, d = gen_attn(force_fallback="fb" in sys.argv)
    hdr = "; @launch kernel=attn_kernel grid=(256,1,1) block=(256,1,1) lds=163840\n.amdgcn_target \"amdgcn-amd-amdhsa--gfx950\"\n"
    open(sys.argv[1], "w").write(hdr + t + d)
```

```python
import sys; sys.path.insert(0, "dev")
from gen_common import *
from gen_gemm import f32, mf, SLAB, EPS, C1, C2, xlane, gelu4, emit
import gen_attn16 as AT

WS_ST1 = 0x0950000
WS_PK  = 0x4000000
PK_WO  = 4 * 144 * SLAB
WS_PART = 0x5000000
WS_CX  = 0x7800000
CQ = 1.4426950408889634 / 128 ** 0.5
NAME = "recurrent_scan__mha_block_cached__mixer_s_mlp__prompt_kernel"
P = dict(x=64, k=66, v=68, wq=70, wo=72, w1=76, w2=78, w3=80, w4=82, out=84, dbg=86, ws=88)
PAT = 1; PFD = 10; L16 = 11; T = 12; ST1 = 28
KD = 32; VD = 36; WD = 38; WA = 40; XA = 48; TRA = 49; TRB = 50; TRC = 51; PATB = 52; PCNT = 61; XD = 63
OOB = 0x7fff0000
PTS = []
OPT = dict(pace=72, pace5=50)
def pt(a, name):
    if name in PTS: g_mid(a, PTS.index(name))
    if "CA:" + name in PTS: a.I("s_memtime s[36:37]\ns_memrealtime s[38:39]")
    if "CB:" + name in PTS: a.I("s_memtime s[40:41]\ns_memrealtime s[100:101]")

def pat_regs(a, dst, pitch):
    a.I(f"s_mov_b32 s90, {(1<<32)//18 + 1}\ns_mov_b32 s91, {pitch}")
    for p in range(9):
        a.I(f"""
        v_add_u32 v{T}, {p*64}, v0
        v_mul_hi_u32 v{T+1}, v{T}, s90
        v_mul_u32_u24 v{T+2}, 18, v{T+1}
        v_sub_u32 v{T+2}, v{T}, v{T+2}
        v_mul_lo_u32 v{T+1}, v{T+1}, s91
        v_lshl_add_u32 v{dst+p}, v{T+2}, 4, v{T+1}
        """)
        if p % 4: a.I(f"v_subrev_u32 v{dst+p}, {(p%4)*1024}, v{dst+p}")

def dma_slab(pat, srdW, s_soff, goff, m0expr, tag):
    r = []
    for p in range(9):
        r.append(m0expr((p // 4) * 4096))
        r.append(f"s_add_u32 s3, s{s_soff}, {goff + (0 if pat is not None else (p // 4) * 4096)}")
        r.append(("vm", tag, f"buffer_load_dwordx4 v{pat+p if pat is not None else L16}, s[{srdW}:{srdW+3}], s3 offen offset:{(p%4)*1024} lds"))
    return r

def a_reads(dst, off):
    base = off // 64512; o = off - base * 64512
    assert o + 16*288 + 256 < 65536, off
    return [f"ds_read_b64_tr_b16 {ar(dst + nt*4 + 2*m, 2)}, v{TRA+base} offset:{o + m*16*288 + nt*32}" for nt in range(9) for m in range(2)]

_lbl = [0]
def signal(a, inc, srd_=56):
    _lbl[0] += 1; l = f"L_sig{_lbl[0]}"
    au = a.auto; a.auto = False
    a.I(f"""
    s_cmp_lg_u32 s24, 0
    s_cbranch_scc1 {l}
    v_mov_b32 v{T}, 0
    v_mov_b32 v{T+1}, {inc:#x}
    s_mov_b64 exec, 1
    buffer_atomic_add v{T+1}, v{T}, s[{srd_}:{srd_+3}], s33 offen
    s_mov_b64 exec, -1
    """)
    a.label(l); a.auto = au

def poll_issue(a, tag, mask_code, srd_=56, soff="0", front=True):
    au = a.auto; a.auto = False
    a.I(mask_code)
    a.I(f"""
    s_mov_b64 s[42:43], vcc
    s_cmp_eq_u32 s24, 0
    s_cselect_b64 vcc, s[42:43], 0
    v_mov_b32 v{T}, {OOB:#x}
    v_lshlrev_b32 v{T+1}, 2, v0
    v_cndmask_b32 v{PCNT+1}, v{T}, v{T+1}, vcc
    """)
    a.auto = au
    a.bg_add([("vm", tag, f"buffer_load_dword v{PCNT}, v{PCNT+1}, s[{srd_}:{srd_+3}], {soff} offen sc1")], front=front)

def poll_check(a, tag, shift, want, srd_=56, soff="0"):
    _lbl[0] += 1; l = f"L_poll{_lbl[0]}"
    n = a.vm_wait({tag})
    au = a.auto; a.auto = False
    a.I(f"s_cmp_lg_u32 s24, 0\ns_cbranch_scc1 {l}_ok\ns_waitcnt vmcnt({n})\ns_mov_b32 s35, 400000")
    a.label(l)
    a.I(f"""
    v_bfe_u32 v{T}, v{PCNT}, {shift}, 8
    v_cmp_gt_u32 vcc, {want}, v{T}
    s_nop 1
    s_and_b64 vcc, vcc, s[42:43]
    s_cmp_eq_u64 vcc, 0
    s_cbranch_scc1 {l}_ok
    s_sleep 2
    buffer_load_dword v{PCNT}, v{PCNT+1}, s[{srd_}:{srd_+3}], {soff} offen sc1
    s_waitcnt vmcnt(0)
    s_sub_u32 s35, s35, 1
    s_cmp_lg_u32 s35, 0
    s_cbranch_scc1 {l}
    """)
    a.label(l + "_ok"); a.auto = au

def touch(a, srd_, soff, n, addr=None):
    if not OPT.get("pf", 1): return
    au = a.auto; a.auto = False
    if addr is None:
        a.I(f"v_lshlrev_b32 v{T+9}, 7, v0"); addr = T + 9
    for i in range(n):
        if i: a.I(f"s_add_u32 s{soff}, s{soff}, 8192")
        a.vm_issue("PF"); a.I(f"buffer_load_dword v{PFD}, v{addr}, s[{srd_}:{srd_+3}], s{soff} offen")
    a.auto = au


NTT = set()
class Asm2(Asm):
    def vm_issue(self, tag):
        self._tag = tag; super().vm_issue(tag)
    def I(self, s_):
        t = getattr(self, "_tag", None)
        if t and s_.startswith("buffer_load") and " nt" not in s_ and "sc1" not in s_ and (t.rstrip("0123456789") in NTT):
            s_ = s_.replace(" lds", " nt lds") if s_.endswith(" lds") else s_ + " nt"
        self._tag = None
        super().I(s_)

def gen():
    a = Asm2(); kernel_begin(a, NAME); g_begin(a)
    a.pace = OPT["pace"]
    NT = "nt" if OPT.get("nt", 1) else ""
    def resrd(d, *args, **kw):
        for g in a.bg:
            for x in g:
                assert f"s[{d}:{d+3}]" not in (x[2] if isinstance(x, tuple) else x), ("pending bg item uses SRD", d, x)
        srd(a, d, *args, **kw)
    def W(tags, extra=""):
        n = a.vm_wait(set(tags)); a.I(f"s_waitcnt vmcnt({n}){extra}")
    def noauto(f):
        au = a.auto; a.auto = False; f(); a.auto = au
    a.I(f"""
    s_cmp_ge_u32 s2, 256
    s_cbranch_scc1 L_exit
    s_load_dwordx16 s[64:79], s[0:1], 0
    s_load_dwordx8 s[80:87], s[0:1], 64
    s_load_dwordx2 s[88:89], s[0:1], 96
    s_getpc_b64 s[12:13]
    """)
    a.label("L_pc0")
    a.I(f"""
    s_sub_u32 s12, s12, L_pc0-{NAME}
    s_subb_u32 s13, s13, 0
    s_mov_b32 s14, L_code_end-{NAME}
    s_mov_b32 s15, 0x00020000
    s_lshr_b32 s34, s2, 3
    s_lshl_b32 s33, s34, 12
    v_lshlrev_b32 v2, 4, v0
    buffer_load_dwordx4 v[252:255], v2, s[12:15], s33 offen
    v_lshrrev_b32 v1, 6, v0
    v_and_b32 v0, 63, v0
    s_and_b32 s33, s2, 7
    v_readfirstlane_b32 s24, v1
    s_lshl_b32 s48, s33, 3
    s_lshr_b32 s35, s34, 2
    s_add_u32 s48, s48, s35               ; qb32
    v_lshrrev_b32 v{T}, 3, v0
    v_mul_u32_u24 v{T+2}, 1152, v{T}
    v_and_b32 v{T+1}, 7, v0
    v_lshl_add_u32 v{XA}, v{T+1}, 4, v{T+2}
    s_lshl_b32 s26, s48, 2
    s_add_u32 s26, s26, s24
    s_mul_i32 s26, s26, {8*1152}
    s_mov_b32 s10, {SZ_ACT:#x}
    s_mov_b32 s11, 0x00020000
    s_waitcnt lgkmcnt(0)
    s_mov_b32 s8, s{P['x']}
    s_mov_b32 s9, s{P['x']+1}
    """)
    a.vm_issue("PF"); pt(a, 'ka')
    V_B = 64; V_X = 128; ACC1 = 96; AA1 = 168; RAW = 208
    for j in range(9):
        a.vm_issue("B"); a.I(f"buffer_load_dwordx4 {vr(RAW + j*4, 4)}, v{XA}, s[8:11], s26 offen offset:{j*128}")
    a.I(f"""
    s_lshl_b32 s0, s34, 2
    s_add_u32 s0, s0, s24
    s_mul_i32 s35, s0, 5184
    """)
    pt(a, 'xi')
    srd(a, 16, P['w1'], 576*1152)
    touch(a, 16, 35, 1); pt(a, 'tw1')
    a.I(f"""
    s_lshl_b32 s31, s33, 2
    s_lshr_b32 s35, s34, 3
    s_add_u32 s31, s31, s35               ; head
    s_and_b32 s32, s34, 7                 ; Q (attention)
    s_and_b32 s49, s34, 3                 ; nb
    s_and_b32 s50, s33, 1
    s_lshl_b32 s50, s50, 2
    s_add_u32 s50, s50, s35               ; Q4
    s_lshr_b32 s51, s33, 1
    s_lshl_b32 s51, s51, 3
    s_add_u32 s51, s51, s32               ; fb
    s_lshr_b32 s52, s33, 2
    s_lshl_b32 s52, s52, 3
    s_lshr_b32 s35, s34, 2
    s_add_u32 s52, s52, s35
    s_and_b32 s54, s33, 3                 ; kq
    """)
    if OPT.get("map84", 0):
        a.I("""
        s_lshr_b32 s31, s33, 1
        s_lshl_b32 s31, s31, 3
        s_add_u32 s31, s31, s35
        s_and_b32 s32, s33, 1
        s_lshl_b32 s32, s32, 2
        s_add_u32 s32, s32, s49               ; Q = (x&1)*4 + (idx&3)
        """)
    a.I(f"""
    s_mul_i32 s30, s24, {SLAB}
    s_lshl_b32 s55, s24, 12
    s_mul_i32 s33, s49, 288
    s_cmp_ge_u32 s24, 2
    s_cselect_b32 s34, 5, 0
    s_mul_i32 s60, s49, 9
    s_add_u32 s60, s60, s34               ; ntg0
    s_and_b32 s61, s24, 1                 ; qt
    s_mul_i32 s53, s61, 9
    s_add_u32 s53, s53, s34
    s_lshl_b32 s53, s53, 10
    s_lshl_b32 s62, s48, 1
    s_add_u32 s62, s62, s61
    """)
    srd(a, 4, P['w1'], 0, add_lo=33)
    a.I(f"s_sub_u32 s6, {576*1152}, s33")
    pat_regs(a, PAT, 1152)
    a.I(f"v_lshlrev_b32 v{L16}, 4, v0\ns_mul_i32 s25, s24, {32*1152}")
    def slot13(j): return (j % 4) * 4 * SLAB
    def loadW13(j, tagp):
        return dma_slab(PAT, 4, 25, j*128*1152, lambda o: f"s_add_u32 m0, s30, {slot13(j) + o}", f"{tagp}{j}")
    pt(a, 'w0a')
    NW0 = OPT.get("nw0", 3)
    for j in range(NW0):
        for x in loadW13(j, "W"): emit(a, x)
    pt(a, 'w1b')
    for j in range(NW0, 3): a.bg_add(loadW13(j, "W"))
    srd(a, 56, P['dbg'], 256)
    srd(a, 12, P['ws'], 0x10000, add_imm=WS_CX)
    XIMG = 3*4*SLAB; XQL = 16*SLAB
    XW = T + 12; XR = T + 13; XQW = T + 14
    a.I(f"""
    v_lshrrev_b32 v{T}, 4, v0
    v_bfe_u32 v{T+1}, v0, 2, 2
    v_lshl_add_u32 v{T}, v{T}, 3, v{T+1}
    v_mul_u32_u24 v{T}, 288, v{T}
    v_and_b32 v{T+1}, 3, v0
    v_lshl_add_u32 v{TRA}, v{T+1}, 3, v{T}
    v_lshlrev_b32 v{PCNT+1}, 2, v0
    v_add_u32 v{TRA}, s30, v{TRA}
    v_add_u32 v{TRB}, 64512, v{TRA}
    s_lshl_b32 s33, s52, 2
    s_add_u32 s33, s33, s49
    s_lshl_b32 s33, s33, 8
    s_or_b32 s34, s24, s54
    s_cmp_eq_u32 s34, 0
    s_cselect_b32 s33, s33, {OOB:#x}
    v_mov_b32 v{T}, 0
    """)
    a.vm_issue("CLR"); a.I(f"buffer_store_dword v{T}, v{PCNT+1}, s[12:15], s33 offen sc1")
    a.I(f"""
    v_and_b32 v{T}, 15, v0
    v_mul_u32_u24 v{T}, 1152, v{T}
    v_lshrrev_b32 v{T+1}, 4, v0
    v_lshl_add_u32 v{XD}, v{T+1}, 3, v{T}
    s_lshl_b32 s33, s24, 3
    v_lshrrev_b32 v{T}, 3, v0
    v_add_u32 v{T}, s33, v{T}
    v_bfe_u32 v{T+1}, v{T}, 1, 3
    v_and_b32 v{T+2}, 7, v0
    v_xor_b32 v{T+1}, v{T+1}, v{T+2}
    v_mul_u32_u24 v{T+3}, 1152, v{T}
    v_lshl_add_u32 v{XW}, v{T+1}, 4, v{T+3}
    v_add_u32 v{XW}, {XIMG}, v{XW}
    v_and_b32 v{T}, 15, v{T}
    v_and_b32 v{T+1}, 3, v0
    v_lshl_add_u32 v{T}, v{T+1}, 4, v{T}
    v_lshlrev_b32 v{T}, 4, v{T}
    s_lshr_b32 s33, s24, 1
    s_mul_i32 s33, s33, 5120
    s_add_u32 s33, s33, {XQL}
    v_add_u32 v{XQW}, s33, v{T}
    v_and_b32 v{T}, 15, v0
    v_lshrrev_b32 v{T+1}, 4, v0
    s_lshl_b32 s33, s61, 2
    v_add_u32 v{T+1}, s33, v{T+1}
    v_lshrrev_b32 v{T+2}, 1, v{T}
    v_xor_b32 v{T+1}, v{T+1}, v{T+2}
    v_mul_u32_u24 v{T}, 1152, v{T}
    v_lshl_add_u32 v{XR}, v{T+1}, 4, v{T}
    s_lshr_b32 s33, s24, 1
    s_lshl_b32 s33, s33, 7
    s_add_u32 s33, s33, {XIMG}
    v_add_u32 v{XR}, s33, v{XR}
    v_lshrrev_b32 v{T}, 4, v0
    v_and_b32 v{T+1}, 15, v0
    v_xor_b32 v{T+2}, v{T+1}, v{T}
    v_lshlrev_b32 v{T+2}, 4, v{T+2}
    v_lshl_add_u32 v{KD}, v{T}, 8, v{T+2}
    v_xor_b32 v{KD+1}, 64, v{KD}
    v_xor_b32 v{KD+2}, 0x80, v{KD}
    v_xor_b32 v{KD+3}, 0xc0, v{KD}
    v_lshlrev_b32 v{T+2}, 1, v{T}
    v_xor_b32 v{T+2}, v{T+1}, v{T+2}
    v_lshlrev_b32 v{T+2}, 4, v{T+2}
    v_lshl_add_u32 v{VD}, v{T}, 8, v{T+2}
    v_xor_b32 v{VD+1}, 0x80, v{VD}
    v_lshl_add_u32 v{WD}, v{T}, 13, v{T+2}
    v_xor_b32 v{WD+1}, 0x80, v{WD}
    v_bfe_u32 v{T+1}, v0, 2, 2
    v_lshl_add_u32 v{T+2}, v{T}, 3, v{T+1}
    v_and_b32 v{T}, 1, v{T}
    v_lshl_add_u32 v{T}, v{T}, 2, v{T+1}
    v_lshlrev_b32 v{T}, 1, v{T}
    v_and_b32 v{T+1}, 3, v0
    v_xor_b32 v{T}, v{T}, v{T+1}
    v_lshlrev_b32 v{T}, 4, v{T}
    v_lshl_add_u32 v{WA}, v{T+2}, 8, v{T}
    s_lshl_b32 s33, s32, 4
    s_lshl_b32 s34, s24, 2
    s_add_u32 s46, s33, s34              ; first q tile of this wave (attention rows)
    s_mul_i32 s27, s46, {18*1024}
    s_add_u32 s28, s27, {18*1024}
    s_add_u32 s29, s27, {36*1024}
    s_add_u32 s45, s27, {54*1024}
    s_lshl_b32 s34, s31, 8
    s_lshl_b32 s44, s24, 17
    """)
    srd(a, 12, P['wq'], 0, add_lo=34)
    a.I("s_sub_u32 s14, 0x480000, s34")
    srd(a, 20, P['ws'], SZ_ACT, add_imm=WS_XQ)
    for t in range(1, 4): a.I(f"v_xor_b32 v{WA+t}, {t*64}, v{WA}")
    for t in range(4): a.I(f"v_add_u32 v{WA+4+t}, 0x10000, v{WA+t}")
    XS = [27, 28, 29, 45]
    TBL = [74, 75, 1]
    a.I("s_and_b32 s33, s31, 3\ns_lshl_b32 s33, s33, 1\ns_add_u32 s33, s33, s32\ns_mov_b32 s74, 0\ns_mov_b32 s75, 0\ns_mov_b32 s1, 0")
    if not OPT.get("rot", 0): a.I("s_mov_b32 s33, 0")
    for c in range(9):
        a.I(f"s_add_u32 s34, s33, {c}\ns_sub_u32 s35, s34, 9\ns_cmp_ge_u32 s34, 9\ns_cselect_b32 s34, s35, s34\ns_sub_u32 s35, s34, 9\ns_cmp_ge_u32 s34, 9\ns_cselect_b32 s34, s35, s34\ns_lshl_b32 s34, s34, {3 + 8*(c%4)}\ns_or_b32 s{TBL[c//4]}, s{TBL[c//4]}, s34")
    def cbfe(c): return f"s_bfe_u32 s3, s{TBL[c//4]}, {(8 << 16) | (8*(c%4)):#x}"
    def xset(c): s_ = c % 6; return 32 * s_ if s_ < 4 else 192 + 32*(s_-4)
    def ld_x(c):
        r = []
        for qt in range(4):
            for kl in range(2):
                r += [cbfe(c), "s_lshl_b32 s3, s3, 8", f"s_add_u32 s3, s3, s{XS[qt]}",
                      ("vm", f"X{c}", f"buffer_load_dwordx4 {ar(xset(c) + (kl*4+qt)*4, 4)}, v{L16}, s[20:23], s3 offen offset:{kl*1024}")]
        return r
    def wq_lds(c): return 16384*c if c < 5 else 98304 + 16384*(c-5)
    def dma_wq(c):
        r = []
        for i in range(4):
            r.append(f"s_add_u32 m0, s55, {wq_lds(c) + i*1024}")
            r += [cbfe(c), "s_lshl_b32 s3, s3, 16", "s_add_u32 s3, s3, s44", f"s_add_u32 s3, s3, {i*4*8192}"] if i else [cbfe(c), "s_lshl_b32 s3, s3, 16", "s_add_u32 s3, s3, s44"]
            r.append(("vm", f"Q{c}", f"buffer_load_dwordx4 v{WD+(i>>1)}, s[12:15], s3 offen lds"))
        return r
    def pf_wq():
        srd(a, 16, P['wq'], 0x480000)
        m84 = OPT.get("map84", 0)
        for i in range(2 if m84 else 1):
            a.I(f"""
            s_mul_i32 s35, s0, {72 if m84 else 36}
            v_min_u32 v{T}, 35, v0
            v_add_u32 v{T}, s35, v{T}
            v_add_u32 v{T}, {36*i}, v{T}
            v_lshrrev_b32 v{T+1}, {4 if m84 else 3}, v{T}
            v_and_b32 v{T}, {15 if m84 else 7}, v{T}
            v_lshlrev_b32 v{T}, 7, v{T}
            v_lshl_add_u32 v{T}, v{T+1}, 13, v{T}
            s_and_b32 s35, s2, {6 if m84 else 7}
            s_lshl_b32 s35, s35, 10
            """)
            touch(a, 16, 35, 1, addr=T)
    if OPT.get('pfwq', 2) == 1: pf_wq()
    pt(a, 'xw'); W(["B"]); pt(a, 'xarr')
    a.auto = True
    for r in range(36): a.I(f"v_lshlrev_b32 v{V_X+2*r}, 16, v{RAW+r}\nv_and_b32 v{V_X+2*r+1}, 0xffff0000, v{RAW+r}")
    def red8(d):
        a.I(f"""v_add_f32 v{d}, v{d}, v{d+1}
        s_nop 1
        v_add_f32_dpp v{d}, v{d}, v{d} quad_perm:[1,0,3,2] row_mask:0xf bank_mask:0xf
        s_nop 1
        v_add_f32_dpp v{d}, v{d}, v{d} quad_perm:[2,3,0,1] row_mask:0xf bank_mask:0xf
        s_nop 1
        v_add_f32_dpp v{d}, v{d}, v{d} row_half_mirror row_mask:0xf bank_mask:0xf""")
    d = T + 4
    a.I(f"v_pk_add_f32 v[{d}:{d+1}], v[{V_X}:{V_X+1}], v[{V_X+2}:{V_X+3}]\nv_pk_add_f32 v[{d+2}:{d+3}], v[{V_X+4}:{V_X+5}], v[{V_X+6}:{V_X+7}]")
    for e in range(8, 72, 2): a.I(f"v_pk_add_f32 v[{d+(e&2)}:{d+(e&2)+1}], v[{d+(e&2)}:{d+(e&2)+1}], v[{V_X+e}:{V_X+e+1}]")
    a.I(f"v_pk_add_f32 v[{d}:{d+1}], v[{d}:{d+1}], v[{d+2}:{d+3}]")
    red8(d)
    a.I(f"s_mov_b32 s47, {f32(-1.0/576):#x}\nv_mul_f32 v{d}, s47, v{d}")
    for e in range(0, 72, 2): a.I(f"v_pk_add_f32 v[{V_X+e}:{V_X+e+1}], v[{V_X+e}:{V_X+e+1}], v[{d}:{d+1}] op_sel_hi:[1,0]")
    a.I(f"v_pk_mul_f32 v[{d}:{d+1}], v[{V_X}:{V_X+1}], v[{V_X}:{V_X+1}]\nv_pk_mul_f32 v[{d+2}:{d+3}], v[{V_X+2}:{V_X+3}], v[{V_X+2}:{V_X+3}]")
    for e in range(4, 72, 2): a.I(f"v_pk_fma_f32 v[{d+(e&2)}:{d+(e&2)+1}], v[{V_X+e}:{V_X+e+1}], v[{V_X+e}:{V_X+e+1}], v[{d+(e&2)}:{d+(e&2)+1}]")
    a.I(f"v_pk_add_f32 v[{d}:{d+1}], v[{d}:{d+1}], v[{d+2}:{d+3}]")
    red8(d)
    a.I(f"""
    s_mov_b32 s34, {f32(EPS):#x}
    s_mov_b32 s47, {f32(1.0/576):#x}
    s_mov_b32 s33, {f32(CQ):#x}
    v_mul_f32 v{d}, s47, v{d}
    v_add_f32 v{d+2}, s34, v{d}
    v_fma_f32 v{d+3}, v{d+2}, s34, v{d}
    v_rsq_f32 v{d+2}, v{d+2}
    v_rsq_f32 v{d}, v{d+3}
    s_nop 0
    v_mul_f32 v{d+2}, s33, v{d+2}
    """)
    a.auto = False
    a.I(f"""
    s_mov_b32 s34, 0x0f0f0f0f
    s_bitcmp1_b32 s49, 0
    s_cselect_b32 s34, 0xf0f0f0f0, s34
    s_mov_b32 s35, s34
    s_bitcmp1_b32 s49, 1
    s_cbranch_scc1 L_xq_odd
    """)
    for par in range(2):
        if par: a.label("L_xq_odd")
        for j in range(par, 9, 2):
            b = V_X + j*8; o = RAW + (j >> 1)*4; t = V_B
            for r in range(4): a.I(f"v_pk_mul_f32 v[{t+2*r}:{t+2*r+1}], v[{b+2*r}:{b+2*r+1}], v[{d+2}:{d+3}] op_sel_hi:[1,0]")
            for r in range(4): a.I(f"v_cvt_pk_bf16_f32 v{o+r}, v{t+2*r}, v{t+2*r+1}")
        a.I("s_mov_b64 exec, s[34:35]")
        for j in range(par, 9, 2): a.I(f"ds_write_b128 v{XQW}, {vr(RAW + (j >> 1)*4, 4)} offset:{(j >> 1)*1024}")
        a.I("s_mov_b64 exec, -1")
        if par == 0: a.I("s_branch L_xq_done")
    a.label("L_xq_done"); a.auto = True
    for j in range(9):
        b = V_X + j*8
        for r in range(4): a.I(f"v_pk_mul_f32 v[{b+2*r}:{b+2*r+1}], v[{b+2*r}:{b+2*r+1}], v[{d}:{d+1}] op_sel_hi:[1,0]")
        for r in range(4): a.I(f"v_cvt_pk_bf16_f32 v{b+r}, v{b+2*r}, v{b+2*r+1}")
        a.I(f"ds_write_b128 v{XW}, {vr(b, 4)} offset:{j*128}")
    W(["W0"], " lgkmcnt(0)"); a.I("s_barrier")
    a.I(f"s_lshl_b32 s33, s24, 10\ns_add_u32 s33, s33, {XQL}\nv_add_u32 v{T}, s33, v{L16}")
    for k_ in range(3): a.I(f"ds_read_b128 {vr(RAW + k_*4, 4)}, v{T} offset:{k_*4096}")
    for i in range(5):
        for qt in range(2): a.I(f"ds_read_b128 {vr(V_B + (i*2+qt)*4, 4)}, v{XR} offset:{qt*18432 + i*256}")
    a.auto = False
    a.I("s_waitcnt lgkmcnt(10)")
    for k_ in range(3):
        a.I(f"""
        s_add_u32 s33, s24, {4*k_}
        s_cmp_ge_u32 s33, 5
        s_cselect_b32 s34, 1, 0
        s_mul_i32 s35, s34, 5
        s_sub_u32 s35, s33, s35
        s_lshl_b32 s35, s35, 2
        s_add_u32 s35, s35, s49               ; ks
        s_lshl_b32 s47, s48, 1
        s_add_u32 s34, s34, s47
        s_mul_i32 s34, s34, 18
        s_add_u32 s34, s34, s35
        s_lshl_b32 s34, s34, 10
        s_cmp_ge_u32 s35, 18
        s_cselect_b32 s34, {OOB:#x}, s34
        s_cmp_ge_u32 s33, 10
        s_cselect_b32 s34, {OOB:#x}, s34
        """)
        a.vm_issue("XQ"); a.I(f"buffer_store_dwordx4 {vr(RAW + k_*4, 4)}, v{L16}, s[20:23], s34 offen sc1")
    def nat_reads(dst, off):
        base = off // 64512; o = off - base * 64512
        return [f"ds_read_b64_tr_b16 {ar(dst + nt*4 + 2*m, 2)}, v{TRA+base} offset:{o + m*4*288 + nt*32}" for nt in range(9) for m in range(2)]
    for x in nat_reads(AA1, 0): a.I(x)
    a.I(f"s_waitcnt lgkmcnt(0)\ns_barrier\ns_cmp_lt_u32 s24, 2\ns_cbranch_scc1 L_b4ok")
    for r in range(8): a.I(f"v_mov_b32 v{V_B+32+r}, 0")
    a.label("L_b4ok"); a.auto = True
    a.bg_add(loadW13(3, "W") + loadW13(4, "W"), front=True)
    pt(a, 'ln')
    if OPT.get('pfwq', 2) == 2: a.force(None); noauto(pf_wq)
    RED = 90112; XQS = OPT.get('xqs', 2)
    def small_gemm_steps(tagp, accr, AA, bfrag, late_w4, a_reads=a_reads, last_need=()):
        if late_w4:
            W([f"{tagp}0"])
            for x in a_reads(AA, 0): a.I(x)
        for i in range(5):
            W([f"{tagp}{min(i+1, 4)}", f"B{i}"] + (list(last_need) if i == XQS else []), " lgkmcnt(0)")
            if last_need and i == XQS:
                a.I("s_barrier\ns_lshr_b32 s33, s48, 3\ns_lshl_b32 s33, s33, 5\ns_add_u32 s33, s33, 4"); signal(a, 0x100)
            if late_w4 and i == 0: a.bg_add(loadW13(4, tagp), front=True)
            rd = a_reads(AA + 36*((i+1) % 2), slot13(i+1)) if i < 4 else []
            k = 0
            for nt in range(9):
                for qt in range(2):
                    d = accr(qt*9+nt)
                    a.I(mf(d, ar(AA + 36*(i % 2) + nt*4, 4), bfrag(i, qt), d if i else "0"))
                    if k < len(rd): a.I(rd[k]); k += 1
        a.I(f"s_nop 7\ns_barrier\ns_mul_i32 s33, s24, {18*1024}\ns_add_u32 s33, s33, {RED}\nv_add_u32 v{T}, s33, v{L16}")
    def acc_to_lds(accr):
        for t in range(18): a.I(f"ds_write_b128 v{T}, {accr(t)} offset:{t*1024}")
    RES = 64; BUF = 84; XL = 116; S1V = 64
    def reduce_tiles():
        a.I(f"s_waitcnt lgkmcnt(0)\ns_barrier\ns_add_u32 s33, s53, {RED}\nv_add_u32 v{T}, s33, v{L16}")
        def rd(j):
            for w in range(4): a.I(f"ds_read_b128 {vr(BUF + (j%2)*16 + w*4, 4)}, v{T} offset:{w*18*1024 + j*1024}")
        rd(0)
        for j in range(5):
            if j < 4: rd(j + 1)
            a.I(f"s_waitcnt lgkmcnt({4 if j < 4 else 0})")
            b = BUF + (j%2)*16
            for h in (0, 2):
                a.I(f"v_pk_add_f32 v[{b+h}:{b+h+1}], v[{b+h}:{b+h+1}], v[{b+4+h}:{b+5+h}]")
                a.I(f"v_pk_add_f32 v[{b+8+h}:{b+9+h}], v[{b+8+h}:{b+9+h}], v[{b+12+h}:{b+13+h}]")
                a.I(f"v_pk_add_f32 v[{RES+j*4+h}:{RES+j*4+h+1}], v[{b+h}:{b+h+1}], v[{b+8+h}:{b+9+h}]")
    def piece_off(j, dst):
        a.I(f"s_add_u32 s33, s60, {j}\ns_lshr_b32 s{dst}, s33, 1\ns_lshl_b32 s{dst}, s{dst}, 10\ns_and_b32 s33, s33, 1\ns_lshl_b32 s33, s33, 3\ns_add_u32 s{dst}, s{dst}, s33")
        if j == 4: a.I(f"s_cmp_ge_u32 s24, 2\ns_cselect_b32 s{dst}, {OOB:#x}, s{dst}")
    acc1 = lambda t: ar(ACC1 + t*4, 4)
    small_gemm_steps("W", acc1, AA1, lambda i, qt: vr(V_B + (i*2+qt)*4, 4), False, nat_reads, ["XQ", "CLR"]); pt(a, 't1m')
    acc_to_lds(acc1)
    NQ0 = OPT.get("nq0", 2)
    if OPT.get('c0early', 1):
        poll_issue(a, "P0", "s_lshl_b32 s33, s32, 3\ns_add_u32 s33, s33, 1\nv_cmp_eq_u32 vcc, s33, v0\ns_nop 1"); a.force({"P0"})
    for c in range(NQ0): a.bg_add(dma_wq(c))
    a.I(f"""
    v_lshrrev_b32 v{T+2}, 2, v0
    v_mul_u32_u24 v{T+2}, 288, v{T+2}
    v_and_b32 v{T+3}, 3, v0
    v_lshl_add_u32 v{TRA}, v{T+3}, 3, v{T+2}
    v_add_u32 v{TRA}, s30, v{TRA}
    v_add_u32 v{TRB}, 64512, v{TRA}
    v_add_u32 v{TRC}, 129024, v{TRA}
    """)
    reduce_tiles()
    def do_chk0():
        pt(a, 'c0a'); poll_check(a, "P0", 8, 32); a.I("s_barrier"); pt(a, 'c0b')
        a.bg_add(ld_x(0) + ld_x(1), front=True)
        for c in range(2, 6): a.bg_add((dma_wq(c) if NQ0 <= c < 5 else []) + ld_x(c))
    if OPT.get('c0early', 1): do_chk0()
    else:
        poll_issue(a, "P0", "s_lshl_b32 s33, s32, 3\ns_add_u32 s33, s33, 1\nv_cmp_eq_u32 vcc, s33, v0\ns_nop 1", front=False)
    a.I(f"s_mov_b32 s92, {f32(C2):#x}\ns_mov_b32 s93, {f32(C2):#x}\nv_mov_b32 v{T+4}, {f32(C1):#x}\nv_mov_b32 v{T+5}, {f32(C1):#x}")
    srd(a, 16, P['ws'], SZ_ACT, add_imm=WS_H)
    a.I(f"""
    s_cmp_eq_u32 s49, 0
    s_cselect_b32 s47, 1, -1
    s_cmp_eq_u32 s49, 2
    s_cselect_b32 s47, 2, s47
    s_cmp_eq_u32 s49, 3
    s_cselect_b32 s47, -2, s47
    s_lshl_b32 s33, s62, 4
    s_add_u32 s33, s33, s47
    v_and_b32 v{T}, 15, v0
    v_add_u32 v{T}, s33, v{T}
    v_cmp_gt_u32 vcc, 0x800, v{T}
    v_and_b32 v{T}, 0x7ff, v{T}
    v_lshrrev_b32 v{T+1}, 4, v{T}
    v_mul_u32_u24 v{T+1}, {18*1024}, v{T+1}
    v_and_b32 v{T}, 15, v{T}
    v_lshl_add_u32 v{T+1}, v{T}, 4, v{T+1}
    v_and_b32 v{T}, 0x30, v0
    v_lshl_add_u32 v{T+2}, v{T}, 4, v{T+1}
    """)
    for j in range(5):
        b = RES + j*4
        gelu4(a, b, BUF + (j%2)*4, T + 4, 92)
        a.I(f"v_cvt_pk_bf16_f32 v{b}, v{b}, v{b+1}\nv_cvt_pk_bf16_f32 v{b+1}, v{b+2}, v{b+3}")
        a.I(f"v_cndmask_b32 v{b}, 0, v{b}, vcc\nv_cndmask_b32 v{b+1}, 0, v{b+1}, vcc")
        piece_off(j, 35)
        a.vm_issue("H"); a.I(f"buffer_store_dwordx2 v[{b}:{b+1}], v{T+2}, s[16:19], s35 offen sc1")
    if not OPT.get('c0early', 1): do_chk0()
    pt(a, 't1')
    def abuf(y): return 128 + 32 * (y % 2)
    def w_reads(y):
        o = wq_lds(y >> 1) + (y & 1) * 8192
        base = WA + (4 if 65536 <= o < 131072 else 0); o %= 65536
        return [f"ds_read_b64_tr_b16 {ar(abuf(y) + (t*2+b)*4 + 2*m, 2)}, v{base+t} offset:{o + m*1024 + 8*b}" for t in range(4) for b in range(2) for m in range(2)]
    a.I("s_mul_i32 s33, s49, 288")
    resrd(4, P['w2'], 0, add_lo=33)
    a.I(f"""
    s_sub_u32 s6, {576*1152}, s33
    s_mul_i32 s26, s48, {2*18*1024}
    s_lshl_b32 s33, s24, 10
    s_add_u32 s26, s26, s33
    s_add_u32 s94, s26, {18*1024}
    s_add_u32 s95, s26, 16384
    s_add_u32 s47, s94, 16384
    s_cmp_ge_u32 s24, 2
    s_cselect_b32 s95, {OOB:#x}, s95
    s_cselect_b32 s47, {OOB:#x}, s47
    v_and_b32 v{T+14}, 15, v0
    v_lshlrev_b32 v{T+14}, 4, v{T+14}
    v_bfe_u32 v{T+15}, v0, 5, 1
    v_lshl_add_u32 v{T+14}, v{T+15}, 8, v{T+14}
    v_bfe_u32 v{T+15}, v0, 4, 1
    v_lshl_add_u32 v{T+14}, v{T+15}, 3, v{T+14}
    s_mul_i32 s63, s62, {18*1024}
    s_lshl_b32 s34, s60, 9
    s_add_u32 s63, s63, s34
    """)
    xl_items = [("vm", "XL", f"buffer_load_dwordx2 v[{XL+2*j}:{XL+2*j+1}], v{T+14}, s[20:23], s63 offen offset:{j*512}") for j in range(5)]
    def sig1():
        a.I("s_lshl_b32 s33, s48, 2"); signal(a, 1)
    def bT3(i): return 192 + i*8
    def pf_w2():
        a.I(f"s_mul_i32 s35, s0, 5184\ns_mul_i32 s33, s49, 288\ns_sub_u32 s56, s4, s33") if False else None
        srd(a, 56, P['w2'], 576*1152); a.I("s_mul_i32 s35, s0, 5184"); touch(a, 56, 35, 1); srd(a, 56, P['dbg'], 256)
    def pf_kv():
        m84 = OPT.get("map84", 0)
        a.I(f"s_lshl_b32 s33, s31, 19\ns_and_b32 s35, s0, {15 if m84 else 31}\ns_lshl_b32 s35, s35, {12 if m84 else 11}\ns_add_u32 s35, s35, s33\nv_and_b32 v{T}, {31 if m84 else 15}, v0\nv_lshlrev_b32 v{T}, 7, v{T}")
        srd(a, 56, P['k'], 0x1000000); touch(a, 56, 35, 1, addr=T)
        srd(a, 56, P['v'], 0x1000000); touch(a, 56, 35, 1, addr=T); srd(a, 56, P['dbg'], 256)
    def iss1():
        poll_issue(a, "P1", f"v_subrev_u32 v{T+2}, s48, v0\nv_add_u32 v{T+2}, 1, v{T+2}\nv_and_b32 v{T+2}, 63, v{T+2}\nv_cmp_gt_u32 vcc, 3, v{T+2}\ns_nop 1")
    def chk1():
        pt(a, 'c1a'); poll_check(a, "P1", 0, 4); pt(a, 'c1b')
    def ldb3():
        it = []
        for i in range(5):
            for qt in range(2):
                it.append(f"s_add_u32 s3, s{(26, 94)[qt]}, {i*4096}" if i < 4 else f"s_mov_b32 s3, s{(95, 47)[qt]}")
                it.append(("vm", f"B{i}", f"buffer_load_dwordx4 {ar(bT3(i) + qt*4, 4)}, v{L16}, s[16:19], s3 offen"))
        a.bg_add(it + xl_items, front=True)
    def wa_hi():
        for t in range(4): a.I(f"v_add_u32 v{WA+t}, 0x20000, v{WA+t}")
    hooks = {(0, "pre"): [lambda: a.bg_add(dma_wq(5) + dma_wq(6) + dma_wq(7) + dma_wq(8))],
             (1, "post"): [lambda: a.bg_add(ld_x(6)), lambda: noauto(pf_w2)],
             (3, "need"): {"H"}, (3, "bar"): [sig1], (3, "post"): [lambda: a.bg_add(ld_x(7))],
             (5, "bar"): [lambda: a.bg_add(loadW13(0, "U"))], (5, "post"): [lambda: a.bg_add(ld_x(8), front=True)],
             (7, "bar"): [wa_hi], (7, "post"): [lambda: noauto(pf_kv)],
             (9, "bar"): [lambda: a.bg_add(loadW13(1, "U"))],
             (11, "bar"): [lambda: a.bg_add(loadW13(2, "U")), iss1],
             (12, "post"): [chk1], (13, "bar"): [ldb3],
             (15, "bar"): [lambda: a.bg_add(loadW13(3, "U"))]}
    if OPT.get("w2late"):
        hooks[(5, "bar")] = []; hooks[(9, "bar")] = []; hooks[(11, "bar")] = hooks[(11, "bar")][1:]; hooks[(15, "bar")] = []
        hooks[(17, "post")] = [lambda: a.bg_add(loadW13(0, "U") + loadW13(1, "U") + loadW13(2, "U") + loadW13(3, "U"))]
    if OPT.get("nox"):
        XS[:] = [27, 27, 27, 27]
    W(["Q0"]); a.I("s_barrier")
    for x in w_reads(0): a.I(x)
    for x in hooks[(0, "pre")]: x()
    for y in range(18):
        c = y >> 1
        a.C(f"qproj unit {y}"); pt(a, f"u{y}a")
        if y % 2 == 1 and y + 1 < 18:
            W({f"Q{c+1}", f"X{c}"} | hooks.get((y, "need"), set()), " lgkmcnt(0)"); a.I("s_barrier")
        else:
            W([f"X{c}"], " lgkmcnt(0)")
        for x in hooks.get((y, "bar"), []): x()
        rd = w_reads(y + 1) if y + 1 < 18 else []
        k = 0; g = 0
        for tb in range(8):
            for qt in range(4):
                d = vr(128 + (qt*8 + tb)*4, 4)
                a.I(mf(d, ar(abuf(y) + tb*4, 4), ar(xset(c) + ((y & 1)*4+qt)*4, 4), d if y else "0"))
                if g < 24 and g % 3 != 2 and k < len(rd): a.I(rd[k]); k += 1
                g += 1
        for x in hooks.get((y, "post"), []): x()
    pt(a, 'qp')
    QS = 160 * 1024 - 4096
    def cs_exchange(src, n, dst, bufs):
        a.I(f"""
        s_nop 7
        s_barrier
        v_lshrrev_b32 v{T+6}, 4, v0
        v_lshlrev_b32 v{T+6}, 4, v{T+6}
        v_add_u32 v{T+6}, {QS}, v{T+6}
        s_mul_i32 s33, s24, {n*64}
        v_add_u32 v{T+1}, s33, v{T+6}
        """)
        for t in range(n): a.I(f"ds_write_b128 v{T+1}, {src(t)} offset:{t*64}")
        a.I("s_waitcnt lgkmcnt(0)\ns_barrier")
    def cs_sum(n, dst, tmp):
        for w in range(4):
            for t in range(n): a.I(f"ds_read_b128 {vr((dst if w == 0 else tmp + (w-1)*n*4) + t*4, 4)}, v{T+6} offset:{w*n*64 + t*64}")
            if w: a.I("s_waitcnt lgkmcnt(0)") if w == 3 else None
        for t in range(n):
            for h in (0, 2):
                d = dst + t*4 + h; p = [tmp + w*n*4 + t*4 + h for w in range(3)]
                a.I(f"v_pk_add_f32 v[{d}:{d+1}], v[{d}:{d+1}], v[{p[0]}:{p[0]+1}]\nv_pk_add_f32 v[{p[1]}:{p[1]+1}], v[{p[1]}:{p[1]+1}], v[{p[2]}:{p[2]+1}]\nv_pk_add_f32 v[{d}:{d+1}], v[{d}:{d+1}], v[{p[1]}:{p[1]+1}]")
    a.I("s_nop 3")
    for qt in range(4):
        for t in range(4):
            b = 128 + (qt*8 + t*2)*4
            for i in range(4): a.I(f"v_cvt_pk_bf16_f32 v{b+i}, v{b+2*i}, v{b+2*i+1}")
            for i in range(4): a.I(f"v_accvgpr_write_b32 a{AT.A_Q + (qt*4+t)*4 + i}, v{b+i}")
    pt(a, 'qc')
    acc3 = lambda t: vr(128 + t*4, 4); AA3 = 0
    small_gemm_steps("U", acc3, AA3, lambda i, qt: ar(bT3(i) + qt*4, 4), True)
    pt(a, 't3m')
    assert not a.bg
    a.I("s_lshl_b32 s33, s31, 19\ns_mov_b32 s30, s55\ns_mov_b32 s25, s55\ns_mov_b32 s26, s55")
    srd(a, 4, P['k'], 524288, add_lo=33)
    srd(a, 8, P['v'], 524288, add_lo=33)
    AT.FIRST0[0] = True
    AT.V_KD = KD; AT.V_VD = VD; AT.V_L16 = L16; AT.V_T = T
    AT.V_KA = 64; AT.V_VA = 68; AT.V_LS = 76; AT.V_M = 80; AT.V_NEGM = 96
    def selfc(d):
        r = []
        for x in d[1:5]: r += [d[0], "s_nop 0", x]
        return r + [d[5]]
    def kv(lst):
        it = []
        for kind, t in lst: it += selfc(AT.dma_k(a, t) if kind == "k" else AT.dma_v(a, t))
        return it
    a.bg_add(kv((("k", 0), ("k", 1), ("v", 0), ("k", 2))))
    acc_to_lds(acc3)
    reduce_tiles()
    srd(a, 16, P['ws'], SZ_ACT, add_imm=WS_X1)
    a.I(f"""
    s_mul_i32 s47, s62, {18*1024}
    v_add_u32 v{T+2}, s47, v{L16}
    v_mov_b32 v{T+6}, {f32(1.0/CQ):#x}
    """)
    for j in range(5):
        b = RES + j*4; s_ = XL + 2*j; e = BUF + (j%2)*8
        piece_off(j, 35)
        a.I(f"""
        v_lshlrev_b32 v{e}, 16, v{s_}
        v_and_b32 v{e+1}, 0xffff0000, v{s_}
        v_lshlrev_b32 v{e+2}, 16, v{s_+1}
        v_and_b32 v{e+3}, 0xffff0000, v{s_+1}
        v_pk_fma_f32 v[{b}:{b+1}], v[{e}:{e+1}], v[{T+6}:{T+7}], v[{b}:{b+1}] op_sel_hi:[1,0,1]
        v_pk_fma_f32 v[{b+2}:{b+3}], v[{e+2}:{e+3}], v[{T+6}:{T+7}], v[{b+2}:{b+3}] op_sel_hi:[1,0,1]
        v_cvt_pk_bf16_f32 v{e+4}, v{b}, v{b+1}
        v_cvt_pk_bf16_f32 v{e+5}, v{b+2}, v{b+3}
        """)
        a.vm_issue("X1"); a.I(f"buffer_store_dwordx2 v[{e+4}:{e+5}], v{T+2}, s[16:19], s35 offen sc1")
        a.I(f"""
        v_lshlrev_b32 v{b}, 16, v{e+4}
        v_and_b32 v{b+1}, 0xffff0000, v{e+4}
        v_lshlrev_b32 v{b+2}, 16, v{e+5}
        v_and_b32 v{b+3}, 0xffff0000, v{e+5}
        """)
    a.auto = False
    a.I(f"""
    s_cmp_ge_u32 s24, 2
    s_cselect_b32 s92, 0, 1.0
    s_mov_b32 s93, {f32(1/80):#x}
    s_cbranch_scc0 L_five
    s_mov_b32 s93, {f32(1/64):#x}
    v_mov_b32 v{RES+16}, 0
    v_mov_b32 v{RES+17}, 0
    v_mov_b32 v{RES+18}, 0
    v_mov_b32 v{RES+19}, 0
    """)
    a.label("L_five"); a.auto = True
    vals = [RES + e for e in range(20)]
    a.I(f"v_add_f32 v{T+4}, v{vals[0]}, v{vals[1]}")
    for v in vals[2:]: a.I(f"v_add_f32 v{T+4}, v{T+4}, v{v}")
    xlane(a, "v_add_f32", T+4)
    a.I(f"v_mul_f32 v{T+6}, s93, v{T+4}\nv_mul_f32 v{T+7}, s92, v{T+6}\nv_mov_b32 v{T+8}, 0")
    for e, v in enumerate(vals):
        a.I(f"v_sub_f32 v{v}, v{v}, v{T+6 + (1 if e >= 16 else 0)}\nv_fmac_f32 v{T+8}, v{v}, v{v}")
    xlane(a, "v_add_f32", T+8)
    srd(a, 16, P['ws'], 2048*64, add_imm=WS_ST)
    a.I(f"""
    v_mov_b32 v{T+5}, v{T+8}
    s_lshl_b32 s33, s62, 10
    s_lshl_b32 s34, s49, 4
    s_add_u32 s33, s33, s34
    s_lshr_b32 s34, s24, 1
    s_lshl_b32 s34, s34, 3
    s_add_u32 s33, s33, s34
    v_lshlrev_b32 v{T}, 6, v0
    v_cmp_gt_u32 vcc, 16, v0
    v_mov_b32 v{T+1}, {OOB:#x}
    s_nop 0
    v_cndmask_b32 v{T}, v{T+1}, v{T}, vcc
    """)
    a.vm_issue("X1"); a.I(f"buffer_store_dwordx2 v[{T+4}:{T+5}], v{T}, s[16:19], s33 offen sc1")
    pt(a, 't3')
    KA, VA, LS, NEGM = AT.V_KA, AT.V_VA, AT.V_LS, AT.V_NEGM
    a.I(f"""
    v_lshrrev_b32 v{T}, 4, v0
    v_and_b32 v{T+1}, 15, v0
    v_xor_b32 v{T+2}, v{T+1}, v{T}
    v_lshlrev_b32 v{T+2}, 4, v{T+2}
    v_lshl_add_u32 v{KA}, v{T+1}, 8, v{T+2}
    v_xor_b32 v{KA+1}, 64, v{KA}
    v_xor_b32 v{KA+2}, 0x80, v{KA}
    v_xor_b32 v{KA+3}, 0xc0, v{KA}
    v_lshrrev_b32 v{T}, 2, v0
    v_and_b32 v{T+1}, 7, v{T}
    v_and_b32 v{T+2}, 3, v0
    v_lshlrev_b32 v{T+3}, 8, v{T}
    v_lshl_add_u32 v{T+4}, v{T+1}, 5, v{T+3}
    v_lshl_add_u32 v{T+4}, v{T+2}, 3, v{T+4}
    v_add_u32 v{VA}, {AT.VREG}, v{T+4}
    """)
    for dt in range(1, 8): a.I(f"v_xor_b32 v{VA+dt}, {dt*32}, v{VA}")
    def zero_o():
        for r in range(128): a.I(f"v_accvgpr_write_b32 a{AT.A_O + r}, 0")
        for r in range(16): a.I(f"v_mov_b32 v{AT.V_LSA + r}, 0")
    for r in range(4): a.I(f"v_mov_b32 v{AT.V_ONES + r}, 0x3f803f80")
    W(["K0"]); a.I("s_barrier")
    a.bg_add(kv((("v", 1), ("k", 3), ("v", 2))))
    for x in AT.k_reads(0): a.I(x)
    a.I("s_waitcnt lgkmcnt(0)")
    for x in AT.qk_mfmas(0, False): a.I(x)
    for x in AT.k_reads(1): a.I(x)
    a.force(None); a.auto = False
    PKR = 84; PKT = 80
    a.I(f"s_mov_b32 s90, {(1<<32)//6 + 1}")
    for p in range(3):
        a.I(f"""
        v_add_u32 v{T}, {p*64}, v0
        v_mul_hi_u32 v{T+1}, v{T}, s90
        v_mul_u32_u24 v{T+2}, 6, v{T+1}
        v_sub_u32 v{T+2}, v{T}, v{T+2}
        v_mul_u32_u24 v{T+1}, 1152, v{T+1}
        v_lshl_add_u32 v{PAT+p}, v{T+2}, 4, v{T+1}
        """)
        if p: a.I(f"v_subrev_u32 v{PAT+p}, {p*1024}, v{PAT+p}")
    a.I(f"""
    v_lshrrev_b32 v{T}, 2, v0
    v_mul_u32_u24 v{T}, 96, v{T}
    v_and_b32 v{T+1}, 3, v0
    v_lshl_add_u32 v{PKT}, v{T+1}, 3, v{T}
    s_add_u32 s91, s55, 0x20000
    v_add_u32 v{PKT}, s91, v{PKT}
    s_lshl_b32 s33, s2, 2
    s_add_u32 s33, s33, s24
    s_mul_i32 s63, s33, {SLAB}
    s_add_u32 s92, s33, 64
    s_mul_i32 s92, s92, {32*1152}
    s_add_u32 s92, s92, {3*288}
    s_add_u32 s93, s63, {1024*SLAB}
    s_cmp_ge_u32 s33, 64
    s_cselect_b32 s92, {OOB:#x}, s92
    s_cselect_b32 s93, {OOB:#x}, s93
    s_cmp_lt_u32 s33, 576
    s_cselect_b32 s12, s{P['w4']}, s{P['wo']}
    s_cselect_b32 s13, s{P['w4']+1}, s{P['wo']+1}
    s_mov_b32 s14, {4608*1152:#x}
    s_mov_b32 s34, {(1<<32)//144 + 1:#x}
    s_mov_b32 s35, 144
    s_cbranch_scc1 L_pk0
    s_sub_u32 s33, s33, 576
    s_mov_b32 s14, {4096*1152:#x}
    s_mov_b32 s34, {(1<<32)//128:#x}
    s_mov_b32 s35, 128
    """)
    a.label("L_pk0")
    a.I(f"""
    s_mov_b32 s15, 0x00020000
    s_mul_hi_u32 s34, s33, s34
    s_mul_i32 s35, s34, s35
    s_sub_u32 s33, s33, s35
    s_mul_i32 s33, s33, {32*1152}
    s_mul_i32 s34, s34, 288
    s_add_u32 s94, s33, s34
    s_mov_b32 s95, {OOB:#x}
    """)
    def pk_extra(k, dummy=False):
        if k in (0, 1, 2) and not dummy:
            return {6: ["s_mov_b32 m0, s91", "s_nop 0", ("vm", "PL", f"buffer_load_dwordx4 v{PAT+k}, s[12:15], s94 offen offset:{k*1024} {NT} lds")]}
        if k == 5 and not dummy:
            ex = {52: [lambda: W(["PL"])]}
            for n_ in range(6): ex[53 + 2*n_] = [f"ds_read_b64_tr_b16 {vr(PKR + (n_ >> 1)*4 + (n_ & 1)*2, 2)}, v{PKT} offset:{(n_ & 1)*16*96 + (n_ >> 1)*32}"]
            return ex
        if k in (6, 7):
            so = "s95" if dummy else "s63"
            ex = {}
            for n_ in ((0, 1) if k == 6 else (2,)):
                ex[6 + 12*(n_ & 1)] = [("vm", "PS", f"buffer_store_dwordx4 {vr(PKR + n_*4, 4)}, v{L16}, s[16:19], {so} offen offset:{n_*1024} sc1")]
            return ex
        return None
    PCS = [(0, 1), (2, 3), (4,), (5, 6), (7, 8)]
    PSZ = 10*1024
    GOFF = 64*16*PSZ
    srd(a, 20, P['ws'], 0x2800000, add_imm=WS_PART)
    srd(a, 16, P['ws'], 1088*SLAB, add_imm=WS_PK)
    a.I(f"""
    s_lshl_b32 s44, s52, 2
    s_add_u32 s44, s44, s49
    s_lshl_b32 s44, s44, 2
    s_add_u32 s44, s44, s54
    s_mul_i32 s44, s44, {4*PSZ}
    s_mul_i32 s33, s61, 5120
    s_add_u32 s44, s44, s33
    s_add_u32 s44, s44, {GOFF}
    s_add_u32 s45, s44, 3072
    s_cmp_ge_u32 s24, 2
    s_cselect_b32 s44, s45, s44
    s_add_u32 s45, s44, 2048
    s_cmp_ge_u32 s24, 2
    s_cselect_b32 s45, {OOB:#x}, s45
    """)
    for r in range(4): a.I(f"v_mov_b32 v{PKR+r}, -1")
    def sc_extra(d):
        ex = {}
        for k_ in range(3):
            ex[6 + 8*k_] = [f"s_add_u32 s33, s54, {d}\ns_and_b32 s33, s33, 3\ns_mul_i32 s33, s33, {PSZ}\ns_add_u32 s33, s33, s{44 if k_ < 2 else 45}",
                            ("vm", "SC", f"buffer_store_dwordx4 {vr(PKR, 4)}, v{L16}, s[20:23], s33 offen offset:{(k_%2)*1024} sc1")]
        return ex
    LSA = AT.V_LSA
    def rowmax(u, qt, dst):
        b = AT.sbuf(u) + 8*qt
        a.I(f"v_max3_f32 v{dst}, v{b}, v{b+1}, v{b+2}\nv_max3_f32 v{dst}, v{dst}, v{b+3}, v{b+4}\nv_max3_f32 v{dst}, v{dst}, v{b+5}, v{b+6}\nv_max_f32 v{dst}, v{dst}, v{b+7}")
        xlane(a, "v_max_f32", dst)
    for qt in range(4):
        rowmax(0, qt, T)
        for r in range(4): a.I(f"v_sub_f32 v{NEGM + 4*qt + r}, 0, v{T}")
        for r in range(8): a.I(f"v_sub_f32 v{AT.sbuf(0) + 8*qt + r}, v{AT.sbuf(0) + 8*qt + r}, v{T}")
    a.I("s_nop 1")
    pt(a, 'b0'); AT.body2(a, 0); AT.body2(a, 1); pt(a, 'b2')
    W(["X1"]); a.I("s_barrier\ns_lshr_b32 s33, s48, 3\ns_lshl_b32 s33, s33, 5"); signal(a, 0x100)
    for u in range(2, 8): AT.body2(a, u, extra=sc_extra(u - 1) if (u < 5 and OPT.get("sent", 0)) else pk_extra(u, dummy=True))
    a.vm = [t for t in a.vm if t != "SC"]
    srd(a, 20, P['ws'], 0x1000000, add_imm=WS_O)
    pt(a, 'b8')
    a.I("s_mov_b32 s27, 6")
    if 'cyc' in PTS: a.I("s_memtime s[36:37]\ns_memrealtime s[38:39]")
    a.raw(".p2align 6"); a.label("L_att_loop")
    vb = list(a.vm)
    for u in range(8, 16): AT.body2(a, u, extra=pk_extra(u - 8))
    a.I(f"""
    s_add_u32 s94, s94, 96
    s_add_u32 s63, s63, 3072
    s_cmp_eq_u32 s27, 4
    s_cselect_b32 s94, s92, s94
    s_cselect_b32 s63, s93, s63
    s_cselect_b32 s12, s{P['wo']}, s12
    s_cselect_b32 s13, s{P['wo']+1}, s13
    s_cselect_b32 s14, {4096*1152:#x}, s14
    s_sub_u32 s27, s27, 1
    s_cmp_lg_u32 s27, 0
    s_cbranch_scc1 L_att_loop
    """)
    sh = lambda tag, d: tag if tag[0] == "P" else tag[0] + str(int(tag[1:]) + d)
    assert [sh(t, 4) for t in vb] == a.vm, (vb, a.vm)
    a.vm = [sh(t, 20) for t in a.vm]
    pt(a, 'b56')
    if 'cyc' in PTS: a.I("s_memtime s[40:41]\ns_memrealtime s[100:101]")
    BS4 = [192, 208, 128, 144, 160, 176, 224, 240, 72, 88, 104]; NB4 = 11
    def bset4(i): return BS4[i % NB4]
    STQ = [84, 88, 92, 28]; MU = 40; RS = 44
    def early4():
        it = dma_slab(PATB, 16, 92, 0, lambda o: f"s_add_u32 m0, s93, {o}", "Z0")
        for i in range(2):
            for qt in range(4):
                it += [f"s_add_u32 s3, s94, {qt*18*1024 + i*1024}", ("vm", f"B{i}", f"buffer_load_dwordx4 {ar(bset4(i) + qt*4, 4)}, v{L16}, s[12:15], s3 offen")]
        return it
    def spread(items, gaps):
        groups = []; cur = []
        for x in items:
            cur.append(x)
            if isinstance(x, tuple): groups.append(cur); cur = []
        return groups
    e4 = None
    for u in range(56, 64):
        extra = None
        if u == 61:
            pat_regs(a, PATB, 9216)
            srd(a, 16, P['ws'], 2048*64, add_imm=WS_ST)
            a.I(f"""
            s_lshl_b32 s62, s50, 4
            s_lshl_b32 s34, s24, 2
            s_add_u32 s62, s62, s34
            s_mul_i32 s94, s62, {18*1024}
            s_lshl_b32 s91, s62, 10
            s_mul_i32 s92, s24, {32*9216}
            s_mul_i32 s93, s24, {SLAB}
            v_and_b32 v{T+15}, 15, v0
            v_lshlrev_b32 v{T+15}, 6, v{T+15}
            v_and_b32 v{T+9}, 0x30, v0
            v_add_u32 v{T+15}, v{T+15}, v{T+9}
            s_mul_i32 s33, s51, 288
            """)
            for qt in range(4):
                a.vm_issue("ST"); a.I(f"buffer_load_dwordx4 {vr(STQ[qt], 4)}, v{T+15}, s[16:19], s91 offen offset:{qt*1024}")
            srd(a, 16, P['w3'], 0, add_lo=33)
            a.I(f"s_sub_u32 s18, {576*9216}, s33")
            e4 = spread(early4(), None)
        if u == 62: extra = {g: e4[k_] for k_, g in enumerate((34, 38, 42, 45, 48, 52, 56, 60, 65))}
        if u == 63: extra = {g: e4[9 + k_] for k_, g in enumerate((2, 8, 14, 20, 26, 34, 42, 50))}
        if u == 56:
            poll_issue(a, "P3", "s_lshl_b32 s33, s50, 3\nv_cmp_eq_u32 vcc, s33, v0\ns_nop 1"); a.force({"P3"})
        if u == 57:
            a.auto = False
            srd(a, 56, P['w3'], 576*9216)
            a.I(f"s_mul_i32 s35, s0, 81\ns_and_b32 s34, s2, 6\ns_mul_i32 s34, s34, 1152\ns_mov_b32 s33, {(1<<32)//18 + 1}")
            for i in range(2):
                a.I(f"""
                v_min_u32 v{T}, {80 - 64*i if i else 63}, v0
                v_add_u32 v{T}, s35, v{T}
                v_add_u32 v{T}, {64*i}, v{T}
                v_mul_hi_u32 v{T+1}, v{T}, s33
                v_mul_u32_u24 v{T+2}, 18, v{T+1}
                v_sub_u32 v{T}, v{T}, v{T+2}
                v_lshlrev_b32 v{T}, 7, v{T}
                v_mul_u32_u24 v{T+1}, 9216, v{T+1}
                v_add_u32 v{T}, v{T}, v{T+1}
                """)
                touch(a, 56, 34, 1, addr=T)
            srd(a, 56, P['dbg'], 256)
        if u == 58: poll_check(a, "P3", 8, 32)
        if u == 59:
            a.auto = False
            srd(a, 12, P['ws'], SZ_ACT, add_imm=WS_X1)
            a.I(f"s_and_b32 s35, s0, 31\ns_mul_i32 s35, s35, 9216\ns_mul_i32 s34, s50, {16*18*1024}\ns_add_u32 s35, s35, s34")
            touch(a, 12, 35, 2)
        AT.body2(a, u, extra=extra)
    a.I(AT.sm_cvt(63, 14)); a.I(AT.sm_cvt(63, 15))
    for x in AT.v_reads(63): a.I(x)
    a.I(f"""
    s_mul_i32 s30, s24, {SLAB}
    v_subrev_u32 v{TRA}, s30, v{TRA}
    v_add_u32 v{TRB}, 64512, v{TRA}
    v_add_u32 v{TRC}, 129024, v{TRA}
    s_waitcnt lgkmcnt(0)
    """)
    for qt in range(4): a.I(mf(vr(LSA + 4*qt, 4), vr(AT.V_ONES, 4), vr(AT.sbuf(63) + qt*8, 4), vr(LSA + 4*qt, 4)))
    for x in AT.pv_mfmas(63): a.I(x)
    W(["ST"])
    a.I(f"s_mov_b32 s78, {f32(1/576):#x}\ns_mov_b32 s79, {f32(1/80):#x}\ns_mov_b32 s82, {f32(1/64):#x}\ns_mov_b32 s83, {f32(80.0):#x}\ns_mov_b32 s63, {f32(64.0):#x}\ns_mov_b32 s91, {f32(EPS):#x}")
    for qt in range(4):
        b = STQ[qt]
        a.I(f"v_add_f32 v{T}, v{b}, v{b+2}")
        xlane(a, "v_add_f32", T)
        a.I(f"""
        v_mul_f32 v{T}, s78, v{T}
        v_add_f32 v{T+2}, v{b+1}, v{b+3}
        v_fma_f32 v{T+4}, v{b}, s79, -v{T}
        v_mul_f32 v{T+5}, s83, v{T+4}
        v_fmac_f32 v{T+2}, v{T+5}, v{T+4}
        v_fma_f32 v{T+4}, v{b+2}, s82, -v{T}
        v_mul_f32 v{T+5}, s63, v{T+4}
        v_fmac_f32 v{T+2}, v{T+5}, v{T+4}
        v_sub_f32 v{MU+qt}, 0, v{T}
        """)
        xlane(a, "v_add_f32", T+2)
        a.I(f"v_mov_b32 v{T+4}, s91\nv_fmac_f32 v{T+4}, s78, v{T+2}\nv_rsq_f32 v{RS+qt}, v{T+4}")
    a.I(f"""
    s_mov_b32 s33, {AT.THR:#x}
    v_cmp_nle_f32 vcc, v{LSA}, s33
    v_cmp_nle_f32 s[34:35], v{LSA+4}, s33
    v_cmp_nle_f32 s[44:45], v{LSA+8}, s33
    v_cmp_nle_f32 s[60:61], v{LSA+12}, s33
    s_nop 1
    s_or_b64 vcc, vcc, s[34:35]
    s_or_b64 s[44:45], s[44:45], s[60:61]
    s_or_b64 vcc, vcc, s[44:45]
    s_cmp_lg_u64 vcc, 0
    s_cselect_b32 s33, 1, {OPT.get('fb', 0)}
    v_mov_b32 v{T}, s33
    v_lshlrev_b32 v{T+1}, 2, v0
    v_add_u32 v{T+1}, {QS}, v{T+1}
    s_lshl_b32 s34, s24, 8
    v_add_u32 v{T+5}, s34, v{T+1}
    ds_write_b32 v{T+5}, v{T}
    s_waitcnt lgkmcnt(0)
    s_barrier
    ds_read_b32 v{T}, v{T+1}
    ds_read_b32 v{T+2}, v{T+1} offset:256
    ds_read_b32 v{T+3}, v{T+1} offset:512
    ds_read_b32 v{T+4}, v{T+1} offset:768
    s_waitcnt lgkmcnt(0)
    v_or3_b32 v{T}, v{T}, v{T+2}, v{T+3}
    v_or_b32 v{T}, v{T}, v{T+4}
    s_nop 0
    v_readfirstlane_b32 s33, v{T}
    s_nop 3
    s_cmp_lg_u32 s33, 0
    s_cbranch_scc1 L_fallback
    """)
    a.label("L_att_epi"); pt(a, 'attl')
    a.I("s_mul_i32 s33, s51, 288")
    srd(a, 4, P['w3'], 0, add_lo=33)
    srd(a, 8, P['ws'], SZ_ACT, add_imm=WS_X1)
    a.I(f"""
    s_sub_u32 s6, {576*9216}, s33
    s_mul_i32 s25, s24, {32*9216}
    s_sub_u32 s47, s30, {SLAB}
    s_cmp_eq_u32 s24, 0
    s_cselect_b32 s47, {16*SLAB}, s47
    s_mul_i32 s26, s62, {18*1024}
    """)
    def loadW4(j):
        if j < 4: return dma_slab(PATB, 4, 25, j*128*9216, lambda o: f"s_add_u32 m0, s30, {j*4*SLAB + o}", f"Z{j}")
        return dma_slab(PATB, 4, 25, j*128*9216, lambda o: f"s_add_u32 m0, s47, {o}", f"Z{j}")
    def loadB4(i):
        r = []
        for qt in range(4):
            r.append(f"s_add_u32 s3, s26, {qt*18*1024 + i*1024}")
            r.append(("vm", f"B{i}", f"buffer_load_dwordx4 {ar(bset4(i) + qt*4, 4)}, v{L16}, s[8:11], s3 offen"))
        return r
    for qt in range(4): a.I(f"v_rcp_f32 v{T+10+qt}, v{LSA+4*qt}")
    a.pace = OPT["pace"]; a.auto = True
    a.bg_add(loadW4(1) + loadB4(2) + loadB4(3) + loadW4(2) + loadB4(4) + loadB4(5) + loadW4(3) + loadB4(6) + loadB4(7))
    a.I(f"s_lshl_b32 s33, s46, 17\ns_lshl_b32 s34, s31, 12\ns_add_u32 s63, s33, s34")
    tb = 128
    for qt in range(4):
        for t in range(4):
            src = AT.A_O + (qt*4+t)*8
            tt = tb; tb += 8
            for i in range(8): a.I(f"v_accvgpr_read_b32 v{tt+i}, a{src+i}")
            for i in range(0, 8, 2): a.I(f"v_pk_mul_f32 v[{tt+i}:{tt+i+1}], v[{tt+i}:{tt+i+1}], v[{T+10+(qt&2)}:{T+11+(qt&2)}] op_sel:[0,{qt&1}] op_sel_hi:[1,{qt&1}]")
            for i in range(4): a.I(f"v_cvt_pk_bf16_f32 v{tt+i}, v{tt+2*i}, v{tt+2*i+1}")
            a.vm_issue("O"); a.I(f"buffer_store_dwordx4 {vr(tt,4)}, v{L16}, s[20:23], s63 offen offset:{t*1024} sc1")
        if qt < 3: a.I("s_add_u32 s63, s63, 0x20000")
    pt(a, 'att')
    a.bg_add(loadB4(8) + loadB4(9) + loadB4(10))
    ONE4 = 72; CS = 76; ACC4 = 112; A4 = 0
    for r in range(4): a.I(f"v_mov_b32 v{ONE4+r}, 0x3f803f80")
    def slot4(i): return (i if i < 17 else 0) * SLAB
    COS = OPT.get("cos", 1); COC = OPT.get("coc", 10)
    srd(a, 16, P['ws'], 1088*SLAB, add_imm=WS_PK)
    a.I(f"""
    s_mul_i32 s78, s49, 144
    s_mul_i32 s33, s54, 36
    s_add_u32 s78, s78, s33
    s_add_u32 s78, s78, s24
    s_mul_i32 s78, s78, {SLAB}
    s_lshl_b32 s79, s49, 7
    s_lshl_b32 s33, s54, 5
    s_add_u32 s79, s79, s33
    s_add_u32 s79, s79, s24
    s_mul_i32 s79, s79, {SLAB}
    s_add_u32 s79, s79, {PK_WO}
    s_lshl_b32 s44, s52, 3
    s_lshl_b32 s34, s24, 1
    s_add_u32 s44, s44, s34
    s_lshl_b32 s27, s44, 17
    s_lshl_b32 s33, s54, 15
    s_add_u32 s27, s27, s33
    s_mul_i32 s28, s44, {144*1024}
    s_mul_i32 s33, s54, {36*1024}
    s_add_u32 s28, s28, s33
    v_add_u32 v{XA}, {128*1024}, v{L16}
    """)
    NS = 68; ACC5 = 184; A5 = 0; NB5 = 13; B5 = 72
    def slot5(i): return ((i + 4) % 16) * SLAB
    a.I("s_and_b32 s77, s52, 7\ns_lshl_b32 s33, s49, 1\ns_add_u32 s77, s77, s33")
    if not OPT.get("rot5", 0): a.I("s_mov_b32 s77, 0")
    def rotg(j, dst):
        n, g = (8, j) if j < 8 else (9, j - 8)
        a.I(f"s_add_u32 s{dst}, s77, {g}")
        if n == 8: a.I(f"s_and_b32 s{dst}, s{dst}, 7")
        else:
            for _ in range(2): a.I(f"s_sub_u32 s33, s{dst}, 9\ns_cmp_ge_u32 s{dst}, 9\ns_cselect_b32 s{dst}, s33, s{dst}")
    GA = [66, 67, 68, 69]; GB = [70, 71, 72, 73, 76]
    def loadW5(j):
        d = GA[j % 4]
        for g in a.bg:
            for x in g: assert f"s{d}," not in str(x)
        rotg(j, d); a.I(f"s_mul_i32 s{d}, s{d}, {4*SLAB}\ns_add_u32 s{d}, s{d}, s{79 if j < 8 else 78}")
        r = []
        for p in range(9):
            if p % 4 == 0: r += [f"s_add_u32 m0, s30, {((j + 1) % 4)*4*SLAB + p*1024}", f"s_add_u32 s83, s{d}, {p*1024}"]
            r.append(("vm", f"Y{j}", f"buffer_load_dwordx4 v{L16}, {'s[16:19]' if j < 3 else 's[4:7]'}, s83 offen offset:{(p%4)*1024} lds"))
        return r
    B5S = [72 + 8*k_ for k_ in range(7)] + [192, 200, 208, 216, 128, 136]
    def b5(i): return B5S[i % NB5]
    def loadB5(i):
        r = []
        d = GB[(i // 4) % 5]
        if i % 4 == 0:
            for g in a.bg:
                for x in g: assert f"s{d}," not in str(x) and f"s{d} " not in str(x)
            rotg(i // 4, d); a.I(f"s_lshl_b32 s{d}, s{d}, 12\ns_add_u32 s{d}, s{d}, s{27 if i < 32 else 28}")
        sr = "s[20:23]" if i < NB5 else "s[8:11]" if i < 32 else "s[12:15]"
        r.append(("vm", f"C{i}", f"buffer_load_dwordx4 {ar(b5(i), 4)}, v{L16}, {sr}, s{d} offen offset:{(i%4)*1024}"))
        r.append(("vm", f"C{i}", f"buffer_load_dwordx4 {ar(b5(i) + 4, 4)}, v{XA if i < 32 else T+14}, {sr}, s{d} offen offset:{(i%4)*1024}"))
        return r
    pt(a, 't4a'); W(["Z0"]); a.I("s_barrier"); pt(a, 't4b')
    for x in a_reads(A4, 0): a.I(x)
    for i in range(18):
        a.C(f"T4 step {i}"); pt(a, f"f{i}")
        if i % 4 == 3:
            W([f"Z{(i+1)//4}", f"B{i}"], " lgkmcnt(0)"); a.I("s_barrier")
            if i == 3: a.bg_add(loadW4(4))
        elif i == COS:
            W([f"B{i}", "O", "PS"], " lgkmcnt(0)"); a.I("s_barrier")
            a.I("s_lshl_b32 s33, s32, 5"); signal(a, 0x1000000)
        else:
            W([f"B{i}"], " lgkmcnt(0)")
        if i == COC - 2: poll_issue(a, "P5", f"v_and_b32 v{T+2}, 7, v0\nv_cmp_eq_u32 vcc, 0, v{T+2}\ns_nop 1")
        if i == COC:
            pt(a, 'coa'); poll_check(a, "P5", 24, 32); pt(a, 'cob')
        if i == 11:
            assert COC == 10
            it = loadW5(0)
            for k_ in range(4): it += loadB5(k_)
            it += loadW5(1)
            for k_ in range(4, 7): it += loadB5(k_)
            a.bg_add(it)
        if i == 14:
            it = []
            for k_ in range(7, NB5): it += loadB5(k_)
            a.bg_add(it)
        if i == 15: a.bg_add(loadW5(2))
        if i == OPT.get("pf5", 99):
            a.auto = False
            a.I(f"""
            s_lshr_b32 s33, s0, 5
            s_lshl_b32 s33, s33, 7
            s_lshl_b32 s34, s54, 5
            s_add_u32 s33, s33, s34
            s_add_u32 s33, s33, 12
            s_mul_i32 s33, s33, {SLAB}
            s_and_b32 s35, s0, 31
            s_mul_i32 s35, s35, {45*128}
            s_add_u32 s35, s35, s33
            s_add_u32 s35, s35, {PK_WO}
            """)
            touch(a, 16, 35, 1)
            a.I(f"""
            s_and_b32 s33, s52, 8
            s_lshl_b32 s33, s33, 3
            s_lshr_b32 s35, s0, 1
            s_add_u32 s33, s33, s35
            s_lshl_b32 s33, s33, 17
            s_lshl_b32 s34, s54, 15
            s_add_u32 s33, s33, s34
            s_and_b32 s35, s0, 1
            s_mul_i32 s35, s35, {10*1024}
            s_add_u32 s35, s35, s33
            s_add_u32 s35, s35, {13*1024}
            """)
            touch(a, 20, 35, 1)
            a.I(f"s_add_u32 s35, s35, 2048"); touch(a, 20, 35, 1)
            a.auto = True
        rd = a_reads(A4 + 36*((i+1) % 2), slot4(i+1)) if i + 1 < 18 else []
        k = 0
        for ft in range(9):
            for qt in range(4):
                d = vr(ACC4 + (qt*9+ft)*4, 4)
                a.I(mf(d, ar(A4 + 36*(i % 2) + ft*4, 4), ar(bset4(i) + qt*4, 4), d if i else "0"))
                if (ft*4+qt) % 3 != 2 and k < len(rd):
                    a.auto = False; a.I(rd[k]); k += 1; a.auto = True
        a.auto = False
        a.I(f"s_cmp_gt_u32 s24, 1\ns_cbranch_scc1 L_cs{i}_2\ns_cmp_eq_u32 s24, 1\ns_cbranch_scc1 L_cs{i}_1")
        for w in range(4):
            if w: a.label(f"L_cs{i}_{w}")
            if w == 2: a.I(f"s_cmp_eq_u32 s24, 3\ns_cbranch_scc1 L_cs{i}_3")
            for k_, ft in enumerate(range(w, 9, 4)):
                d = vr(CS + k_*4, 4)
                a.I(mf(d, ar(A4 + 36*(i % 2) + ft*4, 4), vr(ONE4, 4), d if i else "0"))
            if w < 3: a.I(f"s_branch L_cs{i}")
        a.label(f"L_cs{i}"); a.auto = True
        if i + NB4 < 18: a.bg_add(loadB4(i + NB4))
    pt(a, 't4m')
    a.I(f"""
    s_nop 7
    s_barrier
    v_lshrrev_b32 v{T+6}, 4, v0
    v_lshlrev_b32 v{T+6}, 4, v{T+6}
    v_add_u32 v{T+6}, {QS}, v{T+6}
    s_lshl_b32 s33, s24, 6
    v_add_u32 v{T+1}, s33, v{T+6}
    """)
    for k_ in range(3): a.I(f"ds_write_b128 v{T+1}, {vr(CS + k_*4, 4)} offset:{k_*256}")
    a.I("s_waitcnt lgkmcnt(0)\ns_barrier")
    a.force(None)
    srd(a, 4, P['ws'], 1088*SLAB, add_imm=WS_PK)
    srd(a, 8, P['ws'], 0x1000000, add_imm=WS_O)
    a.bg_add(loadW5(3))
    a.pace = OPT.get("pacee", OPT["pace"])
    for ft in range(9): a.I(f"ds_read_b128 {vr(CS + ft*4, 4)}, v{T+6} offset:{ft*64}")
    srd(a, 16, P['ws'], 0x1200000, add_imm=WS_H3)
    srd(a, 12, P['ws'], 0x1200000, add_imm=WS_H3)
    a.I(f"s_mov_b32 s92, {f32(C2):#x}\ns_mov_b32 s93, {f32(C2):#x}\nv_mov_b32 v{T+4}, {f32(C1):#x}\nv_mov_b32 v{T+5}, {f32(C1):#x}\ns_waitcnt lgkmcnt(0)")
    a.auto = False
    a.I(f"""
    s_mul_i32 s60, s51, 9
    s_lshr_b32 s33, s60, 1
    s_lshl_b32 s33, s33, 10
    s_mul_i32 s47, s62, {144*1024}
    s_add_u32 s47, s47, s33
    v_add_u32 v{T+10}, 0x1000, v{L16}
    s_bitcmp1_b32 s51, 0
    s_cbranch_scc1 L_t4odd
    """)
    a.auto = True
    import copy
    st0 = (list(a.vm), copy.deepcopy(a.bg), a.cyc, a.last_bg)
    ends = []
    for par in range(2):
        a.vm, a.bg, a.cyc, a.last_bg = list(st0[0]), copy.deepcopy(st0[1]), st0[2], st0[3]
        if par: a.label("L_t4odd")
        for qt in range(4):
            pt(a, f"e{qt}")
            a.I(f"v_mov_b32 v{T+6}, v{MU+qt}\nv_mov_b32 v{T+8}, v{RS+qt}")
            for ft in range(9):
                b = ACC4 + (qt*9+ft)*4; c = CS + ft*4; t = T + 12
                for h in (0, 2):
                    a.I(f"v_pk_fma_f32 v[{b+h}:{b+h+1}], v[{c+h}:{c+h+1}], v[{T+6}:{T+7}], v[{b+h}:{b+h+1}] op_sel_hi:[1,0,1]")
                for h in (0, 2):
                    a.I(f"v_pk_mul_f32 v[{b+h}:{b+h+1}], v[{b+h}:{b+h+1}], v[{T+8}:{T+9}] op_sel_hi:[1,0]")
                gelu4(a, b, t, T + 4, 92)
                gt = ft + par; ks = gt >> 1; half = gt & 1
                ad = f"v{L16 if ks < 4 else T+10}"; off = (ks % 4) * 1024
                if half == 0 and ft < 8:
                    a.I(f"v_cvt_pk_bf16_f32 v{b}, v{b}, v{b+1}\nv_cvt_pk_bf16_f32 v{b+1}, v{b+2}, v{b+3}")
                elif half == 1 and ft > 0:
                    pb = b - 4
                    a.I(f"v_cvt_pk_bf16_f32 v{pb+2}, v{b}, v{b+1}\nv_cvt_pk_bf16_f32 v{pb+3}, v{b+2}, v{b+3}")
                    a.vm_issue("H3"); a.I(f"buffer_store_dwordx4 v[{pb}:{pb+3}], {ad}, s[16:19], s47 offen offset:{off} sc1") if not OPT.get("nost") else None
                else:
                    a.I(f"v_cvt_pk_bf16_f32 v{b}, v{b}, v{b+1}\nv_cvt_pk_bf16_f32 v{b+1}, v{b+2}, v{b+3}")
                    a.vm_issue("H3"); a.I(f"buffer_store_dwordx2 v[{b}:{b+1}], {ad}, s[16:19], s47 offen offset:{off + half*8} sc1") if not OPT.get("nost") else None
            if qt < 3: a.I(f"s_add_u32 s47, s47, {144*1024}")
        pt(a, "e4")
        a.force(None)
        a.vm_issue("H3L"); a.I(f"buffer_load_dword v{PFD}, v{L16}, s[4:7], 0 offen")
        ends.append(list(a.vm))
        if par == 0: a.I("s_branch L_t4done")
    a.label("L_t4done")
    a.vm = [t for t in ends[0] if t != "H3"]
    assert a.vm == [t for t in ends[1] if t != "H3"]
    pt(a, 't4')
    a.pace = OPT["pace5"]
    srd(a, 16, P['ws'], 0x2800000, add_imm=WS_PART)
    srd(a, 20, P['x'], SZ_ACT)
    a.I(f"""
    s_lshl_b32 s47, s52, 2
    s_add_u32 s47, s47, s49
    s_lshl_b32 s93, s47, 2
    s_add_u32 s93, s93, s24
    s_lshl_b32 s93, s93, 2
    s_add_u32 s93, s93, s54
    s_mul_i32 s93, s93, {PSZ}
    s_lshl_b32 s92, s47, 8
    s_cmp_ge_u32 s24, 2
    s_cselect_b32 s34, 5, 0
    s_mul_i32 s60, s49, 9
    s_add_u32 s60, s60, s34
    s_lshl_b32 s44, s52, 3
    s_lshl_b32 s33, s54, 1
    s_add_u32 s44, s44, s33
    s_and_b32 s61, s24, 1
    s_add_u32 s44, s44, s61
    s_mul_i32 s45, s44, {16*1152}
    s_lshl_b32 s34, s60, 5
    s_add_u32 s45, s45, s34
    s_mul_i32 s34, s44, {18*1024}
    v_add_u32 v{T+10}, s34, v{L16}
    s_lshl_b32 s94, s47, 2
    s_add_u32 s94, s94, s54
    s_mul_i32 s94, s94, {4*PSZ}
    s_mul_i32 s33, s61, 5120
    s_add_u32 s94, s94, s33
    s_add_u32 s91, s94, 3072
    s_cmp_ge_u32 s24, 2
    s_cselect_b32 s94, s91, s94
    s_add_u32 s91, s94, 2048
    s_cmp_ge_u32 s24, 2
    s_cselect_b32 s91, {OOB:#x}, s91
    """)
    def flush_global():
        for qt in range(2):
            for k_, tl in enumerate(PCS):
                b = ACC5 + (qt*9 + tl[0])*4
                a.I(f"v_cvt_pk_bf16_f32 v{b}, v{b}, v{b+1}\nv_cvt_pk_bf16_f32 v{b+1}, v{b+2}, v{b+3}")
                if len(tl) == 2: a.I(f"v_cvt_pk_bf16_f32 v{b+2}, v{b+4}, v{b+5}\nv_cvt_pk_bf16_f32 v{b+3}, v{b+6}, v{b+7}")
                p = qt*5 + k_
                a.vm_issue("PT0"); a.I(f"buffer_store_dwordx4 {vr(b, 4)}, v{L16}, s[16:19], s93 offen offset:{(p%4)*1024} sc1")
                if p % 4 == 3: a.I("s_add_u32 s93, s93, 4096")
    XV = 28; X1V = 38
    a.I(f"v_add_u32 v{T+14}, {144*1024}, v{L16}\nv_mov_b32 v{TRA}, v{L16}\nv_add_u32 v{TRB}, 64512, v{L16}\nv_add_u32 v{TRC}, 129024, v{L16}")
    def f_reads(dst, off):
        base = off // 64512; o = off - base * 64512
        return [f"ds_read_b128 {ar(dst + nt*4, 4)}, v{TRA+base} offset:{o + nt*1024}" for nt in range(9)]
    W(["Y0"]); a.I("s_barrier")
    for x in f_reads(A5, slot5(0)): a.I(x)
    for i in range(NS):
        a.C(f"T5 step {i}"); pt(a, f"s{i}a")
        if i % 4 == 3 and i + 1 < NS:
            b = (i + 1) // 4
            need = {f"Y{b}", f"C{i}"}
            if i == 3: need |= {"H3L"}
            if i == 39: need |= {"PT0"}
            W(need, " lgkmcnt(0)"); a.I("s_barrier")
            if i == 3:
                a.I("s_lshl_b32 s33, s50, 5"); signal(a, 0x10000)
            if i == 39:
                srd(a, 56, P['ws'], 0x10000, add_imm=WS_CX)
                a.I("s_mov_b32 s33, s92"); signal(a, 1)
            if b + 3 < 17: a.bg_add(loadW5(b + 3))
        else:
            W([f"C{i}"], " lgkmcnt(0)")
        if i == 5:
            for j in range(5):
                a.vm_issue("XL"); a.I(f"buffer_load_dwordx2 v[{XV+2*j}:{XV+2*j+1}], v{XD}, s[20:23], s45 offen offset:{j*32}")
            srd(a, 20, P['ws'], SZ_ACT, add_imm=WS_X1)
        if i == 6:
            for j in range(5):
                piece_off(j, 35)
                a.vm_issue("XL"); a.I(f"buffer_load_dwordx2 v[{X1V+2*j}:{X1V+2*j+1}], v{T+10}, s[20:23], s35 offen")
        if i == 8:
            a.I(f"""
            s_lshr_b32 s33, s0, 5
            s_mul_i32 s33, s33, 144
            s_mul_i32 s34, s54, 36
            s_add_u32 s33, s33, s34
            s_mul_i32 s33, s33, {SLAB}
            s_and_b32 s35, s0, 31
            s_mul_i32 s35, s35, {81*128}
            s_add_u32 s35, s35, s33
            """)
            touch(a, 4, 35, 2)
        if i == 15: poll_issue(a, "P4", "s_lshr_b32 s33, s52, 1\ns_lshl_b32 s33, s33, 3\nv_cmp_eq_u32 vcc, s33, v0\ns_nop 1")
        if i == 18:
            pt(a, 'c4a'); poll_check(a, "P4", 16, 32); pt(a, 'c4b')
        if i == 19 and OPT.get("pfh3", 0):
            a.I(f"""
            s_and_b32 s35, s0, 15
            s_lshr_b32 s33, s35, 1
            s_lshl_b32 s34, s52, 3
            s_add_u32 s33, s33, s34
            s_mul_i32 s33, s33, {144*1024}
            s_mul_i32 s34, s54, {36*1024}
            s_add_u32 s33, s33, s34
            s_and_b32 s35, s35, 1
            s_mul_i32 s35, s35, 18432
            s_add_u32 s35, s35, s33
            """)
            touch(a, 12, 35, 3)
        if i == 51: poll_issue(a, "P6", "v_cmp_eq_u32 vcc, 0, v0\ns_nop 1", 56, "s92")
        if i == 54: poll_check(a, "P6", 0, 4, 56, "s92")
        if i == 55:
            it = []
            for src in range(4):
                for k_ in range(3):
                    it.append(f"s_add_u32 s82, s{94 if k_ < 2 else 91}, {src*PSZ}")
                    it.append(("vm", "HP", f"buffer_load_dwordx4 {vr(128 + (src*3+k_)*4, 4)}, v{L16}, s[16:19], s82 offen offset:{(k_%2)*1024}"))
            a.bg_add(it)
        rd = f_reads(A5 + 36*((i+1) % 2), slot5(i+1)) if i + 1 < NS else []
        first = i in (0, 32)
        k = 0
        for nt in range(9):
            for qt in range(2):
                d = vr(ACC5 + (qt*9+nt)*4, 4)
                if qt == 0 and k < len(rd) and nt < 7: a.auto = False
                a.I(mf(d, ar(A5 + 36*(i % 2) + nt*4, 4), ar(b5(i) + qt*4, 4), "0" if first else d))
                if (qt == 0 or nt < 2) and k < len(rd):
                    a.auto = False; a.I(rd[k]); k += 1
                a.auto = True
        assert not (i + NB5 >= 32 and i < 19)
        if i + NB5 < NS: a.bg_add(loadB5(i + NB5), front=True)
        if i == 31:
            a.auto = False
            a.I("s_nop 7")
            flush_global()
            a.I(f"s_add_u32 s93, s93, {GOFF - 8192}\ns_nop 0"); a.auto = True
    a.force(None); a.auto = False
    pt(a, 't5')
    a.I("s_nop 7\ns_barrier\ns_cmp_eq_u32 s24, s54\ns_cbranch_scc1 L_own")
    flush_global()
    a.I("s_waitcnt vmcnt(10)\ns_branch L_own_done")
    a.label("L_own")
    for t in range(18): a.I(f"ds_write_b128 v{L16}, {vr(ACC5 + t*4, 4)} offset:{t*1024}")
    a.I("s_waitcnt vmcnt(0)")
    a.label("L_own_done")
    SV = 64; XF = 84; X1F = 104
    def add_pieces(dst, base, nsrc, first):
        for j in range(5):
            for s_ in range(nsrc):
                p = base + (s_*3 + j//2)*4 + (j % 2)*2; d = dst + j*4; e = T + 2*((j*nsrc + s_) % 2)*2
                if first and s_ == 0:
                    a.I(f"v_lshlrev_b32 v{d}, 16, v{p}\nv_and_b32 v{d+1}, 0xffff0000, v{p}\nv_lshlrev_b32 v{d+2}, 16, v{p+1}\nv_and_b32 v{d+3}, 0xffff0000, v{p+1}")
                else:
                    a.I(f"v_lshlrev_b32 v{e}, 16, v{p}\nv_and_b32 v{e+1}, 0xffff0000, v{p}\nv_lshlrev_b32 v{e+2}, 16, v{p+1}\nv_and_b32 v{e+3}, 0xffff0000, v{p+1}")
                    a.I(f"v_pk_add_f32 v[{d}:{d+1}], v[{d}:{d+1}], v[{e}:{e+1}]\nv_pk_add_f32 v[{d+2}:{d+3}], v[{d+2}:{d+3}], v[{e+2}:{e+3}]")
    add_pieces(SV, 128, 4, True)
    for j in range(5):
        for (src, dst) in ((XV + 2*j, XF + 4*j), (X1V + 2*j, X1F + 4*j)):
            a.I(f"v_lshlrev_b32 v{dst}, 16, v{src}\nv_and_b32 v{dst+1}, 0xffff0000, v{src}\nv_lshlrev_b32 v{dst+2}, 16, v{src+1}\nv_and_b32 v{dst+3}, 0xffff0000, v{src+1}")
    srd(a, 20, P['out'], SZ_ACT)
    PR = 128
    a.I(f"""
    s_mov_b32 s63, {f32(-1.4426950408889634):#x}
    v_add_u32 v{T+8}, s53, v{L16}
    s_waitcnt {"" if OPT.get("sent", 0) else "vmcnt(0) "}lgkmcnt(0)
    s_barrier
    s_mov_b32 s27, 20000
    """)
    pt(a, 'pst')
    if not OPT.get("sent", 0):
        a.I(f"""
        v_mov_b32 v{T}, 0
        s_cmp_lg_u32 s24, 0
        s_cbranch_scc1 L_cx_wait
        v_mov_b32 v{T+1}, 0x100
        s_mov_b64 exec, 1
        buffer_atomic_add v{T+1}, v{T}, s[56:59], s92 offen
        s_mov_b64 exec, -1
        s_mov_b32 s35, 400000
        """)
        a.label("L_cx_poll")
        a.I(f"""
        buffer_load_dword v{T+1}, v{T}, s[56:59], s92 offen sc1
        s_waitcnt vmcnt(0)
        v_readfirstlane_b32 s34, v{T+1}
        s_cmp_ge_u32 s34, 0x400
        s_cbranch_scc1 L_cx_wait
        s_sleep 1
        s_sub_u32 s35, s35, 1
        s_cmp_lg_u32 s35, 0
        s_cbranch_scc1 L_cx_poll
        """)
        a.label("L_cx_wait")
        a.I("s_barrier\ns_mov_b32 s27, 1")
    for j in range(5): a.I(f"ds_read_b128 {vr(192 + j*4, 4)}, v{T+8} offset:{j*1024}")
    for d in range(1, 4):
        a.I(f"s_add_u32 s33, s54, {d}\ns_and_b32 s33, s33, 3\ns_mul_i32 s33, s33, {PSZ}\ns_add_u32 s33, s33, {GOFF}\ns_add_u32 s{64+2*d}, s33, s94\ns_add_u32 s{65+2*d}, s33, s91")
    a.I("s_waitcnt lgkmcnt(0)")
    for j in range(5):
        b = 192 + j*4
        for h in (0, 2): a.I(f"v_pk_add_f32 v[{X1F+4*j+h}:{X1F+4*j+h+1}], v[{X1F+4*j+h}:{X1F+4*j+h+1}], v[{b+h}:{b+h+1}]")
    a.label("L_fin_poll")
    for d in range(1, 4):
        for k_ in range(3):
            a.I(f"buffer_load_dwordx4 {vr(PR + ((d-1)*3+k_)*4, 4)}, v{L16}, s[16:19], s{64+2*d if k_ < 2 else 65+2*d} offen offset:{(k_%2)*1024} sc1")
    regs = [PR + (dd*3+k_)*4 + r for dd in range(3) for k_ in range(3) for r in range(4 if k_ < 2 else 2)]
    a.I(f"s_waitcnt vmcnt(0)\nv_max3_u32 v{T}, v{regs[0]}, v{regs[1]}, v{regs[2]}")
    for k_ in range(3, len(regs) - 1, 2): a.I(f"v_max3_u32 v{T}, v{T}, v{regs[k_]}, v{regs[k_+1]}")
    a.I(f"""
    v_max_u32 v{T}, v{T}, v{regs[-1]}
    v_cmp_eq_u32 vcc, -1, v{T}
    s_sub_u32 s27, s27, 1
    s_cbranch_vccz L_fin_ok
    s_cmp_lg_u32 s27, 0
    s_cbranch_scc1 L_fin_poll
    """)
    a.label("L_fin_ok"); pt(a, 'cx')
    add_pieces(X1F, PR, 3, False)
    for j in range(5):
        b = 192 + j*4; e = XF + j*4; g = SV + j*4; y = X1F + 4*j
        for r in range(4): a.I(f"v_mul_f32 v{b+r}, s63, v{y+r}")
        for r in range(4): a.I(f"v_exp_f32 v{b+r}, v{b+r}")
        for h in (0, 2): a.I(f"v_pk_mul_f32 v[{y+h}:{y+h+1}], v[{y+h}:{y+h+1}], v[{g+h}:{g+h+1}]")
        for r in range(4): a.I(f"v_add_f32 v{b+r}, 1.0, v{b+r}")
        for r in range(4): a.I(f"v_rcp_f32 v{b+r}, v{b+r}")
        a.I("s_nop 0")
        for h in (0, 2): a.I(f"v_pk_fma_f32 v[{e+h}:{e+h+1}], v[{y+h}:{y+h+1}], v[{b+h}:{b+h+1}], v[{e+h}:{e+h+1}]")
        a.I(f"v_cvt_pk_bf16_f32 v{b}, v{e}, v{e+1}\nv_cvt_pk_bf16_f32 v{b+1}, v{e+2}, v{e+3}")
        if j == 4: a.I(f"s_cmp_ge_u32 s24, 2\ns_cselect_b32 s45, {OOB:#x}, s45")
        a.I(f"buffer_store_dwordx2 v[{b}:{b+1}], v{XD}, s[20:23], s45 offen offset:{j*32} {('sc1', 'nt', '')[OPT.get('outst', 2)]}")
    g_end(a, 1, wsreg=P['ws'])
    a.label("L_exit")
    a.I("s_endpgm")
    a.label("L_fallback")
    a.I("s_waitcnt vmcnt(0)")
    zero_o()
    M = AT.V_M
    AT.V_LS = LS = 84
    for qt in range(4): a.I(f"v_mov_b32 v{M+qt}, 0xff800000\nv_mov_b32 v{LS+qt}, 0")
    a.I("s_mov_b32 s30, s55\ns_mov_b32 s25, s30\ns_mov_b32 s26, s30\ns_mov_b32 s27, 64")
    a.label("L_fb_loop")
    a.I("s_bitcmp1_b32 s27, 0\ns_cbranch_scc1 L_fb_odd\ns_barrier")
    for x in AT.dma_k(a, 0) + AT.dma_v(a, 0): a.I(x[2] if isinstance(x, tuple) else x + "\ns_nop 0")
    a.I("s_waitcnt vmcnt(0)\ns_barrier")
    a.label("L_fb_odd")
    for x in AT.k_reads(0): a.I(x)
    a.I("s_waitcnt lgkmcnt(0)")
    for x in AT.v_reads(0): a.I(x)
    a.I("s_waitcnt lgkmcnt(0)")
    for r in range(12): a.I(f"v_xor_b32 v{KA+r}, 0x2000, v{KA+r}")
    for x in AT.qk_mfmas(0, False): a.I(x)
    a.I("s_nop 7\ns_nop 7")
    for qt in range(4):
        rowmax(0, qt, T)
        a.I(f"v_max_f32 v{T}, v{T}, v{M+qt}\nv_sub_f32 v{T+2}, v{M+qt}, v{T}\nv_exp_f32 v{T+2}, v{T+2}\nv_mov_b32 v{M+qt}, v{T}\nv_mul_f32 v{LS+qt}, v{LS+qt}, v{T+2}")
        for r in range(0, 32, 4):
            o = AT.A_O + qt*32 + r
            for i in range(4): a.I(f"v_accvgpr_read_b32 v{T+4+i}, a{o+i}")
            for i in range(4): a.I(f"v_mul_f32 v{T+4+i}, v{T+4+i}, v{T+2}")
            for i in range(4): a.I(f"v_accvgpr_write_b32 a{o+i}, v{T+4+i}")
        for r in range(8):
            e = 8*qt + r
            a.I(f"v_sub_f32 v{AT.sbuf(0)+e}, v{AT.sbuf(0)+e}, v{T}"); a.I(AT.sm_exp(0, e))
        a.I("s_nop 0")
        for r in range(8): a.I(AT.sm_add(0, 8*qt + r))
        for p in range(4): a.I(AT.sm_cvt(0, 4*qt + p))
    a.I("s_nop 1")
    for x in AT.pv_mfmas(0): a.I(x)
    a.I("s_nop 7\ns_nop 7")
    a.I("s_sub_u32 s27, s27, 1\ns_cmp_lg_u32 s27, 0\ns_cbranch_scc1 L_fb_loop")
    for qt in range(4):
        a.I(f"v_mov_b32 v{T}, v{LS+qt}"); xlane(a, "v_add_f32", T); a.I(f"v_mov_b32 v{LSA+4*qt}, v{T}")
    a.I(f"s_mul_i32 s30, s24, {SLAB}\ns_barrier")
    for x in early4(): a.I(x[2] if isinstance(x, tuple) else x)
    a.I("s_waitcnt vmcnt(0)\ns_branch L_att_epi")
    a.label("L_code_end")
    return a

def build(path):
    a = gen()
    hdr = open("recurrent_scan__mha_block_cached__mixer_s_mlp__prompt.s.ref").read().split("; Override launch")[0]
    hdr += "; @launch grid=(256,1,1) block=(256,1,1) lds=163840\n"
    hdr += '.amdgcn_target "amdgcn-amd-amdhsa--gfx950"\n'
    txt = "\n".join(l[4:] if l.startswith("    ") else l for l in a.L) + "\n"
    open(path, "w").write(hdr + txt + kernel_desc(NAME, 512, 256))
if __name__ == "__main__":
    GSTAMP[0] = "stamp" in sys.argv
    MIDS[:] = [36, 38, 40, 100, 98]; ENDR[0] = 64
    for x in sys.argv:
        if x.startswith("pts="): PTS[:] = x[4:].split(",")
        elif x.startswith("ntt="): NTT.update(x[4:].split(","))
        elif "=" in x: k, v = x.split("="); OPT[k] = int(v)
    build(sys.argv[1])
```

```python
import sys; sys.path.insert(0, "dev")
from gen_common import *
from gen_gemm import f32, mf, SLAB, EPS, C1, C2, xlane, gelu4, emit
import gen_attn16 as AT

WS_ST1 = 0x0950000
WS_PK  = 0x4000000
PK_WO  = 4 * 144 * SLAB
WS_PART = 0x5000000
WS_CX  = 0x7800000
CQ = 1.4426950408889634 / 128 ** 0.5
NAME = "recurrent_scan__mha_block_cached__mixer_s_mlp__prompt_kernel"
P = dict(x=64, k=66, v=68, wq=70, wo=72, w1=76, w2=78, w3=80, w4=82, out=84, dbg=86, ws=88)
PAT = 1; PFD = 10; L16 = 11; T = 12; ST1 = 28
KD = 32; VD = 36; WD = 38; WA = 40; XA = 48; TRA = 49; TRB = 50; TRC = 51; PATB = 52; PCNT = 61; XD = 63
OOB = 0x7fff0000
PTS = []
OPT = dict(pace=72, pace5=50)
def pt(a, name):
    if name in PTS: g_mid(a, PTS.index(name))
    if "CA:" + name in PTS: a.I("s_memtime s[36:37]\ns_memrealtime s[38:39]")
    if "CB:" + name in PTS: a.I("s_memtime s[40:41]\ns_memrealtime s[100:101]")

def pat_regs(a, dst, pitch):
    a.I(f"s_mov_b32 s90, {(1<<32)//18 + 1}\ns_mov_b32 s91, {pitch}")
    for p in range(9):
        a.I(f"""
        v_add_u32 v{T}, {p*64}, v0
        v_mul_hi_u32 v{T+1}, v{T}, s90
        v_mul_u32_u24 v{T+2}, 18, v{T+1}
        v_sub_u32 v{T+2}, v{T}, v{T+2}
        v_mul_lo_u32 v{T+1}, v{T+1}, s91
        v_lshl_add_u32 v{dst+p}, v{T+2}, 4, v{T+1}
        """)
        if p % 4: a.I(f"v_subrev_u32 v{dst+p}, {(p%4)*1024}, v{dst+p}")

def dma_slab(pat, srdW, s_soff, goff, m0expr, tag):
    r = []
    for p in range(9):
        r.append(m0expr((p // 4) * 4096))
        r.append(f"s_add_u32 s3, s{s_soff}, {goff + (0 if pat is not None else (p // 4) * 4096)}")
        r.append(("vm", tag, f"buffer_load_dwordx4 v{pat+p if pat is not None else L16}, s[{srdW}:{srdW+3}], s3 offen offset:{(p%4)*1024} lds"))
    return r

def a_reads(dst, off):
    base = off // 64512; o = off - base * 64512
    assert o + 16*288 + 256 < 65536, off
    return [f"ds_read_b64_tr_b16 {ar(dst + nt*4 + 2*m, 2)}, v{TRA+base} offset:{o + m*16*288 + nt*32}" for nt in range(9) for m in range(2)]

_lbl = [0]
def signal(a, inc, srd_=56):
    _lbl[0] += 1; l = f"L_sig{_lbl[0]}"
    au = a.auto; a.auto = False
    a.I(f"""
    s_cmp_lg_u32 s24, 0
    s_cbranch_scc1 {l}
    v_mov_b32 v{T}, 0
    v_mov_b32 v{T+1}, {inc:#x}
    s_mov_b64 exec, 1
    buffer_atomic_add v{T+1}, v{T}, s[{srd_}:{srd_+3}], s33 offen
    s_mov_b64 exec, -1
    """)
    a.label(l); a.auto = au

def poll_issue(a, tag, mask_code, srd_=56, soff="0", front=True):
    au = a.auto; a.auto = False
    a.I(mask_code)
    a.I(f"""
    s_mov_b64 s[42:43], vcc
    s_cmp_eq_u32 s24, 0
    s_cselect_b64 vcc, s[42:43], 0
    v_mov_b32 v{T}, {OOB:#x}
    v_lshlrev_b32 v{T+1}, 2, v0
    v_cndmask_b32 v{PCNT+1}, v{T}, v{T+1}, vcc
    """)
    a.auto = au
    a.bg_add([("vm", tag, f"buffer_load_dword v{PCNT}, v{PCNT+1}, s[{srd_}:{srd_+3}], {soff} offen sc1")], front=front)

def poll_check(a, tag, shift, want, srd_=56, soff="0"):
    _lbl[0] += 1; l = f"L_poll{_lbl[0]}"
    n = a.vm_wait({tag})
    au = a.auto; a.auto = False
    a.I(f"s_cmp_lg_u32 s24, 0\ns_cbranch_scc1 {l}_ok\ns_waitcnt vmcnt({n})\ns_mov_b32 s35, 400000")
    a.label(l)
    a.I(f"""
    v_bfe_u32 v{T}, v{PCNT}, {shift}, 8
    v_cmp_gt_u32 vcc, {want}, v{T}
    s_nop 1
    s_and_b64 vcc, vcc, s[42:43]
    s_cmp_eq_u64 vcc, 0
    s_cbranch_scc1 {l}_ok
    s_sleep 2
    buffer_load_dword v{PCNT}, v{PCNT+1}, s[{srd_}:{srd_+3}], {soff} offen sc1
    s_waitcnt vmcnt(0)
    s_sub_u32 s35, s35, 1
    s_cmp_lg_u32 s35, 0
    s_cbranch_scc1 {l}
    """)
    a.label(l + "_ok"); a.auto = au

def touch(a, srd_, soff, n, addr=None):
    if not OPT.get("pf", 1): return
    au = a.auto; a.auto = False
    if addr is None:
        a.I(f"v_lshlrev_b32 v{T+9}, 7, v0"); addr = T + 9
    for i in range(n):
        if i: a.I(f"s_add_u32 s{soff}, s{soff}, 8192")
        a.vm_issue("PF"); a.I(f"buffer_load_dword v{PFD}, v{addr}, s[{srd_}:{srd_+3}], s{soff} offen")
    a.auto = au


NTT = set()
class Asm2(Asm):
    def vm_issue(self, tag):
        self._tag = tag; super().vm_issue(tag)
    def I(self, s_):
        t = getattr(self, "_tag", None)
        if t and s_.startswith("buffer_load") and " nt" not in s_ and "sc1" not in s_ and (t.rstrip("0123456789") in NTT):
            s_ = s_.replace(" lds", " nt lds") if s_.endswith(" lds") else s_ + " nt"
        self._tag = None
        super().I(s_)

def gen():
    a = Asm2(); kernel_begin(a, NAME); g_begin(a)
    a.pace = OPT["pace"]
    NT = "nt" if OPT.get("nt", 1) else ""
    def resrd(d, *args, **kw):
        for g in a.bg:
            for x in g:
                assert f"s[{d}:{d+3}]" not in (x[2] if isinstance(x, tuple) else x), ("pending bg item uses SRD", d, x)
        srd(a, d, *args, **kw)
    def W(tags, extra=""):
        n = a.vm_wait(set(tags)); a.I(f"s_waitcnt vmcnt({n}){extra}")
    def noauto(f):
        au = a.auto; a.auto = False; f(); a.auto = au
    a.I(f"""
    s_cmp_ge_u32 s2, 256
    s_cbranch_scc1 L_exit
    s_load_dwordx16 s[64:79], s[0:1], 0
    s_load_dwordx8 s[80:87], s[0:1], 64
    s_load_dwordx2 s[88:89], s[0:1], 96
    s_getpc_b64 s[12:13]
    """)
    a.label("L_pc0")
    a.I(f"""
    s_sub_u32 s12, s12, L_pc0-{NAME}
    s_subb_u32 s13, s13, 0
    s_mov_b32 s14, L_code_end-{NAME}
    s_mov_b32 s15, 0x00020000
    s_lshr_b32 s34, s2, 3
    s_lshl_b32 s33, s34, 12
    v_lshlrev_b32 v2, 4, v0
    buffer_load_dwordx4 v[252:255], v2, s[12:15], s33 offen
    v_lshrrev_b32 v1, 6, v0
    v_and_b32 v0, 63, v0
    s_and_b32 s33, s2, 7
    v_readfirstlane_b32 s24, v1
    s_lshl_b32 s48, s33, 3
    s_lshr_b32 s35, s34, 2
    s_add_u32 s48, s48, s35               ; qb32
    v_lshrrev_b32 v{T}, 3, v0
    v_mul_u32_u24 v{T+2}, 1152, v{T}
    v_and_b32 v{T+1}, 7, v0
    v_lshl_add_u32 v{XA}, v{T+1}, 4, v{T+2}
    s_lshl_b32 s26, s48, 2
    s_add_u32 s26, s26, s24
    s_mul_i32 s26, s26, {8*1152}
    s_mov_b32 s10, {SZ_ACT:#x}
    s_mov_b32 s11, 0x00020000
    s_waitcnt lgkmcnt(0)
    s_mov_b32 s8, s{P['x']}
    s_mov_b32 s9, s{P['x']+1}
    """)
    a.vm_issue("PF"); pt(a, 'ka')
    V_B = 64; V_X = 128; ACC1 = 96; AA1 = 168; RAW = 208
    for j in range(9):
        a.vm_issue("B"); a.I(f"buffer_load_dwordx4 {vr(RAW + j*4, 4)}, v{XA}, s[8:11], s26 offen offset:{j*128}")
    a.I(f"""
    s_lshl_b32 s0, s34, 2
    s_add_u32 s0, s0, s24
    s_mul_i32 s35, s0, 5184
    """)
    pt(a, 'xi')
    srd(a, 16, P['w1'], 576*1152)
    touch(a, 16, 35, 1); pt(a, 'tw1')
    a.I(f"""
    s_lshl_b32 s31, s33, 2
    s_lshr_b32 s35, s34, 3
    s_add_u32 s31, s31, s35               ; head
    s_and_b32 s32, s34, 7                 ; Q (attention)
    s_and_b32 s49, s34, 3                 ; nb
    s_and_b32 s50, s33, 1
    s_lshl_b32 s50, s50, 2
    s_add_u32 s50, s50, s35               ; Q4
    s_lshr_b32 s51, s33, 1
    s_lshl_b32 s51, s51, 3
    s_add_u32 s51, s51, s32               ; fb
    s_lshr_b32 s52, s33, 2
    s_lshl_b32 s52, s52, 3
    s_lshr_b32 s35, s34, 2
    s_add_u32 s52, s52, s35
    s_and_b32 s54, s33, 3                 ; kq
    """)
    if OPT.get("map84", 0):
        a.I("""
        s_lshr_b32 s31, s33, 1
        s_lshl_b32 s31, s31, 3
        s_add_u32 s31, s31, s35
        s_and_b32 s32, s33, 1
        s_lshl_b32 s32, s32, 2
        s_add_u32 s32, s32, s49               ; Q = (x&1)*4 + (idx&3)
        """)
    a.I(f"""
    s_mul_i32 s30, s24, {SLAB}
    s_lshl_b32 s55, s24, 12
    s_mul_i32 s33, s49, 288
    s_cmp_ge_u32 s24, 2
    s_cselect_b32 s34, 5, 0
    s_mul_i32 s60, s49, 9
    s_add_u32 s60, s60, s34               ; ntg0
    s_and_b32 s61, s24, 1                 ; qt
    s_mul_i32 s53, s61, 9
    s_add_u32 s53, s53, s34
    s_lshl_b32 s53, s53, 10
    s_lshl_b32 s62, s48, 1
    s_add_u32 s62, s62, s61
    """)
    srd(a, 4, P['w1'], 0, add_lo=33)
    a.I(f"s_sub_u32 s6, {576*1152}, s33")
    pat_regs(a, PAT, 1152)
    a.I(f"v_lshlrev_b32 v{L16}, 4, v0\ns_mul_i32 s25, s24, {32*1152}")
    def slot13(j): return (j % 4) * 4 * SLAB
    def loadW13(j, tagp):
        return dma_slab(PAT, 4, 25, j*128*1152, lambda o: f"s_add_u32 m0, s30, {slot13(j) + o}", f"{tagp}{j}")
    pt(a, 'w0a')
    NW0 = OPT.get("nw0", 3)
    for j in range(NW0):
        for x in loadW13(j, "W"): emit(a, x)
    pt(a, 'w1b')
    for j in range(NW0, 3): a.bg_add(loadW13(j, "W"))
    srd(a, 56, P['dbg'], 256)
    srd(a, 12, P['ws'], 0x10000, add_imm=WS_CX)
    XIMG = 3*4*SLAB; XQL = 16*SLAB
    XW = T + 12; XR = T + 13; XQW = T + 14
    a.I(f"""
    v_lshrrev_b32 v{T}, 4, v0
    v_bfe_u32 v{T+1}, v0, 2, 2
    v_lshl_add_u32 v{T}, v{T}, 3, v{T+1}
    v_mul_u32_u24 v{T}, 288, v{T}
    v_and_b32 v{T+1}, 3, v0
    v_lshl_add_u32 v{TRA}, v{T+1}, 3, v{T}
    v_lshlrev_b32 v{PCNT+1}, 2, v0
    v_add_u32 v{TRA}, s30, v{TRA}
    v_add_u32 v{TRB}, 64512, v{TRA}
    s_lshl_b32 s33, s52, 2
    s_add_u32 s33, s33, s49
    s_lshl_b32 s33, s33, 8
    s_or_b32 s34, s24, s54
    s_cmp_eq_u32 s34, 0
    s_cselect_b32 s33, s33, {OOB:#x}
    v_mov_b32 v{T}, 0
    """)
    a.vm_issue("CLR"); a.I(f"buffer_store_dword v{T}, v{PCNT+1}, s[12:15], s33 offen sc1")
    a.I(f"""
    v_and_b32 v{T}, 15, v0
    v_mul_u32_u24 v{T}, 1152, v{T}
    v_lshrrev_b32 v{T+1}, 4, v0
    v_lshl_add_u32 v{XD}, v{T+1}, 3, v{T}
    s_lshl_b32 s33, s24, 3
    v_lshrrev_b32 v{T}, 3, v0
    v_add_u32 v{T}, s33, v{T}
    v_bfe_u32 v{T+1}, v{T}, 1, 3
    v_and_b32 v{T+2}, 7, v0
    v_xor_b32 v{T+1}, v{T+1}, v{T+2}
    v_mul_u32_u24 v{T+3}, 1152, v{T}
    v_lshl_add_u32 v{XW}, v{T+1}, 4, v{T+3}
    v_add_u32 v{XW}, {XIMG}, v{XW}
    v_and_b32 v{T}, 15, v{T}
    v_and_b32 v{T+1}, 3, v0
    v_lshl_add_u32 v{T}, v{T+1}, 4, v{T}
    v_lshlrev_b32 v{T}, 4, v{T}
    s_lshr_b32 s33, s24, 1
    s_mul_i32 s33, s33, 5120
    s_add_u32 s33, s33, {XQL}
    v_add_u32 v{XQW}, s33, v{T}
    v_and_b32 v{T}, 15, v0
    v_lshrrev_b32 v{T+1}, 4, v0
    s_lshl_b32 s33, s61, 2
    v_add_u32 v{T+1}, s33, v{T+1}
    v_lshrrev_b32 v{T+2}, 1, v{T}
    v_xor_b32 v{T+1}, v{T+1}, v{T+2}
    v_mul_u32_u24 v{T}, 1152, v{T}
    v_lshl_add_u32 v{XR}, v{T+1}, 4, v{T}
    s_lshr_b32 s33, s24, 1
    s_lshl_b32 s33, s33, 7
    s_add_u32 s33, s33, {XIMG}
    v_add_u32 v{XR}, s33, v{XR}
    v_lshrrev_b32 v{T}, 4, v0
    v_and_b32 v{T+1}, 15, v0
    v_xor_b32 v{T+2}, v{T+1}, v{T}
    v_lshlrev_b32 v{T+2}, 4, v{T+2}
    v_lshl_add_u32 v{KD}, v{T}, 8, v{T+2}
    v_xor_b32 v{KD+1}, 64, v{KD}
    v_xor_b32 v{KD+2}, 0x80, v{KD}
    v_xor_b32 v{KD+3}, 0xc0, v{KD}
    v_lshlrev_b32 v{T+2}, 1, v{T}
    v_xor_b32 v{T+2}, v{T+1}, v{T+2}
    v_lshlrev_b32 v{T+2}, 4, v{T+2}
    v_lshl_add_u32 v{VD}, v{T}, 8, v{T+2}
    v_xor_b32 v{VD+1}, 0x80, v{VD}
    v_lshl_add_u32 v{WD}, v{T}, 13, v{T+2}
    v_xor_b32 v{WD+1}, 0x80, v{WD}
    v_bfe_u32 v{T+1}, v0, 2, 2
    v_lshl_add_u32 v{T+2}, v{T}, 3, v{T+1}
    v_and_b32 v{T}, 1, v{T}
    v_lshl_add_u32 v{T}, v{T}, 2, v{T+1}
    v_lshlrev_b32 v{T}, 1, v{T}
    v_and_b32 v{T+1}, 3, v0
    v_xor_b32 v{T}, v{T}, v{T+1}
    v_lshlrev_b32 v{T}, 4, v{T}
    v_lshl_add_u32 v{WA}, v{T+2}, 8, v{T}
    s_lshl_b32 s33, s32, 4
    s_lshl_b32 s34, s24, 2
    s_add_u32 s46, s33, s34              ; first q tile of this wave (attention rows)
    s_mul_i32 s27, s46, {18*1024}
    s_add_u32 s28, s27, {18*1024}
    s_add_u32 s29, s27, {36*1024}
    s_add_u32 s45, s27, {54*1024}
    s_lshl_b32 s34, s31, 8
    s_lshl_b32 s44, s24, 17
    """)
    srd(a, 12, P['wq'], 0, add_lo=34)
    a.I("s_sub_u32 s14, 0x480000, s34")
    srd(a, 20, P['ws'], SZ_ACT, add_imm=WS_XQ)
    for t in range(1, 4): a.I(f"v_xor_b32 v{WA+t}, {t*64}, v{WA}")
    for t in range(4): a.I(f"v_add_u32 v{WA+4+t}, 0x10000, v{WA+t}")
    XS = [27, 28, 29, 45]
    TBL = [74, 75, 1]
    a.I("s_and_b32 s33, s31, 3\ns_lshl_b32 s33, s33, 1\ns_add_u32 s33, s33, s32\ns_mov_b32 s74, 0\ns_mov_b32 s75, 0\ns_mov_b32 s1, 0")
    if not OPT.get("rot", 0): a.I("s_mov_b32 s33, 0")
    for c in range(9):
        a.I(f"s_add_u32 s34, s33, {c}\ns_sub_u32 s35, s34, 9\ns_cmp_ge_u32 s34, 9\ns_cselect_b32 s34, s35, s34\ns_sub_u32 s35, s34, 9\ns_cmp_ge_u32 s34, 9\ns_cselect_b32 s34, s35, s34\ns_lshl_b32 s34, s34, {3 + 8*(c%4)}\ns_or_b32 s{TBL[c//4]}, s{TBL[c//4]}, s34")
    def cbfe(c): return f"s_bfe_u32 s3, s{TBL[c//4]}, {(8 << 16) | (8*(c%4)):#x}"
    def xset(c): s_ = c % 6; return 32 * s_ if s_ < 4 else 192 + 32*(s_-4)
    def ld_x(c):
        r = []
        for qt in range(4):
            for kl in range(2):
                r += [cbfe(c), "s_lshl_b32 s3, s3, 8", f"s_add_u32 s3, s3, s{XS[qt]}",
                      ("vm", f"X{c}", f"buffer_load_dwordx4 {ar(xset(c) + (kl*4+qt)*4, 4)}, v{L16}, s[20:23], s3 offen offset:{kl*1024}")]
        return r
    def wq_lds(c): return 16384*c if c < 5 else 98304 + 16384*(c-5)
    def dma_wq(c):
        r = []
        for i in range(4):
            r.append(f"s_add_u32 m0, s55, {wq_lds(c) + i*1024}")
            r += [cbfe(c), "s_lshl_b32 s3, s3, 16", "s_add_u32 s3, s3, s44", f"s_add_u32 s3, s3, {i*4*8192}"] if i else [cbfe(c), "s_lshl_b32 s3, s3, 16", "s_add_u32 s3, s3, s44"]
            r.append(("vm", f"Q{c}", f"buffer_load_dwordx4 v{WD+(i>>1)}, s[12:15], s3 offen lds"))
        return r
    def pf_wq():
        srd(a, 16, P['wq'], 0x480000)
        m84 = OPT.get("map84", 0)
        for i in range(2 if m84 else 1):
            a.I(f"""
            s_mul_i32 s35, s0, {72 if m84 else 36}
            v_min_u32 v{T}, 35, v0
            v_add_u32 v{T}, s35, v{T}
            v_add_u32 v{T}, {36*i}, v{T}
            v_lshrrev_b32 v{T+1}, {4 if m84 else 3}, v{T}
            v_and_b32 v{T}, {15 if m84 else 7}, v{T}
            v_lshlrev_b32 v{T}, 7, v{T}
            v_lshl_add_u32 v{T}, v{T+1}, 13, v{T}
            s_and_b32 s35, s2, {6 if m84 else 7}
            s_lshl_b32 s35, s35, 10
            """)
            touch(a, 16, 35, 1, addr=T)
    if OPT.get('pfwq', 2) == 1: pf_wq()
    pt(a, 'xw'); W(["B"]); pt(a, 'xarr')
    a.auto = True
    for r in range(36): a.I(f"v_lshlrev_b32 v{V_X+2*r}, 16, v{RAW+r}\nv_and_b32 v{V_X+2*r+1}, 0xffff0000, v{RAW+r}")
    def red8(d):
        a.I(f"""v_add_f32 v{d}, v{d}, v{d+1}
        s_nop 1
        v_add_f32_dpp v{d}, v{d}, v{d} quad_perm:[1,0,3,2] row_mask:0xf bank_mask:0xf
        s_nop 1
        v_add_f32_dpp v{d}, v{d}, v{d} quad_perm:[2,3,0,1] row_mask:0xf bank_mask:0xf
        s_nop 1
        v_add_f32_dpp v{d}, v{d}, v{d} row_half_mirror row_mask:0xf bank_mask:0xf""")
    d = T + 4
    a.I(f"v_pk_add_f32 v[{d}:{d+1}], v[{V_X}:{V_X+1}], v[{V_X+2}:{V_X+3}]\nv_pk_add_f32 v[{d+2}:{d+3}], v[{V_X+4}:{V_X+5}], v[{V_X+6}:{V_X+7}]")
    for e in range(8, 72, 2): a.I(f"v_pk_add_f32 v[{d+(e&2)}:{d+(e&2)+1}], v[{d+(e&2)}:{d+(e&2)+1}], v[{V_X+e}:{V_X+e+1}]")
    a.I(f"v_pk_add_f32 v[{d}:{d+1}], v[{d}:{d+1}], v[{d+2}:{d+3}]")
    red8(d)
    a.I(f"s_mov_b32 s47, {f32(-1.0/576):#x}\nv_mul_f32 v{d}, s47, v{d}")
    for e in range(0, 72, 2): a.I(f"v_pk_add_f32 v[{V_X+e}:{V_X+e+1}], v[{V_X+e}:{V_X+e+1}], v[{d}:{d+1}] op_sel_hi:[1,0]")
    a.I(f"v_pk_mul_f32 v[{d}:{d+1}], v[{V_X}:{V_X+1}], v[{V_X}:{V_X+1}]\nv_pk_mul_f32 v[{d+2}:{d+3}], v[{V_X+2}:{V_X+3}], v[{V_X+2}:{V_X+3}]")
    for e in range(4, 72, 2): a.I(f"v_pk_fma_f32 v[{d+(e&2)}:{d+(e&2)+1}], v[{V_X+e}:{V_X+e+1}], v[{V_X+e}:{V_X+e+1}], v[{d+(e&2)}:{d+(e&2)+1}]")
    a.I(f"v_pk_add_f32 v[{d}:{d+1}], v[{d}:{d+1}], v[{d+2}:{d+3}]")
    red8(d)
    a.I(f"""
    s_mov_b32 s34, {f32(EPS):#x}
    s_mov_b32 s47, {f32(1.0/576):#x}
    s_mov_b32 s33, {f32(CQ):#x}
    v_mul_f32 v{d}, s47, v{d}
    v_add_f32 v{d+2}, s34, v{d}
    v_fma_f32 v{d+3}, v{d+2}, s34, v{d}
    v_rsq_f32 v{d+2}, v{d+2}
    v_rsq_f32 v{d}, v{d+3}
    s_nop 0
    v_mul_f32 v{d+2}, s33, v{d+2}
    """)
    a.auto = False
    a.I(f"""
    s_mov_b32 s34, 0x0f0f0f0f
    s_bitcmp1_b32 s49, 0
    s_cselect_b32 s34, 0xf0f0f0f0, s34
    s_mov_b32 s35, s34
    s_bitcmp1_b32 s49, 1
    s_cbranch_scc1 L_xq_odd
    """)
    for par in range(2):
        if par: a.label("L_xq_odd")
        for j in range(par, 9, 2):
            b = V_X + j*8; o = RAW + (j >> 1)*4; t = V_B
            for r in range(4): a.I(f"v_pk_mul_f32 v[{t+2*r}:{t+2*r+1}], v[{b+2*r}:{b+2*r+1}], v[{d+2}:{d+3}] op_sel_hi:[1,0]")
            for r in range(4): a.I(f"v_cvt_pk_bf16_f32 v{o+r}, v{t+2*r}, v{t+2*r+1}")
        a.I("s_mov_b64 exec, s[34:35]")
        for j in range(par, 9, 2): a.I(f"ds_write_b128 v{XQW}, {vr(RAW + (j >> 1)*4, 4)} offset:{(j >> 1)*1024}")
        a.I("s_mov_b64 exec, -1")
        if par == 0: a.I("s_branch L_xq_done")
    a.label("L_xq_done"); a.auto = True
    for j in range(9):
        b = V_X + j*8
        for r in range(4): a.I(f"v_pk_mul_f32 v[{b+2*r}:{b+2*r+1}], v[{b+2*r}:{b+2*r+1}], v[{d}:{d+1}] op_sel_hi:[1,0]")
        for r in range(4): a.I(f"v_cvt_pk_bf16_f32 v{b+r}, v{b+2*r}, v{b+2*r+1}")
        a.I(f"ds_write_b128 v{XW}, {vr(b, 4)} offset:{j*128}")
    W(["W0"], " lgkmcnt(0)"); a.I("s_barrier")
    a.I(f"s_lshl_b32 s33, s24, 10\ns_add_u32 s33, s33, {XQL}\nv_add_u32 v{T}, s33, v{L16}")
    for k_ in range(3): a.I(f"ds_read_b128 {vr(RAW + k_*4, 4)}, v{T} offset:{k_*4096}")
    for i in range(5):
        for qt in range(2): a.I(f"ds_read_b128 {vr(V_B + (i*2+qt)*4, 4)}, v{XR} offset:{qt*18432 + i*256}")
    a.auto = False
    a.I("s_waitcnt lgkmcnt(10)")
    for k_ in range(3):
        a.I(f"""
        s_add_u32 s33, s24, {4*k_}
        s_cmp_ge_u32 s33, 5
        s_cselect_b32 s34, 1, 0
        s_mul_i32 s35, s34, 5
        s_sub_u32 s35, s33, s35
        s_lshl_b32 s35, s35, 2
        s_add_u32 s35, s35, s49               ; ks
        s_lshl_b32 s47, s48, 1
        s_add_u32 s34, s34, s47
        s_mul_i32 s34, s34, 18
        s_add_u32 s34, s34, s35
        s_lshl_b32 s34, s34, 10
        s_cmp_ge_u32 s35, 18
        s_cselect_b32 s34, {OOB:#x}, s34
        s_cmp_ge_u32 s33, 10
        s_cselect_b32 s34, {OOB:#x}, s34
        """)
        a.vm_issue("XQ"); a.I(f"buffer_store_dwordx4 {vr(RAW + k_*4, 4)}, v{L16}, s[20:23], s34 offen sc1")
    def nat_reads(dst, off):
        base = off // 64512; o = off - base * 64512
        return [f"ds_read_b64_tr_b16 {ar(dst + nt*4 + 2*m, 2)}, v{TRA+base} offset:{o + m*4*288 + nt*32}" for nt in range(9) for m in range(2)]
    for x in nat_reads(AA1, 0): a.I(x)
    a.I(f"s_waitcnt lgkmcnt(0)\ns_barrier\ns_cmp_lt_u32 s24, 2\ns_cbranch_scc1 L_b4ok")
    for r in range(8): a.I(f"v_mov_b32 v{V_B+32+r}, 0")
    a.label("L_b4ok"); a.auto = True
    a.bg_add(loadW13(3, "W") + loadW13(4, "W"), front=True)
    pt(a, 'ln')
    if OPT.get('pfwq', 2) == 2: a.force(None); noauto(pf_wq)
    RED = 90112; XQS = OPT.get('xqs', 2)
    def small_gemm_steps(tagp, accr, AA, bfrag, late_w4, a_reads=a_reads, last_need=()):
        if late_w4:
            W([f"{tagp}0"])
            for x in a_reads(AA, 0): a.I(x)
        for i in range(5):
            W([f"{tagp}{min(i+1, 4)}", f"B{i}"] + (list(last_need) if i == XQS else []), " lgkmcnt(0)")
            if last_need and i == XQS:
                a.I("s_barrier\ns_lshr_b32 s33, s48, 3\ns_lshl_b32 s33, s33, 5\ns_add_u32 s33, s33, 4"); signal(a, 0x100)
            if late_w4 and i == 0: a.bg_add(loadW13(4, tagp), front=True)
            rd = a_reads(AA + 36*((i+1) % 2), slot13(i+1)) if i < 4 else []
            k = 0
            for nt in range(9):
                for qt in range(2):
                    d = accr(qt*9+nt)
                    a.I(mf(d, ar(AA + 36*(i % 2) + nt*4, 4), bfrag(i, qt), d if i else "0"))
                    if k < len(rd): a.I(rd[k]); k += 1
        a.I(f"s_nop 7\ns_barrier\ns_mul_i32 s33, s24, {18*1024}\ns_add_u32 s33, s33, {RED}\nv_add_u32 v{T}, s33, v{L16}")
    def acc_to_lds(accr):
        for t in range(18): a.I(f"ds_write_b128 v{T}, {accr(t)} offset:{t*1024}")
    RES = 64; BUF = 84; XL = 116; S1V = 64
    def reduce_tiles():
        a.I(f"s_waitcnt lgkmcnt(0)\ns_barrier\ns_add_u32 s33, s53, {RED}\nv_add_u32 v{T}, s33, v{L16}")
        def rd(j):
            for w in range(4): a.I(f"ds_read_b128 {vr(BUF + (j%2)*16 + w*4, 4)}, v{T} offset:{w*18*1024 + j*1024}")
        rd(0)
        for j in range(5):
            if j < 4: rd(j + 1)
            a.I(f"s_waitcnt lgkmcnt({4 if j < 4 else 0})")
            b = BUF + (j%2)*16
            for h in (0, 2):
                a.I(f"v_pk_add_f32 v[{b+h}:{b+h+1}], v[{b+h}:{b+h+1}], v[{b+4+h}:{b+5+h}]")
                a.I(f"v_pk_add_f32 v[{b+8+h}:{b+9+h}], v[{b+8+h}:{b+9+h}], v[{b+12+h}:{b+13+h}]")
                a.I(f"v_pk_add_f32 v[{RES+j*4+h}:{RES+j*4+h+1}], v[{b+h}:{b+h+1}], v[{b+8+h}:{b+9+h}]")
    def piece_off(j, dst):
        a.I(f"s_add_u32 s33, s60, {j}\ns_lshr_b32 s{dst}, s33, 1\ns_lshl_b32 s{dst}, s{dst}, 10\ns_and_b32 s33, s33, 1\ns_lshl_b32 s33, s33, 3\ns_add_u32 s{dst}, s{dst}, s33")
        if j == 4: a.I(f"s_cmp_ge_u32 s24, 2\ns_cselect_b32 s{dst}, {OOB:#x}, s{dst}")
    acc1 = lambda t: ar(ACC1 + t*4, 4)
    small_gemm_steps("W", acc1, AA1, lambda i, qt: vr(V_B + (i*2+qt)*4, 4), False, nat_reads, ["XQ", "CLR"]); pt(a, 't1m')
    acc_to_lds(acc1)
    NQ0 = OPT.get("nq0", 2)
    if OPT.get('c0early', 1):
        poll_issue(a, "P0", "s_lshl_b32 s33, s32, 3\ns_add_u32 s33, s33, 1\nv_cmp_eq_u32 vcc, s33, v0\ns_nop 1"); a.force({"P0"})
    for c in range(NQ0): a.bg_add(dma_wq(c))
    a.I(f"""
    v_lshrrev_b32 v{T+2}, 2, v0
    v_mul_u32_u24 v{T+2}, 288, v{T+2}
    v_and_b32 v{T+3}, 3, v0
    v_lshl_add_u32 v{TRA}, v{T+3}, 3, v{T+2}
    v_add_u32 v{TRA}, s30, v{TRA}
    v_add_u32 v{TRB}, 64512, v{TRA}
    v_add_u32 v{TRC}, 129024, v{TRA}
    """)
    reduce_tiles()
    def do_chk0():
        pt(a, 'c0a'); poll_check(a, "P0", 8, 32); a.I("s_barrier"); pt(a, 'c0b')
        a.bg_add(ld_x(0) + ld_x(1), front=True)
        for c in range(2, 6): a.bg_add((dma_wq(c) if NQ0 <= c < 5 else []) + ld_x(c))
    if OPT.get('c0early', 1): do_chk0()
    else:
        poll_issue(a, "P0", "s_lshl_b32 s33, s32, 3\ns_add_u32 s33, s33, 1\nv_cmp_eq_u32 vcc, s33, v0\ns_nop 1", front=False)
    a.I(f"s_mov_b32 s92, {f32(C2):#x}\ns_mov_b32 s93, {f32(C2):#x}\nv_mov_b32 v{T+4}, {f32(C1):#x}\nv_mov_b32 v{T+5}, {f32(C1):#x}")
    srd(a, 16, P['ws'], SZ_ACT, add_imm=WS_H)
    a.I(f"""
    s_cmp_eq_u32 s49, 0
    s_cselect_b32 s47, 1, -1
    s_cmp_eq_u32 s49, 2
    s_cselect_b32 s47, 2, s47
    s_cmp_eq_u32 s49, 3
    s_cselect_b32 s47, -2, s47
    s_lshl_b32 s33, s62, 4
    s_add_u32 s33, s33, s47
    v_and_b32 v{T}, 15, v0
    v_add_u32 v{T}, s33, v{T}
    v_cmp_gt_u32 vcc, 0x800, v{T}
    v_and_b32 v{T}, 0x7ff, v{T}
    v_lshrrev_b32 v{T+1}, 4, v{T}
    v_mul_u32_u24 v{T+1}, {18*1024}, v{T+1}
    v_and_b32 v{T}, 15, v{T}
    v_lshl_add_u32 v{T+1}, v{T}, 4, v{T+1}
    v_and_b32 v{T}, 0x30, v0
    v_lshl_add_u32 v{T+2}, v{T}, 4, v{T+1}
    """)
    for j in range(5):
        b = RES + j*4
        gelu4(a, b, BUF + (j%2)*4, T + 4, 92)
        a.I(f"v_cvt_pk_bf16_f32 v{b}, v{b}, v{b+1}\nv_cvt_pk_bf16_f32 v{b+1}, v{b+2}, v{b+3}")
        a.I(f"v_cndmask_b32 v{b}, 0, v{b}, vcc\nv_cndmask_b32 v{b+1}, 0, v{b+1}, vcc")
        piece_off(j, 35)
        a.vm_issue("H"); a.I(f"buffer_store_dwordx2 v[{b}:{b+1}], v{T+2}, s[16:19], s35 offen sc1")
    if not OPT.get('c0early', 1): do_chk0()
    pt(a, 't1')
    def abuf(y): return 128 + 32 * (y % 2)
    def w_reads(y):
        o = wq_lds(y >> 1) + (y & 1) * 8192
        base = WA + (4 if 65536 <= o < 131072 else 0); o %= 65536
        return [f"ds_read_b64_tr_b16 {ar(abuf(y) + (t*2+b)*4 + 2*m, 2)}, v{base+t} offset:{o + m*1024 + 8*b}" for t in range(4) for b in range(2) for m in range(2)]
    a.I("s_mul_i32 s33, s49, 288")
    resrd(4, P['w2'], 0, add_lo=33)
    a.I(f"""
    s_sub_u32 s6, {576*1152}, s33
    s_mul_i32 s26, s48, {2*18*1024}
    s_lshl_b32 s33, s24, 10
    s_add_u32 s26, s26, s33
    s_add_u32 s94, s26, {18*1024}
    s_add_u32 s95, s26, 16384
    s_add_u32 s47, s94, 16384
    s_cmp_ge_u32 s24, 2
    s_cselect_b32 s95, {OOB:#x}, s95
    s_cselect_b32 s47, {OOB:#x}, s47
    v_and_b32 v{T+14}, 15, v0
    v_lshlrev_b32 v{T+14}, 4, v{T+14}
    v_bfe_u32 v{T+15}, v0, 5, 1
    v_lshl_add_u32 v{T+14}, v{T+15}, 8, v{T+14}
    v_bfe_u32 v{T+15}, v0, 4, 1
    v_lshl_add_u32 v{T+14}, v{T+15}, 3, v{T+14}
    s_mul_i32 s63, s62, {18*1024}
    s_lshl_b32 s34, s60, 9
    s_add_u32 s63, s63, s34
    """)
    xl_items = [("vm", "XL", f"buffer_load_dwordx2 v[{XL+2*j}:{XL+2*j+1}], v{T+14}, s[20:23], s63 offen offset:{j*512}") for j in range(5)]
    def sig1():
        a.I("s_lshl_b32 s33, s48, 2"); signal(a, 1)
    def bT3(i): return 192 + i*8
    def pf_w2():
        a.I(f"s_mul_i32 s35, s0, 5184\ns_mul_i32 s33, s49, 288\ns_sub_u32 s56, s4, s33") if False else None
        srd(a, 56, P['w2'], 576*1152); a.I("s_mul_i32 s35, s0, 5184"); touch(a, 56, 35, 1); srd(a, 56, P['dbg'], 256)
    def pf_kv():
        m84 = OPT.get("map84", 0)
        a.I(f"s_lshl_b32 s33, s31, 19\ns_and_b32 s35, s0, {15 if m84 else 31}\ns_lshl_b32 s35, s35, {12 if m84 else 11}\ns_add_u32 s35, s35, s33\nv_and_b32 v{T}, {31 if m84 else 15}, v0\nv_lshlrev_b32 v{T}, 7, v{T}")
        srd(a, 56, P['k'], 0x1000000); touch(a, 56, 35, 1, addr=T)
        srd(a, 56, P['v'], 0x1000000); touch(a, 56, 35, 1, addr=T); srd(a, 56, P['dbg'], 256)
    def iss1():
        poll_issue(a, "P1", f"v_subrev_u32 v{T+2}, s48, v0\nv_add_u32 v{T+2}, 1, v{T+2}\nv_and_b32 v{T+2}, 63, v{T+2}\nv_cmp_gt_u32 vcc, 3, v{T+2}\ns_nop 1")
    def chk1():
        pt(a, 'c1a'); poll_check(a, "P1", 0, 4); pt(a, 'c1b')
    def ldb3():
        it = []
        for i in range(5):
            for qt in range(2):
                it.append(f"s_add_u32 s3, s{(26, 94)[qt]}, {i*4096}" if i < 4 else f"s_mov_b32 s3, s{(95, 47)[qt]}")
                it.append(("vm", f"B{i}", f"buffer_load_dwordx4 {ar(bT3(i) + qt*4, 4)}, v{L16}, s[16:19], s3 offen"))
        a.bg_add(it + xl_items, front=True)
    def wa_hi():
        for t in range(4): a.I(f"v_add_u32 v{WA+t}, 0x20000, v{WA+t}")
    hooks = {(0, "pre"): [lambda: a.bg_add(dma_wq(5) + dma_wq(6) + dma_wq(7) + dma_wq(8))],
             (1, "post"): [lambda: a.bg_add(ld_x(6)), lambda: noauto(pf_w2)],
             (3, "need"): {"H"}, (3, "bar"): [sig1], (3, "post"): [lambda: a.bg_add(ld_x(7))],
             (5, "bar"): [lambda: a.bg_add(loadW13(0, "U"))], (5, "post"): [lambda: a.bg_add(ld_x(8), front=True)],
             (7, "bar"): [wa_hi], (7, "post"): [lambda: noauto(pf_kv)],
             (9, "bar"): [lambda: a.bg_add(loadW13(1, "U"))],
             (11, "bar"): [lambda: a.bg_add(loadW13(2, "U")), iss1],
             (12, "post"): [chk1], (13, "bar"): [ldb3],
             (15, "bar"): [lambda: a.bg_add(loadW13(3, "U"))]}
    if OPT.get("w2late"):
        hooks[(5, "bar")] = []; hooks[(9, "bar")] = []; hooks[(11, "bar")] = hooks[(11, "bar")][1:]; hooks[(15, "bar")] = []
        hooks[(17, "post")] = [lambda: a.bg_add(loadW13(0, "U") + loadW13(1, "U") + loadW13(2, "U") + loadW13(3, "U"))]
    if OPT.get("nox"):
        XS[:] = [27, 27, 27, 27]
    W(["Q0"]); a.I("s_barrier")
    for x in w_reads(0): a.I(x)
    for x in hooks[(0, "pre")]: x()
    for y in range(18):
        c = y >> 1
        a.C(f"qproj unit {y}"); pt(a, f"u{y}a")
        if y % 2 == 1 and y + 1 < 18:
            W({f"Q{c+1}", f"X{c}"} | hooks.get((y, "need"), set()), " lgkmcnt(0)"); a.I("s_barrier")
        else:
            W([f"X{c}"], " lgkmcnt(0)")
        for x in hooks.get((y, "bar"), []): x()
        rd = w_reads(y + 1) if y + 1 < 18 else []
        k = 0; g = 0
        for tb in range(8):
            for qt in range(4):
                d = vr(128 + (qt*8 + tb)*4, 4)
                a.I(mf(d, ar(abuf(y) + tb*4, 4), ar(xset(c) + ((y & 1)*4+qt)*4, 4), d if y else "0"))
                if g < 24 and g % 3 != 2 and k < len(rd): a.I(rd[k]); k += 1
                g += 1
        for x in hooks.get((y, "post"), []): x()
    pt(a, 'qp')
    QS = 160 * 1024 - 4096
    def cs_exchange(src, n, dst, bufs):
        a.I(f"""
        s_nop 7
        s_barrier
        v_lshrrev_b32 v{T+6}, 4, v0
        v_lshlrev_b32 v{T+6}, 4, v{T+6}
        v_add_u32 v{T+6}, {QS}, v{T+6}
        s_mul_i32 s33, s24, {n*64}
        v_add_u32 v{T+1}, s33, v{T+6}
        """)
        for t in range(n): a.I(f"ds_write_b128 v{T+1}, {src(t)} offset:{t*64}")
        a.I("s_waitcnt lgkmcnt(0)\ns_barrier")
    def cs_sum(n, dst, tmp):
        for w in range(4):
            for t in range(n): a.I(f"ds_read_b128 {vr((dst if w == 0 else tmp + (w-1)*n*4) + t*4, 4)}, v{T+6} offset:{w*n*64 + t*64}")
            if w: a.I("s_waitcnt lgkmcnt(0)") if w == 3 else None
        for t in range(n):
            for h in (0, 2):
                d = dst + t*4 + h; p = [tmp + w*n*4 + t*4 + h for w in range(3)]
                a.I(f"v_pk_add_f32 v[{d}:{d+1}], v[{d}:{d+1}], v[{p[0]}:{p[0]+1}]\nv_pk_add_f32 v[{p[1]}:{p[1]+1}], v[{p[1]}:{p[1]+1}], v[{p[2]}:{p[2]+1}]\nv_pk_add_f32 v[{d}:{d+1}], v[{d}:{d+1}], v[{p[1]}:{p[1]+1}]")
    a.I("s_nop 3")
    for qt in range(4):
        for t in range(4):
            b = 128 + (qt*8 + t*2)*4
            for i in range(4): a.I(f"v_cvt_pk_bf16_f32 v{b+i}, v{b+2*i}, v{b+2*i+1}")
            for i in range(4): a.I(f"v_accvgpr_write_b32 a{AT.A_Q + (qt*4+t)*4 + i}, v{b+i}")
    pt(a, 'qc')
    acc3 = lambda t: vr(128 + t*4, 4); AA3 = 0
    small_gemm_steps("U", acc3, AA3, lambda i, qt: ar(bT3(i) + qt*4, 4), True)
    pt(a, 't3m')
    assert not a.bg
    a.I("s_lshl_b32 s33, s31, 19\ns_mov_b32 s30, s55\ns_mov_b32 s25, s55\ns_mov_b32 s26, s55")
    srd(a, 4, P['k'], 524288, add_lo=33)
    srd(a, 8, P['v'], 524288, add_lo=33)
    AT.FIRST0[0] = True
    AT.V_KD = KD; AT.V_VD = VD; AT.V_L16 = L16; AT.V_T = T
    AT.V_KA = 64; AT.V_VA = 68; AT.V_LS = 76; AT.V_M = 80; AT.V_NEGM = 96
    def selfc(d):
        r = []
        for x in d[1:5]: r += [d[0], "s_nop 0", x]
        return r + [d[5]]
    def kv(lst):
        it = []
        for kind, t in lst: it += selfc(AT.dma_k(a, t) if kind == "k" else AT.dma_v(a, t))
        return it
    a.bg_add(kv((("k", 0), ("k", 1), ("v", 0), ("k", 2))))
    acc_to_lds(acc3)
    reduce_tiles()
    srd(a, 16, P['ws'], SZ_ACT, add_imm=WS_X1)
    a.I(f"""
    s_mul_i32 s47, s62, {18*1024}
    v_add_u32 v{T+2}, s47, v{L16}
    v_mov_b32 v{T+6}, {f32(1.0/CQ):#x}
    """)
    for j in range(5):
        b = RES + j*4; s_ = XL + 2*j; e = BUF + (j%2)*8
        piece_off(j, 35)
        a.I(f"""
        v_lshlrev_b32 v{e}, 16, v{s_}
        v_and_b32 v{e+1}, 0xffff0000, v{s_}
        v_lshlrev_b32 v{e+2}, 16, v{s_+1}
        v_and_b32 v{e+3}, 0xffff0000, v{s_+1}
        v_pk_fma_f32 v[{b}:{b+1}], v[{e}:{e+1}], v[{T+6}:{T+7}], v[{b}:{b+1}] op_sel_hi:[1,0,1]
        v_pk_fma_f32 v[{b+2}:{b+3}], v[{e+2}:{e+3}], v[{T+6}:{T+7}], v[{b+2}:{b+3}] op_sel_hi:[1,0,1]
        v_cvt_pk_bf16_f32 v{e+4}, v{b}, v{b+1}
        v_cvt_pk_bf16_f32 v{e+5}, v{b+2}, v{b+3}
        """)
        a.vm_issue("X1"); a.I(f"buffer_store_dwordx2 v[{e+4}:{e+5}], v{T+2}, s[16:19], s35 offen sc1")
        a.I(f"""
        v_lshlrev_b32 v{b}, 16, v{e+4}
        v_and_b32 v{b+1}, 0xffff0000, v{e+4}
        v_lshlrev_b32 v{b+2}, 16, v{e+5}
        v_and_b32 v{b+3}, 0xffff0000, v{e+5}
        """)
    a.auto = False
    a.I(f"""
    s_cmp_ge_u32 s24, 2
    s_cselect_b32 s92, 0, 1.0
    s_mov_b32 s93, {f32(1/80):#x}
    s_cbranch_scc0 L_five
    s_mov_b32 s93, {f32(1/64):#x}
    v_mov_b32 v{RES+16}, 0
    v_mov_b32 v{RES+17}, 0
    v_mov_b32 v{RES+18}, 0
    v_mov_b32 v{RES+19}, 0
    """)
    a.label("L_five"); a.auto = True
    vals = [RES + e for e in range(20)]
    a.I(f"v_add_f32 v{T+4}, v{vals[0]}, v{vals[1]}")
    for v in vals[2:]: a.I(f"v_add_f32 v{T+4}, v{T+4}, v{v}")
    xlane(a, "v_add_f32", T+4)
    a.I(f"v_mul_f32 v{T+6}, s93, v{T+4}\nv_mul_f32 v{T+7}, s92, v{T+6}\nv_mov_b32 v{T+8}, 0")
    for e, v in enumerate(vals):
        a.I(f"v_sub_f32 v{v}, v{v}, v{T+6 + (1 if e >= 16 else 0)}\nv_fmac_f32 v{T+8}, v{v}, v{v}")
    xlane(a, "v_add_f32", T+8)
    srd(a, 16, P['ws'], 2048*64, add_imm=WS_ST)
    a.I(f"""
    v_mov_b32 v{T+5}, v{T+8}
    s_lshl_b32 s33, s62, 10
    s_lshl_b32 s34, s49, 4
    s_add_u32 s33, s33, s34
    s_lshr_b32 s34, s24, 1
    s_lshl_b32 s34, s34, 3
    s_add_u32 s33, s33, s34
    v_lshlrev_b32 v{T}, 6, v0
    v_cmp_gt_u32 vcc, 16, v0
    v_mov_b32 v{T+1}, {OOB:#x}
    s_nop 0
    v_cndmask_b32 v{T}, v{T+1}, v{T}, vcc
    """)
    a.vm_issue("X1"); a.I(f"buffer_store_dwordx2 v[{T+4}:{T+5}], v{T}, s[16:19], s33 offen sc1")
    pt(a, 't3')
    KA, VA, LS, NEGM = AT.V_KA, AT.V_VA, AT.V_LS, AT.V_NEGM
    a.I(f"""
    v_lshrrev_b32 v{T}, 4, v0
    v_and_b32 v{T+1}, 15, v0
    v_xor_b32 v{T+2}, v{T+1}, v{T}
    v_lshlrev_b32 v{T+2}, 4, v{T+2}
    v_lshl_add_u32 v{KA}, v{T+1}, 8, v{T+2}
    v_xor_b32 v{KA+1}, 64, v{KA}
    v_xor_b32 v{KA+2}, 0x80, v{KA}
    v_xor_b32 v{KA+3}, 0xc0, v{KA}
    v_lshrrev_b32 v{T}, 2, v0
    v_and_b32 v{T+1}, 7, v{T}
    v_and_b32 v{T+2}, 3, v0
    v_lshlrev_b32 v{T+3}, 8, v{T}
    v_lshl_add_u32 v{T+4}, v{T+1}, 5, v{T+3}
    v_lshl_add_u32 v{T+4}, v{T+2}, 3, v{T+4}
    v_add_u32 v{VA}, {AT.VREG}, v{T+4}
    """)
    for dt in range(1, 8): a.I(f"v_xor_b32 v{VA+dt}, {dt*32}, v{VA}")
    def zero_o():
        for r in range(128): a.I(f"v_accvgpr_write_b32 a{AT.A_O + r}, 0")
        for r in range(16): a.I(f"v_mov_b32 v{AT.V_LSA + r}, 0")
    for r in range(4): a.I(f"v_mov_b32 v{AT.V_ONES + r}, 0x3f803f80")
    W(["K0"]); a.I("s_barrier")
    a.bg_add(kv((("v", 1), ("k", 3), ("v", 2))))
    for x in AT.k_reads(0): a.I(x)
    a.I("s_waitcnt lgkmcnt(0)")
    for x in AT.qk_mfmas(0, False): a.I(x)
    for x in AT.k_reads(1): a.I(x)
    a.force(None); a.auto = False
    PKR = 84; PKT = 80
    a.I(f"s_mov_b32 s90, {(1<<32)//6 + 1}")
    for p in range(3):
        a.I(f"""
        v_add_u32 v{T}, {p*64}, v0
        v_mul_hi_u32 v{T+1}, v{T}, s90
        v_mul_u32_u24 v{T+2}, 6, v{T+1}
        v_sub_u32 v{T+2}, v{T}, v{T+2}
        v_mul_u32_u24 v{T+1}, 1152, v{T+1}
        v_lshl_add_u32 v{PAT+p}, v{T+2}, 4, v{T+1}
        """)
        if p: a.I(f"v_subrev_u32 v{PAT+p}, {p*1024}, v{PAT+p}")
    a.I(f"""
    v_lshrrev_b32 v{T}, 2, v0
    v_mul_u32_u24 v{T}, 96, v{T}
    v_and_b32 v{T+1}, 3, v0
    v_lshl_add_u32 v{PKT}, v{T+1}, 3, v{T}
    s_add_u32 s91, s55, 0x20000
    v_add_u32 v{PKT}, s91, v{PKT}
    s_lshl_b32 s33, s2, 2
    s_add_u32 s33, s33, s24
    s_mul_i32 s63, s33, {SLAB}
    s_add_u32 s92, s33, 64
    s_mul_i32 s92, s92, {32*1152}
    s_add_u32 s92, s92, {3*288}
    s_add_u32 s93, s63, {1024*SLAB}
    s_cmp_ge_u32 s33, 64
    s_cselect_b32 s92, {OOB:#x}, s92
    s_cselect_b32 s93, {OOB:#x}, s93
    s_cmp_lt_u32 s33, 576
    s_cselect_b32 s12, s{P['w4']}, s{P['wo']}
    s_cselect_b32 s13, s{P['w4']+1}, s{P['wo']+1}
    s_mov_b32 s14, {4608*1152:#x}
    s_mov_b32 s34, {(1<<32)//144 + 1:#x}
    s_mov_b32 s35, 144
    s_cbranch_scc1 L_pk0
    s_sub_u32 s33, s33, 576
    s_mov_b32 s14, {4096*1152:#x}
    s_mov_b32 s34, {(1<<32)//128:#x}
    s_mov_b32 s35, 128
    """)
    a.label("L_pk0")
    a.I(f"""
    s_mov_b32 s15, 0x00020000
    s_mul_hi_u32 s34, s33, s34
    s_mul_i32 s35, s34, s35
    s_sub_u32 s33, s33, s35
    s_mul_i32 s33, s33, {32*1152}
    s_mul_i32 s34, s34, 288
    s_add_u32 s94, s33, s34
    s_mov_b32 s95, {OOB:#x}
    """)
    def pk_extra(k, dummy=False):
        if k in (0, 1, 2) and not dummy:
            return {6: ["s_mov_b32 m0, s91", "s_nop 0", ("vm", "PL", f"buffer_load_dwordx4 v{PAT+k}, s[12:15], s94 offen offset:{k*1024} {NT} lds")]}
        if k == 5 and not dummy:
            ex = {52: [lambda: W(["PL"])]}
            for n_ in range(6): ex[53 + 2*n_] = [f"ds_read_b64_tr_b16 {vr(PKR + (n_ >> 1)*4 + (n_ & 1)*2, 2)}, v{PKT} offset:{(n_ & 1)*16*96 + (n_ >> 1)*32}"]
            return ex
        if k in (6, 7):
            so = "s95" if dummy else "s63"
            ex = {}
            for n_ in ((0, 1) if k == 6 else (2,)):
                ex[6 + 12*(n_ & 1)] = [("vm", "PS", f"buffer_store_dwordx4 {vr(PKR + n_*4, 4)}, v{L16}, s[16:19], {so} offen offset:{n_*1024} sc1")]
            return ex
        return None
    PCS = [(0, 1), (2, 3), (4,), (5, 6), (7, 8)]
    PSZ = 10*1024
    GOFF = 64*16*PSZ
    srd(a, 20, P['ws'], 0x2800000, add_imm=WS_PART)
    srd(a, 16, P['ws'], 1088*SLAB, add_imm=WS_PK)
    a.I(f"""
    s_lshl_b32 s44, s52, 2
    s_add_u32 s44, s44, s49
    s_lshl_b32 s44, s44, 2
    s_add_u32 s44, s44, s54
    s_mul_i32 s44, s44, {4*PSZ}
    s_mul_i32 s33, s61, 5120
    s_add_u32 s44, s44, s33
    s_add_u32 s44, s44, {GOFF}
    s_add_u32 s45, s44, 3072
    s_cmp_ge_u32 s24, 2
    s_cselect_b32 s44, s45, s44
    s_add_u32 s45, s44, 2048
    s_cmp_ge_u32 s24, 2
    s_cselect_b32 s45, {OOB:#x}, s45
    """)
    for r in range(4): a.I(f"v_mov_b32 v{PKR+r}, -1")
    def sc_extra(d):
        ex = {}
        for k_ in range(3):
            ex[6 + 8*k_] = [f"s_add_u32 s33, s54, {d}\ns_and_b32 s33, s33, 3\ns_mul_i32 s33, s33, {PSZ}\ns_add_u32 s33, s33, s{44 if k_ < 2 else 45}",
                            ("vm", "SC", f"buffer_store_dwordx4 {vr(PKR, 4)}, v{L16}, s[20:23], s33 offen offset:{(k_%2)*1024} sc1")]
        return ex
    LSA = AT.V_LSA
    def rowmax(u, qt, dst):
        b = AT.sbuf(u) + 8*qt
        a.I(f"v_max3_f32 v{dst}, v{b}, v{b+1}, v{b+2}\nv_max3_f32 v{dst}, v{dst}, v{b+3}, v{b+4}\nv_max3_f32 v{dst}, v{dst}, v{b+5}, v{b+6}\nv_max_f32 v{dst}, v{dst}, v{b+7}")
        xlane(a, "v_max_f32", dst)
    for qt in range(4):
        rowmax(0, qt, T)
        for r in range(4): a.I(f"v_sub_f32 v{NEGM + 4*qt + r}, 0, v{T}")
        for r in range(8): a.I(f"v_sub_f32 v{AT.sbuf(0) + 8*qt + r}, v{AT.sbuf(0) + 8*qt + r}, v{T}")
    a.I("s_nop 1")
    pt(a, 'b0'); AT.body2(a, 0); AT.body2(a, 1); pt(a, 'b2')
    W(["X1"]); a.I("s_barrier\ns_lshr_b32 s33, s48, 3\ns_lshl_b32 s33, s33, 5"); signal(a, 0x100)
    for u in range(2, 8): AT.body2(a, u, extra=sc_extra(u - 1) if (u < 5 and OPT.get("sent", 0)) else pk_extra(u, dummy=True))
    a.vm = [t for t in a.vm if t != "SC"]
    srd(a, 20, P['ws'], 0x1000000, add_imm=WS_O)
    pt(a, 'b8')
    a.I("s_mov_b32 s27, 6")
    if 'cyc' in PTS: a.I("s_memtime s[36:37]\ns_memrealtime s[38:39]")
    a.raw(".p2align 6"); a.label("L_att_loop")
    vb = list(a.vm)
    for u in range(8, 16): AT.body2(a, u, extra=pk_extra(u - 8))
    a.I(f"""
    s_add_u32 s94, s94, 96
    s_add_u32 s63, s63, 3072
    s_cmp_eq_u32 s27, 4
    s_cselect_b32 s94, s92, s94
    s_cselect_b32 s63, s93, s63
    s_cselect_b32 s12, s{P['wo']}, s12
    s_cselect_b32 s13, s{P['wo']+1}, s13
    s_cselect_b32 s14, {4096*1152:#x}, s14
    s_sub_u32 s27, s27, 1
    s_cmp_lg_u32 s27, 0
    s_cbranch_scc1 L_att_loop
    """)
    sh = lambda tag, d: tag if tag[0] == "P" else tag[0] + str(int(tag[1:]) + d)
    assert [sh(t, 4) for t in vb] == a.vm, (vb, a.vm)
    a.vm = [sh(t, 20) for t in a.vm]
    pt(a, 'b56')
    if 'cyc' in PTS: a.I("s_memtime s[40:41]\ns_memrealtime s[100:101]")
    BS4 = [192, 208, 128, 144, 160, 176, 224, 240, 72, 88, 104]; NB4 = 11
    def bset4(i): return BS4[i % NB4]
    STQ = [84, 88, 92, 28]; MU = 40; RS = 44
    def early4():
        it = dma_slab(PATB, 16, 92, 0, lambda o: f"s_add_u32 m0, s93, {o}", "Z0")
        for i in range(2):
            for qt in range(4):
                it += [f"s_add_u32 s3, s94, {qt*18*1024 + i*1024}", ("vm", f"B{i}", f"buffer_load_dwordx4 {ar(bset4(i) + qt*4, 4)}, v{L16}, s[12:15], s3 offen")]
        return it
    def spread(items, gaps):
        groups = []; cur = []
        for x in items:
            cur.append(x)
            if isinstance(x, tuple): groups.append(cur); cur = []
        return groups
    e4 = None
    for u in range(56, 64):
        extra = None
        if u == 61:
            pat_regs(a, PATB, 9216)
            srd(a, 16, P['ws'], 2048*64, add_imm=WS_ST)
            a.I(f"""
            s_lshl_b32 s62, s50, 4
            s_lshl_b32 s34, s24, 2
            s_add_u32 s62, s62, s34
            s_mul_i32 s94, s62, {18*1024}
            s_lshl_b32 s91, s62, 10
            s_mul_i32 s92, s24, {32*9216}
            s_mul_i32 s93, s24, {SLAB}
            v_and_b32 v{T+15}, 15, v0
            v_lshlrev_b32 v{T+15}, 6, v{T+15}
            v_and_b32 v{T+9}, 0x30, v0
            v_add_u32 v{T+15}, v{T+15}, v{T+9}
            s_mul_i32 s33, s51, 288
            """)
            for qt in range(4):
                a.vm_issue("ST"); a.I(f"buffer_load_dwordx4 {vr(STQ[qt], 4)}, v{T+15}, s[16:19], s91 offen offset:{qt*1024}")
            srd(a, 16, P['w3'], 0, add_lo=33)
            a.I(f"s_sub_u32 s18, {576*9216}, s33")
            e4 = spread(early4(), None)
        if u == 62: extra = {g: e4[k_] for k_, g in enumerate((34, 38, 42, 45, 48, 52, 56, 60, 65))}
        if u == 63: extra = {g: e4[9 + k_] for k_, g in enumerate((2, 8, 14, 20, 26, 34, 42, 50))}
        if u == 56:
            poll_issue(a, "P3", "s_lshl_b32 s33, s50, 3\nv_cmp_eq_u32 vcc, s33, v0\ns_nop 1"); a.force({"P3"})
        if u == 57:
            a.auto = False
            srd(a, 56, P['w3'], 576*9216)
            a.I(f"s_mul_i32 s35, s0, 81\ns_and_b32 s34, s2, 6\ns_mul_i32 s34, s34, 1152\ns_mov_b32 s33, {(1<<32)//18 + 1}")
            for i in range(2):
                a.I(f"""
                v_min_u32 v{T}, {80 - 64*i if i else 63}, v0
                v_add_u32 v{T}, s35, v{T}
                v_add_u32 v{T}, {64*i}, v{T}
                v_mul_hi_u32 v{T+1}, v{T}, s33
                v_mul_u32_u24 v{T+2}, 18, v{T+1}
                v_sub_u32 v{T}, v{T}, v{T+2}
                v_lshlrev_b32 v{T}, 7, v{T}
                v_mul_u32_u24 v{T+1}, 9216, v{T+1}
                v_add_u32 v{T}, v{T}, v{T+1}
                """)
                touch(a, 56, 34, 1, addr=T)
            srd(a, 56, P['dbg'], 256)
        if u == 58: poll_check(a, "P3", 8, 32)
        if u == 59:
            a.auto = False
            srd(a, 12, P['ws'], SZ_ACT, add_imm=WS_X1)
            a.I(f"s_and_b32 s35, s0, 31\ns_mul_i32 s35, s35, 9216\ns_mul_i32 s34, s50, {16*18*1024}\ns_add_u32 s35, s35, s34")
            touch(a, 12, 35, 2)
        AT.body2(a, u, extra=extra)
    a.I(AT.sm_cvt(63, 14)); a.I(AT.sm_cvt(63, 15))
    for x in AT.v_reads(63): a.I(x)
    a.I(f"""
    s_mul_i32 s30, s24, {SLAB}
    v_subrev_u32 v{TRA}, s30, v{TRA}
    v_add_u32 v{TRB}, 64512, v{TRA}
    v_add_u32 v{TRC}, 129024, v{TRA}
    s_waitcnt lgkmcnt(0)
    """)
    for qt in range(4): a.I(mf(vr(LSA + 4*qt, 4), vr(AT.V_ONES, 4), vr(AT.sbuf(63) + qt*8, 4), vr(LSA + 4*qt, 4)))
    for x in AT.pv_mfmas(63): a.I(x)
    W(["ST"])
    a.I(f"s_mov_b32 s78, {f32(1/576):#x}\ns_mov_b32 s79, {f32(1/80):#x}\ns_mov_b32 s82, {f32(1/64):#x}\ns_mov_b32 s83, {f32(80.0):#x}\ns_mov_b32 s63, {f32(64.0):#x}\ns_mov_b32 s91, {f32(EPS):#x}")
    for qt in range(4):
        b = STQ[qt]
        a.I(f"v_add_f32 v{T}, v{b}, v{b+2}")
        xlane(a, "v_add_f32", T)
        a.I(f"""
        v_mul_f32 v{T}, s78, v{T}
        v_add_f32 v{T+2}, v{b+1}, v{b+3}
        v_fma_f32 v{T+4}, v{b}, s79, -v{T}
        v_mul_f32 v{T+5}, s83, v{T+4}
        v_fmac_f32 v{T+2}, v{T+5}, v{T+4}
        v_fma_f32 v{T+4}, v{b+2}, s82, -v{T}
        v_mul_f32 v{T+5}, s63, v{T+4}
        v_fmac_f32 v{T+2}, v{T+5}, v{T+4}
        v_sub_f32 v{MU+qt}, 0, v{T}
        """)
        xlane(a, "v_add_f32", T+2)
        a.I(f"v_mov_b32 v{T+4}, s91\nv_fmac_f32 v{T+4}, s78, v{T+2}\nv_rsq_f32 v{RS+qt}, v{T+4}")
    a.I(f"""
    s_mov_b32 s33, {AT.THR:#x}
    v_cmp_nle_f32 vcc, v{LSA}, s33
    v_cmp_nle_f32 s[34:35], v{LSA+4}, s33
    v_cmp_nle_f32 s[44:45], v{LSA+8}, s33
    v_cmp_nle_f32 s[60:61], v{LSA+12}, s33
    s_nop 1
    s_or_b64 vcc, vcc, s[34:35]
    s_or_b64 s[44:45], s[44:45], s[60:61]
    s_or_b64 vcc, vcc, s[44:45]
    s_cmp_lg_u64 vcc, 0
    s_cselect_b32 s33, 1, {OPT.get('fb', 0)}
    v_mov_b32 v{T}, s33
    v_lshlrev_b32 v{T+1}, 2, v0
    v_add_u32 v{T+1}, {QS}, v{T+1}
    s_lshl_b32 s34, s24, 8
    v_add_u32 v{T+5}, s34, v{T+1}
    ds_write_b32 v{T+5}, v{T}
    s_waitcnt lgkmcnt(0)
    s_barrier
    ds_read_b32 v{T}, v{T+1}
    ds_read_b32 v{T+2}, v{T+1} offset:256
    ds_read_b32 v{T+3}, v{T+1} offset:512
    ds_read_b32 v{T+4}, v{T+1} offset:768
    s_waitcnt lgkmcnt(0)
    v_or3_b32 v{T}, v{T}, v{T+2}, v{T+3}
    v_or_b32 v{T}, v{T}, v{T+4}
    s_nop 0
    v_readfirstlane_b32 s33, v{T}
    s_nop 3
    s_cmp_lg_u32 s33, 0
    s_cbranch_scc1 L_fallback
    """)
    a.label("L_att_epi"); pt(a, 'attl')
    a.I("s_mul_i32 s33, s51, 288")
    srd(a, 4, P['w3'], 0, add_lo=33)
    srd(a, 8, P['ws'], SZ_ACT, add_imm=WS_X1)
    a.I(f"""
    s_sub_u32 s6, {576*9216}, s33
    s_mul_i32 s25, s24, {32*9216}
    s_sub_u32 s47, s30, {SLAB}
    s_cmp_eq_u32 s24, 0
    s_cselect_b32 s47, {16*SLAB}, s47
    s_mul_i32 s26, s62, {18*1024}
    """)
    def loadW4(j):
        if j < 4: return dma_slab(PATB, 4, 25, j*128*9216, lambda o: f"s_add_u32 m0, s30, {j*4*SLAB + o}", f"Z{j}")
        return dma_slab(PATB, 4, 25, j*128*9216, lambda o: f"s_add_u32 m0, s47, {o}", f"Z{j}")
    def loadB4(i):
        r = []
        for qt in range(4):
            r.append(f"s_add_u32 s3, s26, {qt*18*1024 + i*1024}")
            r.append(("vm", f"B{i}", f"buffer_load_dwordx4 {ar(bset4(i) + qt*4, 4)}, v{L16}, s[8:11], s3 offen"))
        return r
    for qt in range(4): a.I(f"v_rcp_f32 v{T+10+qt}, v{LSA+4*qt}")
    a.pace = OPT["pace"]; a.auto = True
    a.bg_add(loadW4(1) + loadB4(2) + loadB4(3) + loadW4(2) + loadB4(4) + loadB4(5) + loadW4(3) + loadB4(6) + loadB4(7))
    a.I(f"s_lshl_b32 s33, s46, 17\ns_lshl_b32 s34, s31, 12\ns_add_u32 s63, s33, s34")
    tb = 128
    for qt in range(4):
        for t in range(4):
            src = AT.A_O + (qt*4+t)*8
            tt = tb; tb += 8
            for i in range(8): a.I(f"v_accvgpr_read_b32 v{tt+i}, a{src+i}")
            for i in range(0, 8, 2): a.I(f"v_pk_mul_f32 v[{tt+i}:{tt+i+1}], v[{tt+i}:{tt+i+1}], v[{T+10+(qt&2)}:{T+11+(qt&2)}] op_sel:[0,{qt&1}] op_sel_hi:[1,{qt&1}]")
            for i in range(4): a.I(f"v_cvt_pk_bf16_f32 v{tt+i}, v{tt+2*i}, v{tt+2*i+1}")
            a.vm_issue("O"); a.I(f"buffer_store_dwordx4 {vr(tt,4)}, v{L16}, s[20:23], s63 offen offset:{t*1024} sc1")
        if qt < 3: a.I("s_add_u32 s63, s63, 0x20000")
    pt(a, 'att')
    a.bg_add(loadB4(8) + loadB4(9) + loadB4(10))
    ONE4 = 72; CS = 76; ACC4 = 112; A4 = 0
    for r in range(4): a.I(f"v_mov_b32 v{ONE4+r}, 0x3f803f80")
    def slot4(i): return (i if i < 17 else 0) * SLAB
    COS = OPT.get("cos", 1); COC = OPT.get("coc", 10)
    srd(a, 16, P['ws'], 1088*SLAB, add_imm=WS_PK)
    a.I(f"""
    s_mul_i32 s78, s49, 144
    s_mul_i32 s33, s54, 36
    s_add_u32 s78, s78, s33
    s_add_u32 s78, s78, s24
    s_mul_i32 s78, s78, {SLAB}
    s_lshl_b32 s79, s49, 7
    s_lshl_b32 s33, s54, 5
    s_add_u32 s79, s79, s33
    s_add_u32 s79, s79, s24
    s_mul_i32 s79, s79, {SLAB}
    s_add_u32 s79, s79, {PK_WO}
    s_lshl_b32 s44, s52, 3
    s_lshl_b32 s34, s24, 1
    s_add_u32 s44, s44, s34
    s_lshl_b32 s27, s44, 17
    s_lshl_b32 s33, s54, 15
    s_add_u32 s27, s27, s33
    s_mul_i32 s28, s44, {144*1024}
    s_mul_i32 s33, s54, {36*1024}
    s_add_u32 s28, s28, s33
    v_add_u32 v{XA}, {128*1024}, v{L16}
    """)
    NS = 68; ACC5 = 184; A5 = 0; NB5 = 13; B5 = 72
    def slot5(i): return ((i + 4) % 16) * SLAB
    a.I("s_and_b32 s77, s52, 7\ns_lshl_b32 s33, s49, 1\ns_add_u32 s77, s77, s33")
    if not OPT.get("rot5", 0): a.I("s_mov_b32 s77, 0")
    def rotg(j, dst):
        n, g = (8, j) if j < 8 else (9, j - 8)
        a.I(f"s_add_u32 s{dst}, s77, {g}")
        if n == 8: a.I(f"s_and_b32 s{dst}, s{dst}, 7")
        else:
            for _ in range(2): a.I(f"s_sub_u32 s33, s{dst}, 9\ns_cmp_ge_u32 s{dst}, 9\ns_cselect_b32 s{dst}, s33, s{dst}")
    GA = [66, 67, 68, 69]; GB = [70, 71, 72, 73, 76]
    def loadW5(j):
        d = GA[j % 4]
        for g in a.bg:
            for x in g: assert f"s{d}," not in str(x)
        rotg(j, d); a.I(f"s_mul_i32 s{d}, s{d}, {4*SLAB}\ns_add_u32 s{d}, s{d}, s{79 if j < 8 else 78}")
        r = []
        for p in range(9):
            if p % 4 == 0: r += [f"s_add_u32 m0, s30, {((j + 1) % 4)*4*SLAB + p*1024}", f"s_add_u32 s83, s{d}, {p*1024}"]
            r.append(("vm", f"Y{j}", f"buffer_load_dwordx4 v{L16}, {'s[16:19]' if j < 3 else 's[4:7]'}, s83 offen offset:{(p%4)*1024} lds"))
        return r
    B5S = [72 + 8*k_ for k_ in range(7)] + [192, 200, 208, 216, 128, 136]
    def b5(i): return B5S[i % NB5]
    def loadB5(i):
        r = []
        d = GB[(i // 4) % 5]
        if i % 4 == 0:
            for g in a.bg:
                for x in g: assert f"s{d}," not in str(x) and f"s{d} " not in str(x)
            rotg(i // 4, d); a.I(f"s_lshl_b32 s{d}, s{d}, 12\ns_add_u32 s{d}, s{d}, s{27 if i < 32 else 28}")
        sr = "s[20:23]" if i < NB5 else "s[8:11]" if i < 32 else "s[12:15]"
        r.append(("vm", f"C{i}", f"buffer_load_dwordx4 {ar(b5(i), 4)}, v{L16}, {sr}, s{d} offen offset:{(i%4)*1024}"))
        r.append(("vm", f"C{i}", f"buffer_load_dwordx4 {ar(b5(i) + 4, 4)}, v{XA if i < 32 else T+14}, {sr}, s{d} offen offset:{(i%4)*1024}"))
        return r
    pt(a, 't4a'); W(["Z0"]); a.I("s_barrier"); pt(a, 't4b')
    for x in a_reads(A4, 0): a.I(x)
    for i in range(18):
        a.C(f"T4 step {i}"); pt(a, f"f{i}")
        if i % 4 == 3:
            W([f"Z{(i+1)//4}", f"B{i}"], " lgkmcnt(0)"); a.I("s_barrier")
            if i == 3: a.bg_add(loadW4(4))
        elif i == COS:
            W([f"B{i}", "O", "PS"], " lgkmcnt(0)"); a.I("s_barrier")
            a.I("s_lshl_b32 s33, s32, 5"); signal(a, 0x1000000)
        else:
            W([f"B{i}"], " lgkmcnt(0)")
        if i == COC - 2: poll_issue(a, "P5", f"v_and_b32 v{T+2}, 7, v0\nv_cmp_eq_u32 vcc, 0, v{T+2}\ns_nop 1")
        if i == COC:
            pt(a, 'coa'); poll_check(a, "P5", 24, 32); pt(a, 'cob')
        if i == 11:
            assert COC == 10
            it = loadW5(0)
            for k_ in range(4): it += loadB5(k_)
            it += loadW5(1)
            for k_ in range(4, 7): it += loadB5(k_)
            a.bg_add(it)
        if i == 14:
            it = []
            for k_ in range(7, NB5): it += loadB5(k_)
            a.bg_add(it)
        if i == 15: a.bg_add(loadW5(2))
        if i == OPT.get("pf5", 99):
            a.auto = False
            a.I(f"""
            s_lshr_b32 s33, s0, 5
            s_lshl_b32 s33, s33, 7
            s_lshl_b32 s34, s54, 5
            s_add_u32 s33, s33, s34
            s_add_u32 s33, s33, 12
            s_mul_i32 s33, s33, {SLAB}
            s_and_b32 s35, s0, 31
            s_mul_i32 s35, s35, {45*128}
            s_add_u32 s35, s35, s33
            s_add_u32 s35, s35, {PK_WO}
            """)
            touch(a, 16, 35, 1)
            a.I(f"""
            s_and_b32 s33, s52, 8
            s_lshl_b32 s33, s33, 3
            s_lshr_b32 s35, s0, 1
            s_add_u32 s33, s33, s35
            s_lshl_b32 s33, s33, 17
            s_lshl_b32 s34, s54, 15
            s_add_u32 s33, s33, s34
            s_and_b32 s35, s0, 1
            s_mul_i32 s35, s35, {10*1024}
            s_add_u32 s35, s35, s33
            s_add_u32 s35, s35, {13*1024}
            """)
            touch(a, 20, 35, 1)
            a.I(f"s_add_u32 s35, s35, 2048"); touch(a, 20, 35, 1)
            a.auto = True
        rd = a_reads(A4 + 36*((i+1) % 2), slot4(i+1)) if i + 1 < 18 else []
        k = 0
        for ft in range(9):
            for qt in range(4):
                d = vr(ACC4 + (qt*9+ft)*4, 4)
                a.I(mf(d, ar(A4 + 36*(i % 2) + ft*4, 4), ar(bset4(i) + qt*4, 4), d if i else "0"))
                if (ft*4+qt) % 3 != 2 and k < len(rd):
                    a.auto = False; a.I(rd[k]); k += 1; a.auto = True
        a.auto = False
        a.I(f"s_cmp_gt_u32 s24, 1\ns_cbranch_scc1 L_cs{i}_2\ns_cmp_eq_u32 s24, 1\ns_cbranch_scc1 L_cs{i}_1")
        for w in range(4):
            if w: a.label(f"L_cs{i}_{w}")
            if w == 2: a.I(f"s_cmp_eq_u32 s24, 3\ns_cbranch_scc1 L_cs{i}_3")
            for k_, ft in enumerate(range(w, 9, 4)):
                d = vr(CS + k_*4, 4)
                a.I(mf(d, ar(A4 + 36*(i % 2) + ft*4, 4), vr(ONE4, 4), d if i else "0"))
            if w < 3: a.I(f"s_branch L_cs{i}")
        a.label(f"L_cs{i}"); a.auto = True
        if i + NB4 < 18: a.bg_add(loadB4(i + NB4))
    pt(a, 't4m')
    a.I(f"""
    s_nop 7
    s_barrier
    v_lshrrev_b32 v{T+6}, 4, v0
    v_lshlrev_b32 v{T+6}, 4, v{T+6}
    v_add_u32 v{T+6}, {QS}, v{T+6}
    s_lshl_b32 s33, s24, 6
    v_add_u32 v{T+1}, s33, v{T+6}
    """)
    for k_ in range(3): a.I(f"ds_write_b128 v{T+1}, {vr(CS + k_*4, 4)} offset:{k_*256}")
    a.I("s_waitcnt lgkmcnt(0)\ns_barrier")
    a.force(None)
    srd(a, 4, P['ws'], 1088*SLAB, add_imm=WS_PK)
    srd(a, 8, P['ws'], 0x1000000, add_imm=WS_O)
    a.bg_add(loadW5(3))
    a.pace = OPT.get("pacee", OPT["pace"])
    for ft in range(9): a.I(f"ds_read_b128 {vr(CS + ft*4, 4)}, v{T+6} offset:{ft*64}")
    srd(a, 16, P['ws'], 0x1200000, add_imm=WS_H3)
    srd(a, 12, P['ws'], 0x1200000, add_imm=WS_H3)
    a.I(f"s_mov_b32 s92, {f32(C2):#x}\ns_mov_b32 s93, {f32(C2):#x}\nv_mov_b32 v{T+4}, {f32(C1):#x}\nv_mov_b32 v{T+5}, {f32(C1):#x}\ns_waitcnt lgkmcnt(0)")
    a.auto = False
    a.I(f"""
    s_mul_i32 s60, s51, 9
    s_lshr_b32 s33, s60, 1
    s_lshl_b32 s33, s33, 10
    s_mul_i32 s47, s62, {144*1024}
    s_add_u32 s47, s47, s33
    v_add_u32 v{T+10}, 0x1000, v{L16}
    s_bitcmp1_b32 s51, 0
    s_cbranch_scc1 L_t4odd
    """)
    a.auto = True
    import copy
    st0 = (list(a.vm), copy.deepcopy(a.bg), a.cyc, a.last_bg)
    ends = []
    for par in range(2):
        a.vm, a.bg, a.cyc, a.last_bg = list(st0[0]), copy.deepcopy(st0[1]), st0[2], st0[3]
        if par: a.label("L_t4odd")
        for qt in range(4):
            pt(a, f"e{qt}")
            a.I(f"v_mov_b32 v{T+6}, v{MU+qt}\nv_mov_b32 v{T+8}, v{RS+qt}")
            for ft in range(9):
                b = ACC4 + (qt*9+ft)*4; c = CS + ft*4; t = T + 12
                for h in (0, 2):
                    a.I(f"v_pk_fma_f32 v[{b+h}:{b+h+1}], v[{c+h}:{c+h+1}], v[{T+6}:{T+7}], v[{b+h}:{b+h+1}] op_sel_hi:[1,0,1]")
                for h in (0, 2):
                    a.I(f"v_pk_mul_f32 v[{b+h}:{b+h+1}], v[{b+h}:{b+h+1}], v[{T+8}:{T+9}] op_sel_hi:[1,0]")
                gelu4(a, b, t, T + 4, 92)
                gt = ft + par; ks = gt >> 1; half = gt & 1
                ad = f"v{L16 if ks < 4 else T+10}"; off = (ks % 4) * 1024
                if half == 0 and ft < 8:
                    a.I(f"v_cvt_pk_bf16_f32 v{b}, v{b}, v{b+1}\nv_cvt_pk_bf16_f32 v{b+1}, v{b+2}, v{b+3}")
                elif half == 1 and ft > 0:
                    pb = b - 4
                    a.I(f"v_cvt_pk_bf16_f32 v{pb+2}, v{b}, v{b+1}\nv_cvt_pk_bf16_f32 v{pb+3}, v{b+2}, v{b+3}")
                    a.vm_issue("H3"); a.I(f"buffer_store_dwordx4 v[{pb}:{pb+3}], {ad}, s[16:19], s47 offen offset:{off} sc1") if not OPT.get("nost") else None
                else:
                    a.I(f"v_cvt_pk_bf16_f32 v{b}, v{b}, v{b+1}\nv_cvt_pk_bf16_f32 v{b+1}, v{b+2}, v{b+3}")
                    a.vm_issue("H3"); a.I(f"buffer_store_dwordx2 v[{b}:{b+1}], {ad}, s[16:19], s47 offen offset:{off + half*8} sc1") if not OPT.get("nost") else None
            if qt < 3: a.I(f"s_add_u32 s47, s47, {144*1024}")
        pt(a, "e4")
        a.force(None)
        a.vm_issue("H3L"); a.I(f"buffer_load_dword v{PFD}, v{L16}, s[4:7], 0 offen")
        ends.append(list(a.vm))
        if par == 0: a.I("s_branch L_t4done")
    a.label("L_t4done")
    a.vm = [t for t in ends[0] if t != "H3"]
    assert a.vm == [t for t in ends[1] if t != "H3"]
    pt(a, 't4')
    a.pace = OPT["pace5"]
    srd(a, 16, P['ws'], 0x2800000, add_imm=WS_PART)
    srd(a, 20, P['x'], SZ_ACT)
    a.I(f"""
    s_lshl_b32 s47, s52, 2
    s_add_u32 s47, s47, s49
    s_lshl_b32 s93, s47, 2
    s_add_u32 s93, s93, s24
    s_lshl_b32 s93, s93, 2
    s_add_u32 s93, s93, s54
    s_mul_i32 s93, s93, {PSZ}
    s_lshl_b32 s92, s47, 8
    s_cmp_ge_u32 s24, 2
    s_cselect_b32 s34, 5, 0
    s_mul_i32 s60, s49, 9
    s_add_u32 s60, s60, s34
    s_lshl_b32 s44, s52, 3
    s_lshl_b32 s33, s54, 1
    s_add_u32 s44, s44, s33
    s_and_b32 s61, s24, 1
    s_add_u32 s44, s44, s61
    s_mul_i32 s45, s44, {16*1152}
    s_lshl_b32 s34, s60, 5
    s_add_u32 s45, s45, s34
    s_mul_i32 s34, s44, {18*1024}
    v_add_u32 v{T+10}, s34, v{L16}
    s_lshl_b32 s94, s47, 2
    s_add_u32 s94, s94, s54
    s_mul_i32 s94, s94, {4*PSZ}
    s_mul_i32 s33, s61, 5120
    s_add_u32 s94, s94, s33
    s_add_u32 s91, s94, 3072
    s_cmp_ge_u32 s24, 2
    s_cselect_b32 s94, s91, s94
    s_add_u32 s91, s94, 2048
    s_cmp_ge_u32 s24, 2
    s_cselect_b32 s91, {OOB:#x}, s91
    """)
    def flush_global():
        for qt in range(2):
            for k_, tl in enumerate(PCS):
                b = ACC5 + (qt*9 + tl[0])*4
                a.I(f"v_cvt_pk_bf16_f32 v{b}, v{b}, v{b+1}\nv_cvt_pk_bf16_f32 v{b+1}, v{b+2}, v{b+3}")
                if len(tl) == 2: a.I(f"v_cvt_pk_bf16_f32 v{b+2}, v{b+4}, v{b+5}\nv_cvt_pk_bf16_f32 v{b+3}, v{b+6}, v{b+7}")
                p = qt*5 + k_
                a.vm_issue("PT0"); a.I(f"buffer_store_dwordx4 {vr(b, 4)}, v{L16}, s[16:19], s93 offen offset:{(p%4)*1024} sc1")
                if p % 4 == 3: a.I("s_add_u32 s93, s93, 4096")
    XV = 28; X1V = 38
    a.I(f"v_add_u32 v{T+14}, {144*1024}, v{L16}\nv_mov_b32 v{TRA}, v{L16}\nv_add_u32 v{TRB}, 64512, v{L16}\nv_add_u32 v{TRC}, 129024, v{L16}")
    def f_reads(dst, off):
        base = off // 64512; o = off - base * 64512
        return [f"ds_read_b128 {ar(dst + nt*4, 4)}, v{TRA+base} offset:{o + nt*1024}" for nt in range(9)]
    W(["Y0"]); a.I("s_barrier")
    for x in f_reads(A5, slot5(0)): a.I(x)
    for i in range(NS):
        a.C(f"T5 step {i}"); pt(a, f"s{i}a")
        if i % 4 == 3 and i + 1 < NS:
            b = (i + 1) // 4
            need = {f"Y{b}", f"C{i}"}
            if i == 3: need |= {"H3L"}
            if i == 39: need |= {"PT0"}
            W(need, " lgkmcnt(0)"); a.I("s_barrier")
            if i == 3:
                a.I("s_lshl_b32 s33, s50, 5"); signal(a, 0x10000)
            if i == 39:
                srd(a, 56, P['ws'], 0x10000, add_imm=WS_CX)
                a.I("s_mov_b32 s33, s92"); signal(a, 1)
            if b + 3 < 17: a.bg_add(loadW5(b + 3))
        else:
            W([f"C{i}"], " lgkmcnt(0)")
        if i == 5:
            for j in range(5):
                a.vm_issue("XL"); a.I(f"buffer_load_dwordx2 v[{XV+2*j}:{XV+2*j+1}], v{XD}, s[20:23], s45 offen offset:{j*32}")
            srd(a, 20, P['ws'], SZ_ACT, add_imm=WS_X1)
        if i == 6:
            for j in range(5):
                piece_off(j, 35)
                a.vm_issue("XL"); a.I(f"buffer_load_dwordx2 v[{X1V+2*j}:{X1V+2*j+1}], v{T+10}, s[20:23], s35 offen")
        if i == 8:
            a.I(f"""
            s_lshr_b32 s33, s0, 5
            s_mul_i32 s33, s33, 144
            s_mul_i32 s34, s54, 36
            s_add_u32 s33, s33, s34
            s_mul_i32 s33, s33, {SLAB}
            s_and_b32 s35, s0, 31
            s_mul_i32 s35, s35, {81*128}
            s_add_u32 s35, s35, s33
            """)
            touch(a, 4, 35, 2)
        if i == 15: poll_issue(a, "P4", "s_lshr_b32 s33, s52, 1\ns_lshl_b32 s33, s33, 3\nv_cmp_eq_u32 vcc, s33, v0\ns_nop 1")
        if i == 18:
            pt(a, 'c4a'); poll_check(a, "P4", 16, 32); pt(a, 'c4b')
        if i == 19 and OPT.get("pfh3", 0):
            a.I(f"""
            s_and_b32 s35, s0, 15
            s_lshr_b32 s33, s35, 1
            s_lshl_b32 s34, s52, 3
            s_add_u32 s33, s33, s34
            s_mul_i32 s33, s33, {144*1024}
            s_mul_i32 s34, s54, {36*1024}
            s_add_u32 s33, s33, s34
            s_and_b32 s35, s35, 1
            s_mul_i32 s35, s35, 18432
            s_add_u32 s35, s35, s33
            """)
            touch(a, 12, 35, 3)
        if i == 51: poll_issue(a, "P6", "v_cmp_eq_u32 vcc, 0, v0\ns_nop 1", 56, "s92")
        if i == 54: poll_check(a, "P6", 0, 4, 56, "s92")
        if i == 55:
            it = []
            for src in range(4):
                for k_ in range(3):
                    it.append(f"s_add_u32 s82, s{94 if k_ < 2 else 91}, {src*PSZ}")
                    it.append(("vm", "HP", f"buffer_load_dwordx4 {vr(128 + (src*3+k_)*4, 4)}, v{L16}, s[16:19], s82 offen offset:{(k_%2)*1024}"))
            a.bg_add(it)
        rd = f_reads(A5 + 36*((i+1) % 2), slot5(i+1)) if i + 1 < NS else []
        first = i in (0, 32)
        k = 0
        for nt in range(9):
            for qt in range(2):
                d = vr(ACC5 + (qt*9+nt)*4, 4)
                if qt == 0 and k < len(rd) and nt < 7: a.auto = False
                a.I(mf(d, ar(A5 + 36*(i % 2) + nt*4, 4), ar(b5(i) + qt*4, 4), "0" if first else d))
                if (qt == 0 or nt < 2) and k < len(rd):
                    a.auto = False; a.I(rd[k]); k += 1
                a.auto = True
        assert not (i + NB5 >= 32 and i < 19)
        if i + NB5 < NS: a.bg_add(loadB5(i + NB5), front=True)
        if i == 31:
            a.auto = False
            a.I("s_nop 7")
            flush_global()
            a.I(f"s_add_u32 s93, s93, {GOFF - 8192}\ns_nop 0"); a.auto = True
    a.force(None); a.auto = False
    pt(a, 't5')
    a.I("s_nop 7\ns_barrier\ns_cmp_eq_u32 s24, s54\ns_cbranch_scc1 L_own")
    flush_global()
    a.I("s_waitcnt vmcnt(10)\ns_branch L_own_done")
    a.label("L_own")
    for t in range(18): a.I(f"ds_write_b128 v{L16}, {vr(ACC5 + t*4, 4)} offset:{t*1024}")
    a.I("s_waitcnt vmcnt(0)")
    a.label("L_own_done")
    SV = 64; XF = 84; X1F = 104
    def add_pieces(dst, base, nsrc, first):
        for j in range(5):
            for s_ in range(nsrc):
                p = base + (s_*3 + j//2)*4 + (j % 2)*2; d = dst + j*4; e = T + 2*((j*nsrc + s_) % 2)*2
                if first and s_ == 0:
                    a.I(f"v_lshlrev_b32 v{d}, 16, v{p}\nv_and_b32 v{d+1}, 0xffff0000, v{p}\nv_lshlrev_b32 v{d+2}, 16, v{p+1}\nv_and_b32 v{d+3}, 0xffff0000, v{p+1}")
                else:
                    a.I(f"v_lshlrev_b32 v{e}, 16, v{p}\nv_and_b32 v{e+1}, 0xffff0000, v{p}\nv_lshlrev_b32 v{e+2}, 16, v{p+1}\nv_and_b32 v{e+3}, 0xffff0000, v{p+1}")
                    a.I(f"v_pk_add_f32 v[{d}:{d+1}], v[{d}:{d+1}], v[{e}:{e+1}]\nv_pk_add_f32 v[{d+2}:{d+3}], v[{d+2}:{d+3}], v[{e+2}:{e+3}]")
    add_pieces(SV, 128, 4, True)
    for j in range(5):
        for (src, dst) in ((XV + 2*j, XF + 4*j), (X1V + 2*j, X1F + 4*j)):
            a.I(f"v_lshlrev_b32 v{dst}, 16, v{src}\nv_and_b32 v{dst+1}, 0xffff0000, v{src}\nv_lshlrev_b32 v{dst+2}, 16, v{src+1}\nv_and_b32 v{dst+3}, 0xffff0000, v{src+1}")
    srd(a, 20, P['out'], SZ_ACT)
    PR = 128
    a.I(f"""
    s_mov_b32 s63, {f32(-1.4426950408889634):#x}
    v_add_u32 v{T+8}, s53, v{L16}
    s_waitcnt {"" if OPT.get("sent", 0) else "vmcnt(0) "}lgkmcnt(0)
    s_barrier
    s_mov_b32 s27, 20000
    """)
    pt(a, 'pst')
    if not OPT.get("sent", 0):
        a.I(f"""
        v_mov_b32 v{T}, 0
        s_cmp_lg_u32 s24, 0
        s_cbranch_scc1 L_cx_wait
        v_mov_b32 v{T+1}, 0x100
        s_mov_b64 exec, 1
        buffer_atomic_add v{T+1}, v{T}, s[56:59], s92 offen
        s_mov_b64 exec, -1
        s_mov_b32 s35, 400000
        """)
        a.label("L_cx_poll")
        a.I(f"""
        buffer_load_dword v{T+1}, v{T}, s[56:59], s92 offen sc1
        s_waitcnt vmcnt(0)
        v_readfirstlane_b32 s34, v{T+1}
        s_cmp_ge_u32 s34, 0x400
        s_cbranch_scc1 L_cx_wait
        s_sleep 1
        s_sub_u32 s35, s35, 1
        s_cmp_lg_u32 s35, 0
        s_cbranch_scc1 L_cx_poll
        """)
        a.label("L_cx_wait")
        a.I("s_barrier\ns_mov_b32 s27, 1")
    for j in range(5): a.I(f"ds_read_b128 {vr(192 + j*4, 4)}, v{T+8} offset:{j*1024}")
    for d in range(1, 4):
        a.I(f"s_add_u32 s33, s54, {d}\ns_and_b32 s33, s33, 3\ns_mul_i32 s33, s33, {PSZ}\ns_add_u32 s33, s33, {GOFF}\ns_add_u32 s{64+2*d}, s33, s94\ns_add_u32 s{65+2*d}, s33, s91")
    a.I("s_waitcnt lgkmcnt(0)")
    for j in range(5):
        b = 192 + j*4
        for h in (0, 2): a.I(f"v_pk_add_f32 v[{X1F+4*j+h}:{X1F+4*j+h+1}], v[{X1F+4*j+h}:{X1F+4*j+h+1}], v[{b+h}:{b+h+1}]")
    a.label("L_fin_poll")
    for d in range(1, 4):
        for k_ in range(3):
            a.I(f"buffer_load_dwordx4 {vr(PR + ((d-1)*3+k_)*4, 4)}, v{L16}, s[16:19], s{64+2*d if k_ < 2 else 65+2*d} offen offset:{(k_%2)*1024} sc1")
    regs = [PR + (dd*3+k_)*4 + r for dd in range(3) for k_ in range(3) for r in range(4 if k_ < 2 else 2)]
    a.I(f"s_waitcnt vmcnt(0)\nv_max3_u32 v{T}, v{regs[0]}, v{regs[1]}, v{regs[2]}")
    for k_ in range(3, len(regs) - 1, 2): a.I(f"v_max3_u32 v{T}, v{T}, v{regs[k_]}, v{regs[k_+1]}")
    a.I(f"""
    v_max_u32 v{T}, v{T}, v{regs[-1]}
    v_cmp_eq_u32 vcc, -1, v{T}
    s_sub_u32 s27, s27, 1
    s_cbranch_vccz L_fin_ok
    s_cmp_lg_u32 s27, 0
    s_cbranch_scc1 L_fin_poll
    """)
    a.label("L_fin_ok"); pt(a, 'cx')
    add_pieces(X1F, PR, 3, False)
    for j in range(5):
        b = 192 + j*4; e = XF + j*4; g = SV + j*4; y = X1F + 4*j
        for r in range(4): a.I(f"v_mul_f32 v{b+r}, s63, v{y+r}")
        for r in range(4): a.I(f"v_exp_f32 v{b+r}, v{b+r}")
        for h in (0, 2): a.I(f"v_pk_mul_f32 v[{y+h}:{y+h+1}], v[{y+h}:{y+h+1}], v[{g+h}:{g+h+1}]")
        for r in range(4): a.I(f"v_add_f32 v{b+r}, 1.0, v{b+r}")
        for r in range(4): a.I(f"v_rcp_f32 v{b+r}, v{b+r}")
        a.I("s_nop 0")
        for h in (0, 2): a.I(f"v_pk_fma_f32 v[{e+h}:{e+h+1}], v[{y+h}:{y+h+1}], v[{b+h}:{b+h+1}], v[{e+h}:{e+h+1}]")
        a.I(f"v_cvt_pk_bf16_f32 v{b}, v{e}, v{e+1}\nv_cvt_pk_bf16_f32 v{b+1}, v{e+2}, v{e+3}")
        if j == 4: a.I(f"s_cmp_ge_u32 s24, 2\ns_cselect_b32 s45, {OOB:#x}, s45")
        a.I(f"buffer_store_dwordx2 v[{b}:{b+1}], v{XD}, s[20:23], s45 offen offset:{j*32} {('sc1', 'nt', '')[OPT.get('outst', 2)]}")
    if OPT.get("dbgst"):
        a.I("s_waitcnt vmcnt(0)\ns_memrealtime s[64:65]\ns_waitcnt lgkmcnt(0)")
        srd(a, 4, P['dbg'], 256)
        a.I(f"s_xor_b32 s33, s2, {OPT['dbgst'] - 1}\ns_or_b32 s33, s33, s24\ns_cmp_eq_u32 s33, 0\ns_cselect_b32 s33, 0, {OOB:#x}\nv_mov_b32 v1, 0")
        for j, r in zip((2, 3, 4, 5, 6, 7), MIDS + [64]):
            a.I(f"s_sub_u32 s34, s{r}, s96\nv_mov_b32 v2, s34\nbuffer_store_dword v2, v1, s[4:7], s33 offen offset:{4*j}")
    else: g_end(a, 1, wsreg=P['ws'])
    a.label("L_exit")
    a.I("s_endpgm")
    a.label("L_fallback")
    a.I("s_waitcnt vmcnt(0)")
    zero_o()
    M = AT.V_M
    AT.V_LS = LS = 84
    for qt in range(4): a.I(f"v_mov_b32 v{M+qt}, 0xff800000\nv_mov_b32 v{LS+qt}, 0")
    a.I("s_mov_b32 s30, s55\ns_mov_b32 s25, s30\ns_mov_b32 s26, s30\ns_mov_b32 s27, 64")
    a.label("L_fb_loop")
    a.I("s_bitcmp1_b32 s27, 0\ns_cbranch_scc1 L_fb_odd\ns_barrier")
    for x in AT.dma_k(a, 0) + AT.dma_v(a, 0): a.I(x[2] if isinstance(x, tuple) else x + "\ns_nop 0")
    a.I("s_waitcnt vmcnt(0)\ns_barrier")
    a.label("L_fb_odd")
    for x in AT.k_reads(0): a.I(x)
    a.I("s_waitcnt lgkmcnt(0)")
    for x in AT.v_reads(0): a.I(x)
    a.I("s_waitcnt lgkmcnt(0)")
    for r in range(12): a.I(f"v_xor_b32 v{KA+r}, 0x2000, v{KA+r}")
    for x in AT.qk_mfmas(0, False): a.I(x)
    a.I("s_nop 7\ns_nop 7")
    for qt in range(4):
        rowmax(0, qt, T)
        a.I(f"v_max_f32 v{T}, v{T}, v{M+qt}\nv_sub_f32 v{T+2}, v{M+qt}, v{T}\nv_exp_f32 v{T+2}, v{T+2}\nv_mov_b32 v{M+qt}, v{T}\nv_mul_f32 v{LS+qt}, v{LS+qt}, v{T+2}")
        for r in range(0, 32, 4):
            o = AT.A_O + qt*32 + r
            for i in range(4): a.I(f"v_accvgpr_read_b32 v{T+4+i}, a{o+i}")
            for i in range(4): a.I(f"v_mul_f32 v{T+4+i}, v{T+4+i}, v{T+2}")
            for i in range(4): a.I(f"v_accvgpr_write_b32 a{o+i}, v{T+4+i}")
        for r in range(8):
            e = 8*qt + r
            a.I(f"v_sub_f32 v{AT.sbuf(0)+e}, v{AT.sbuf(0)+e}, v{T}"); a.I(AT.sm_exp(0, e))
        a.I("s_nop 0")
        for r in range(8): a.I(AT.sm_add(0, 8*qt + r))
        for p in range(4): a.I(AT.sm_cvt(0, 4*qt + p))
    a.I("s_nop 1")
    for x in AT.pv_mfmas(0): a.I(x)
    a.I("s_nop 7\ns_nop 7")
    a.I("s_sub_u32 s27, s27, 1\ns_cmp_lg_u32 s27, 0\ns_cbranch_scc1 L_fb_loop")
    for qt in range(4):
        a.I(f"v_mov_b32 v{T}, v{LS+qt}"); xlane(a, "v_add_f32", T); a.I(f"v_mov_b32 v{LSA+4*qt}, v{T}")
    a.I(f"s_mul_i32 s30, s24, {SLAB}\ns_barrier")
    for x in early4(): a.I(x[2] if isinstance(x, tuple) else x)
    a.I("s_waitcnt vmcnt(0)\ns_branch L_att_epi")
    a.label("L_code_end")
    return a

def build(path):
    a = gen()
    hdr = open("recurrent_scan__mha_block_cached__mixer_s_mlp__prompt.s.ref").read().split("; Override launch")[0]
    hdr += "; @launch grid=(256,1,1) block=(256,1,1) lds=163840\n"
    hdr += '.amdgcn_target "amdgcn-amd-amdhsa--gfx950"\n'
    txt = "\n".join(l[4:] if l.startswith("    ") else l for l in a.L) + "\n"
    open(path, "w").write(hdr + txt + kernel_desc(NAME, 512, 256))
if __name__ == "__main__":
    GSTAMP[0] = "stamp" in sys.argv
    MIDS[:] = [36, 38, 40, 100, 98]; ENDR[0] = 64
    for x in sys.argv:
        if x.startswith("pts="): PTS[:] = x[4:].split(",")
        elif x.startswith("ntt="): NTT.update(x[4:].split(","))
        elif "=" in x: k, v = x.split("="); OPT[k] = int(v)
    build(sys.argv[1])
```

```python
import sys; sys.path.insert(0, "dev")
from gen_common import *
from gen_gemm import f32, mf, SLAB, EPS, C1, C2, xlane, gelu4, emit
import gen_attn16 as AT

WS_ST1 = 0x0950000
WS_PK  = 0x4000000
PK_WO  = 4 * 144 * SLAB
WS_PART = 0x5000000
WS_CX  = 0x7800000
CQ = 1.4426950408889634 / 128 ** 0.5
NAME = "recurrent_scan__mha_block_cached__mixer_s_mlp__prompt_kernel"
P = dict(x=64, k=66, v=68, wq=70, wo=72, w1=76, w2=78, w3=80, w4=82, out=84, dbg=86, ws=88)
PAT = 1; PFD = 10; L16 = 11; T = 12; ST1 = 28
KD = 32; VD = 36; WD = 38; WA = 40; XA = 48; TRA = 49; TRB = 50; TRC = 51; PATB = 52; PCNT = 61; XD = 63
OOB = 0x7fff0000
PTS = []
OPT = dict(pace=72, pace5=50)
def pt(a, name):
    if name in PTS: g_mid(a, PTS.index(name))
    if "CA:" + name in PTS: a.I("s_memtime s[36:37]\ns_memrealtime s[38:39]")
    if "CB:" + name in PTS: a.I("s_memtime s[40:41]\ns_memrealtime s[100:101]")

def pat_regs(a, dst, pitch):
    a.I(f"s_mov_b32 s90, {(1<<32)//18 + 1}\ns_mov_b32 s91, {pitch}")
    for p in range(9):
        a.I(f"""
        v_add_u32 v{T}, {p*64}, v0
        v_mul_hi_u32 v{T+1}, v{T}, s90
        v_mul_u32_u24 v{T+2}, 18, v{T+1}
        v_sub_u32 v{T+2}, v{T}, v{T+2}
        v_mul_lo_u32 v{T+1}, v{T+1}, s91
        v_lshl_add_u32 v{dst+p}, v{T+2}, 4, v{T+1}
        """)
        if p % 4: a.I(f"v_subrev_u32 v{dst+p}, {(p%4)*1024}, v{dst+p}")

def dma_slab(pat, srdW, s_soff, goff, m0expr, tag):
    r = []
    for p in range(9):
        r.append(m0expr((p // 4) * 4096))
        r.append(f"s_add_u32 s3, s{s_soff}, {goff + (0 if pat is not None else (p // 4) * 4096)}")
        r.append(("vm", tag, f"buffer_load_dwordx4 v{pat+p if pat is not None else L16}, s[{srdW}:{srdW+3}], s3 offen offset:{(p%4)*1024} lds"))
    return r

def a_reads(dst, off):
    base = off // 64512; o = off - base * 64512
    assert o + 16*288 + 256 < 65536, off
    return [f"ds_read_b64_tr_b16 {ar(dst + nt*4 + 2*m, 2)}, v{TRA+base} offset:{o + m*16*288 + nt*32}" for nt in range(9) for m in range(2)]

_lbl = [0]
def signal(a, inc, srd_=56):
    _lbl[0] += 1; l = f"L_sig{_lbl[0]}"
    au = a.auto; a.auto = False
    a.I(f"""
    s_cmp_lg_u32 s24, 0
    s_cbranch_scc1 {l}
    v_mov_b32 v{T}, 0
    v_mov_b32 v{T+1}, {inc:#x}
    s_mov_b64 exec, 1
    buffer_atomic_add v{T+1}, v{T}, s[{srd_}:{srd_+3}], s33 offen
    s_mov_b64 exec, -1
    """)
    a.label(l); a.auto = au

def poll_issue(a, tag, mask_code, srd_=56, soff="0", front=True):
    au = a.auto; a.auto = False
    a.I(mask_code)
    a.I(f"""
    s_mov_b64 s[42:43], vcc
    s_cmp_eq_u32 s24, 0
    s_cselect_b64 vcc, s[42:43], 0
    v_mov_b32 v{T}, {OOB:#x}
    v_lshlrev_b32 v{T+1}, 2, v0
    v_cndmask_b32 v{PCNT+1}, v{T}, v{T+1}, vcc
    """)
    a.auto = au
    a.bg_add([("vm", tag, f"buffer_load_dword v{PCNT}, v{PCNT+1}, s[{srd_}:{srd_+3}], {soff} offen sc1")], front=front)

def poll_check(a, tag, shift, want, srd_=56, soff="0"):
    _lbl[0] += 1; l = f"L_poll{_lbl[0]}"
    n = a.vm_wait({tag})
    au = a.auto; a.auto = False
    a.I(f"s_cmp_lg_u32 s24, 0\ns_cbranch_scc1 {l}_ok\ns_waitcnt vmcnt({n})\ns_mov_b32 s35, 400000")
    a.label(l)
    a.I(f"""
    v_bfe_u32 v{T}, v{PCNT}, {shift}, 8
    v_cmp_gt_u32 vcc, {want}, v{T}
    s_nop 1
    s_and_b64 vcc, vcc, s[42:43]
    s_cmp_eq_u64 vcc, 0
    s_cbranch_scc1 {l}_ok
    s_sleep 2
    buffer_load_dword v{PCNT}, v{PCNT+1}, s[{srd_}:{srd_+3}], {soff} offen sc1
    s_waitcnt vmcnt(0)
    s_sub_u32 s35, s35, 1
    s_cmp_lg_u32 s35, 0
    s_cbranch_scc1 {l}
    """)
    a.label(l + "_ok"); a.auto = au

def touch(a, srd_, soff, n, addr=None):
    if not OPT.get("pf", 1): return
    au = a.auto; a.auto = False
    if addr is None:
        a.I(f"v_lshlrev_b32 v{T+9}, 7, v0"); addr = T + 9
    for i in range(n):
        if i: a.I(f"s_add_u32 s{soff}, s{soff}, 8192")
        a.vm_issue("PF"); a.I(f"buffer_load_dword v{PFD}, v{addr}, s[{srd_}:{srd_+3}], s{soff} offen")
    a.auto = au


NTT = set()
class Asm2(Asm):
    def vm_issue(self, tag):
        self._tag = tag; super().vm_issue(tag)
    def I(self, s_):
        t = getattr(self, "_tag", None)
        if t and s_.startswith("buffer_load") and " nt" not in s_ and "sc1" not in s_ and (t.rstrip("0123456789") in NTT):
            s_ = s_.replace(" lds", " nt lds") if s_.endswith(" lds") else s_ + " nt"
        self._tag = None
        super().I(s_)

def gen():
    a = Asm2(); kernel_begin(a, NAME); g_begin(a)
    a.pace = OPT["pace"]
    NT = "nt" if OPT.get("nt", 1) else ""
    def resrd(d, *args, **kw):
        for g in a.bg:
            for x in g:
                assert f"s[{d}:{d+3}]" not in (x[2] if isinstance(x, tuple) else x), ("pending bg item uses SRD", d, x)
        srd(a, d, *args, **kw)
    def W(tags, extra=""):
        n = a.vm_wait(set(tags)); a.I(f"s_waitcnt vmcnt({n}){extra}")
    def noauto(f):
        au = a.auto; a.auto = False; f(); a.auto = au
    a.I(f"""
    s_cmp_ge_u32 s2, 256
    s_cbranch_scc1 L_exit
    s_load_dwordx16 s[64:79], s[0:1], 0
    s_load_dwordx8 s[80:87], s[0:1], 64
    s_load_dwordx2 s[88:89], s[0:1], 96
    s_getpc_b64 s[12:13]
    """)
    a.label("L_pc0")
    a.I(f"""
    s_sub_u32 s12, s12, L_pc0-{NAME}
    s_subb_u32 s13, s13, 0
    s_mov_b32 s14, L_code_end-{NAME}
    s_mov_b32 s15, 0x00020000
    s_lshr_b32 s34, s2, 3
    s_lshl_b32 s33, s34, 12
    v_lshlrev_b32 v2, 4, v0
    buffer_load_dwordx4 v[252:255], v2, s[12:15], s33 offen
    v_lshrrev_b32 v1, 6, v0
    v_and_b32 v0, 63, v0
    s_and_b32 s33, s2, 7
    v_readfirstlane_b32 s24, v1
    s_lshl_b32 s48, s33, 3
    s_lshr_b32 s35, s34, 2
    s_add_u32 s48, s48, s35               ; qb32
    v_lshrrev_b32 v{T}, 3, v0
    v_mul_u32_u24 v{T+2}, 1152, v{T}
    v_and_b32 v{T+1}, 7, v0
    v_lshl_add_u32 v{XA}, v{T+1}, 4, v{T+2}
    s_lshl_b32 s26, s48, 2
    s_add_u32 s26, s26, s24
    s_mul_i32 s26, s26, {8*1152}
    s_mov_b32 s10, {SZ_ACT:#x}
    s_mov_b32 s11, 0x00020000
    s_waitcnt lgkmcnt(0)
    s_mov_b32 s8, s{P['x']}
    s_mov_b32 s9, s{P['x']+1}
    """)
    a.vm_issue("PF"); pt(a, 'ka')
    V_B = 64; V_X = 128; ACC1 = 96; AA1 = 168; RAW = 208
    for j in range(9):
        a.vm_issue("B"); a.I(f"buffer_load_dwordx4 {vr(RAW + j*4, 4)}, v{XA}, s[8:11], s26 offen offset:{j*128}")
    a.I(f"""
    s_lshl_b32 s0, s34, 2
    s_add_u32 s0, s0, s24
    s_mul_i32 s35, s0, 5184
    """)
    pt(a, 'xi')
    srd(a, 16, P['w1'], 576*1152)
    touch(a, 16, 35, 1); pt(a, 'tw1')
    a.I(f"""
    s_lshl_b32 s31, s33, 2
    s_lshr_b32 s35, s34, 3
    s_add_u32 s31, s31, s35               ; head
    s_and_b32 s32, s34, 7                 ; Q (attention)
    s_and_b32 s49, s34, 3                 ; nb
    s_and_b32 s50, s33, 1
    s_lshl_b32 s50, s50, 2
    s_add_u32 s50, s50, s35               ; Q4
    s_lshr_b32 s51, s33, 1
    s_lshl_b32 s51, s51, 3
    s_add_u32 s51, s51, s32               ; fb
    s_lshr_b32 s52, s33, 2
    s_lshl_b32 s52, s52, 3
    s_lshr_b32 s35, s34, 2
    s_add_u32 s52, s52, s35
    s_and_b32 s54, s33, 3                 ; kq
    """)
    if OPT.get("map84", 0):
        a.I("""
        s_lshr_b32 s31, s33, 1
        s_lshl_b32 s31, s31, 3
        s_add_u32 s31, s31, s35
        s_and_b32 s32, s33, 1
        s_lshl_b32 s32, s32, 2
        s_add_u32 s32, s32, s49               ; Q = (x&1)*4 + (idx&3)
        """)
    a.I(f"""
    s_mul_i32 s30, s24, {SLAB}
    s_lshl_b32 s55, s24, 12
    s_mul_i32 s33, s49, 288
    s_cmp_ge_u32 s24, 2
    s_cselect_b32 s34, 5, 0
    s_mul_i32 s60, s49, 9
    s_add_u32 s60, s60, s34               ; ntg0
    s_and_b32 s61, s24, 1                 ; qt
    s_mul_i32 s53, s61, 9
    s_add_u32 s53, s53, s34
    s_lshl_b32 s53, s53, 10
    s_lshl_b32 s62, s48, 1
    s_add_u32 s62, s62, s61
    """)
    srd(a, 4, P['w1'], 0, add_lo=33)
    a.I(f"s_sub_u32 s6, {576*1152}, s33")
    pat_regs(a, PAT, 1152)
    a.I(f"v_lshlrev_b32 v{L16}, 4, v0\ns_mul_i32 s25, s24, {32*1152}")
    def slot13(j): return (j % 4) * 4 * SLAB
    def loadW13(j, tagp):
        return dma_slab(PAT, 4, 25, j*128*1152, lambda o: f"s_add_u32 m0, s30, {slot13(j) + o}", f"{tagp}{j}")
    pt(a, 'w0a')
    NW0 = OPT.get("nw0", 2)
    for j in range(NW0):
        for x in loadW13(j, "W"): emit(a, x)
    pt(a, 'w1b')
    for j in range(NW0, 3): a.bg_add(loadW13(j, "W"))
    srd(a, 56, P['dbg'], 256)
    srd(a, 12, P['ws'], 0x10000, add_imm=WS_CX)
    XIMG = 3*4*SLAB; XQL = 16*SLAB
    XW = T + 12; XR = T + 13; XQW = T + 14
    a.I(f"""
    v_lshrrev_b32 v{T}, 4, v0
    v_bfe_u32 v{T+1}, v0, 2, 2
    v_lshl_add_u32 v{T}, v{T}, 3, v{T+1}
    v_mul_u32_u24 v{T}, 288, v{T}
    v_and_b32 v{T+1}, 3, v0
    v_lshl_add_u32 v{TRA}, v{T+1}, 3, v{T}
    v_lshlrev_b32 v{PCNT+1}, 2, v0
    v_add_u32 v{TRA}, s30, v{TRA}
    v_add_u32 v{TRB}, 64512, v{TRA}
    s_lshl_b32 s33, s52, 2
    s_add_u32 s33, s33, s49
    s_lshl_b32 s33, s33, 8
    s_or_b32 s34, s24, s54
    s_cmp_eq_u32 s34, 0
    s_cselect_b32 s33, s33, {OOB:#x}
    v_mov_b32 v{T}, 0
    """)
    a.vm_issue("CLR"); a.I(f"buffer_store_dword v{T}, v{PCNT+1}, s[12:15], s33 offen sc1")
    a.I(f"""
    v_and_b32 v{T}, 15, v0
    v_mul_u32_u24 v{T}, 1152, v{T}
    v_lshrrev_b32 v{T+1}, 4, v0
    v_lshl_add_u32 v{XD}, v{T+1}, 3, v{T}
    s_lshl_b32 s33, s24, 3
    v_lshrrev_b32 v{T}, 3, v0
    v_add_u32 v{T}, s33, v{T}
    v_bfe_u32 v{T+1}, v{T}, 1, 3
    v_and_b32 v{T+2}, 7, v0
    v_xor_b32 v{T+1}, v{T+1}, v{T+2}
    v_mul_u32_u24 v{T+3}, 1152, v{T}
    v_lshl_add_u32 v{XW}, v{T+1}, 4, v{T+3}
    v_add_u32 v{XW}, {XIMG}, v{XW}
    v_and_b32 v{T}, 15, v{T}
    v_and_b32 v{T+1}, 3, v0
    v_lshl_add_u32 v{T}, v{T+1}, 4, v{T}
    v_lshlrev_b32 v{T}, 4, v{T}
    s_lshr_b32 s33, s24, 1
    s_mul_i32 s33, s33, 5120
    s_add_u32 s33, s33, {XQL}
    v_add_u32 v{XQW}, s33, v{T}
    v_and_b32 v{T}, 15, v0
    v_lshrrev_b32 v{T+1}, 4, v0
    s_lshl_b32 s33, s61, 2
    v_add_u32 v{T+1}, s33, v{T+1}
    v_lshrrev_b32 v{T+2}, 1, v{T}
    v_xor_b32 v{T+1}, v{T+1}, v{T+2}
    v_mul_u32_u24 v{T}, 1152, v{T}
    v_lshl_add_u32 v{XR}, v{T+1}, 4, v{T}
    s_lshr_b32 s33, s24, 1
    s_lshl_b32 s33, s33, 7
    s_add_u32 s33, s33, {XIMG}
    v_add_u32 v{XR}, s33, v{XR}
    v_lshrrev_b32 v{T}, 4, v0
    v_and_b32 v{T+1}, 15, v0
    v_xor_b32 v{T+2}, v{T+1}, v{T}
    v_lshlrev_b32 v{T+2}, 4, v{T+2}
    v_lshl_add_u32 v{KD}, v{T}, 8, v{T+2}
    v_xor_b32 v{KD+1}, 64, v{KD}
    v_xor_b32 v{KD+2}, 0x80, v{KD}
    v_xor_b32 v{KD+3}, 0xc0, v{KD}
    v_lshlrev_b32 v{T+2}, 1, v{T}
    v_xor_b32 v{T+2}, v{T+1}, v{T+2}
    v_lshlrev_b32 v{T+2}, 4, v{T+2}
    v_lshl_add_u32 v{VD}, v{T}, 8, v{T+2}
    v_xor_b32 v{VD+1}, 0x80, v{VD}
    v_lshl_add_u32 v{WD}, v{T}, 13, v{T+2}
    v_xor_b32 v{WD+1}, 0x80, v{WD}
    v_bfe_u32 v{T+1}, v0, 2, 2
    v_lshl_add_u32 v{T+2}, v{T}, 3, v{T+1}
    v_and_b32 v{T}, 1, v{T}
    v_lshl_add_u32 v{T}, v{T}, 2, v{T+1}
    v_lshlrev_b32 v{T}, 1, v{T}
    v_and_b32 v{T+1}, 3, v0
    v_xor_b32 v{T}, v{T}, v{T+1}
    v_lshlrev_b32 v{T}, 4, v{T}
    v_lshl_add_u32 v{WA}, v{T+2}, 8, v{T}
    s_lshl_b32 s33, s32, 4
    s_lshl_b32 s34, s24, 2
    s_add_u32 s46, s33, s34              ; first q tile of this wave (attention rows)
    s_mul_i32 s27, s46, {18*1024}
    s_add_u32 s28, s27, {18*1024}
    s_add_u32 s29, s27, {36*1024}
    s_add_u32 s45, s27, {54*1024}
    s_lshl_b32 s34, s31, 8
    s_lshl_b32 s44, s24, 17
    """)
    srd(a, 12, P['wq'], 0, add_lo=34)
    a.I("s_sub_u32 s14, 0x480000, s34")
    srd(a, 20, P['ws'], SZ_ACT, add_imm=WS_XQ)
    for t in range(1, 4): a.I(f"v_xor_b32 v{WA+t}, {t*64}, v{WA}")
    for t in range(4): a.I(f"v_add_u32 v{WA+4+t}, 0x10000, v{WA+t}")
    XS = [27, 28, 29, 45]
    TBL = [74, 75, 1]
    a.I("s_and_b32 s33, s31, 3\ns_lshl_b32 s33, s33, 1\ns_add_u32 s33, s33, s32\ns_mov_b32 s74, 0\ns_mov_b32 s75, 0\ns_mov_b32 s1, 0")
    if not OPT.get("rot", 0): a.I("s_mov_b32 s33, 0")
    for c in range(9):
        a.I(f"s_add_u32 s34, s33, {c}\ns_sub_u32 s35, s34, 9\ns_cmp_ge_u32 s34, 9\ns_cselect_b32 s34, s35, s34\ns_sub_u32 s35, s34, 9\ns_cmp_ge_u32 s34, 9\ns_cselect_b32 s34, s35, s34\ns_lshl_b32 s34, s34, {3 + 8*(c%4)}\ns_or_b32 s{TBL[c//4]}, s{TBL[c//4]}, s34")
    def cbfe(c): return f"s_bfe_u32 s3, s{TBL[c//4]}, {(8 << 16) | (8*(c%4)):#x}"
    def xset(c): s_ = c % 6; return 32 * s_ if s_ < 4 else 192 + 32*(s_-4)
    def ld_x(c):
        r = []
        for qt in range(4):
            for kl in range(2):
                r += [cbfe(c), "s_lshl_b32 s3, s3, 8", f"s_add_u32 s3, s3, s{XS[qt]}",
                      ("vm", f"X{c}", f"buffer_load_dwordx4 {ar(xset(c) + (kl*4+qt)*4, 4)}, v{L16}, s[20:23], s3 offen offset:{kl*1024}")]
        return r
    def wq_lds(c): return 16384*c if c < 5 else 98304 + 16384*(c-5)
    def dma_wq(c):
        r = []
        for i in range(4):
            r.append(f"s_add_u32 m0, s55, {wq_lds(c) + i*1024}")
            r += [cbfe(c), "s_lshl_b32 s3, s3, 16", "s_add_u32 s3, s3, s44", f"s_add_u32 s3, s3, {i*4*8192}"] if i else [cbfe(c), "s_lshl_b32 s3, s3, 16", "s_add_u32 s3, s3, s44"]
            r.append(("vm", f"Q{c}", f"buffer_load_dwordx4 v{WD+(i>>1)}, s[12:15], s3 offen lds"))
        return r
    def pf_wq():
        srd(a, 16, P['wq'], 0x480000)
        m84 = OPT.get("map84", 0)
        for i in range(2 if m84 else 1):
            a.I(f"""
            s_mul_i32 s35, s0, {72 if m84 else 36}
            v_min_u32 v{T}, 35, v0
            v_add_u32 v{T}, s35, v{T}
            v_add_u32 v{T}, {36*i}, v{T}
            v_lshrrev_b32 v{T+1}, {4 if m84 else 3}, v{T}
            v_and_b32 v{T}, {15 if m84 else 7}, v{T}
            v_lshlrev_b32 v{T}, 7, v{T}
            v_lshl_add_u32 v{T}, v{T+1}, 13, v{T}
            s_and_b32 s35, s2, {6 if m84 else 7}
            s_lshl_b32 s35, s35, 10
            """)
            touch(a, 16, 35, 1, addr=T)
    if OPT.get('pfwq', 2) == 1: pf_wq()
    pt(a, 'xw'); W(["B"]); pt(a, 'xarr')
    a.auto = True
    for r in range(36): a.I(f"v_lshlrev_b32 v{V_X+2*r}, 16, v{RAW+r}\nv_and_b32 v{V_X+2*r+1}, 0xffff0000, v{RAW+r}")
    def red8(d):
        a.I(f"""v_add_f32 v{d}, v{d}, v{d+1}
        s_nop 1
        v_add_f32_dpp v{d}, v{d}, v{d} quad_perm:[1,0,3,2] row_mask:0xf bank_mask:0xf
        s_nop 1
        v_add_f32_dpp v{d}, v{d}, v{d} quad_perm:[2,3,0,1] row_mask:0xf bank_mask:0xf
        s_nop 1
        v_add_f32_dpp v{d}, v{d}, v{d} row_half_mirror row_mask:0xf bank_mask:0xf""")
    d = T + 4
    a.I(f"v_pk_add_f32 v[{d}:{d+1}], v[{V_X}:{V_X+1}], v[{V_X+2}:{V_X+3}]\nv_pk_add_f32 v[{d+2}:{d+3}], v[{V_X+4}:{V_X+5}], v[{V_X+6}:{V_X+7}]")
    for e in range(8, 72, 2): a.I(f"v_pk_add_f32 v[{d+(e&2)}:{d+(e&2)+1}], v[{d+(e&2)}:{d+(e&2)+1}], v[{V_X+e}:{V_X+e+1}]")
    a.I(f"v_pk_add_f32 v[{d}:{d+1}], v[{d}:{d+1}], v[{d+2}:{d+3}]")
    red8(d)
    a.I(f"s_mov_b32 s47, {f32(-1.0/576):#x}\nv_mul_f32 v{d}, s47, v{d}")
    for e in range(0, 72, 2): a.I(f"v_pk_add_f32 v[{V_X+e}:{V_X+e+1}], v[{V_X+e}:{V_X+e+1}], v[{d}:{d+1}] op_sel_hi:[1,0]")
    a.I(f"v_pk_mul_f32 v[{d}:{d+1}], v[{V_X}:{V_X+1}], v[{V_X}:{V_X+1}]\nv_pk_mul_f32 v[{d+2}:{d+3}], v[{V_X+2}:{V_X+3}], v[{V_X+2}:{V_X+3}]")
    for e in range(4, 72, 2): a.I(f"v_pk_fma_f32 v[{d+(e&2)}:{d+(e&2)+1}], v[{V_X+e}:{V_X+e+1}], v[{V_X+e}:{V_X+e+1}], v[{d+(e&2)}:{d+(e&2)+1}]")
    a.I(f"v_pk_add_f32 v[{d}:{d+1}], v[{d}:{d+1}], v[{d+2}:{d+3}]")
    red8(d)
    a.I(f"""
    s_mov_b32 s34, {f32(EPS):#x}
    s_mov_b32 s47, {f32(1.0/576):#x}
    s_mov_b32 s33, {f32(CQ):#x}
    v_mul_f32 v{d}, s47, v{d}
    v_add_f32 v{d+2}, s34, v{d}
    v_fma_f32 v{d+3}, v{d+2}, s34, v{d}
    v_rsq_f32 v{d+2}, v{d+2}
    v_rsq_f32 v{d}, v{d+3}
    s_nop 0
    v_mul_f32 v{d+2}, s33, v{d+2}
    """)
    a.auto = False
    a.I(f"""
    s_mov_b32 s34, 0x0f0f0f0f
    s_bitcmp1_b32 s49, 0
    s_cselect_b32 s34, 0xf0f0f0f0, s34
    s_mov_b32 s35, s34
    s_bitcmp1_b32 s49, 1
    s_cbranch_scc1 L_xq_odd
    """)
    for par in range(2):
        if par: a.label("L_xq_odd")
        for j in range(par, 9, 2):
            b = V_X + j*8; o = RAW + (j >> 1)*4; t = V_B
            for r in range(4): a.I(f"v_pk_mul_f32 v[{t+2*r}:{t+2*r+1}], v[{b+2*r}:{b+2*r+1}], v[{d+2}:{d+3}] op_sel_hi:[1,0]")
            for r in range(4): a.I(f"v_cvt_pk_bf16_f32 v{o+r}, v{t+2*r}, v{t+2*r+1}")
        a.I("s_mov_b64 exec, s[34:35]")
        for j in range(par, 9, 2): a.I(f"ds_write_b128 v{XQW}, {vr(RAW + (j >> 1)*4, 4)} offset:{(j >> 1)*1024}")
        a.I("s_mov_b64 exec, -1")
        if par == 0: a.I("s_branch L_xq_done")
    a.label("L_xq_done"); a.auto = True
    for j in range(9):
        b = V_X + j*8
        for r in range(4): a.I(f"v_pk_mul_f32 v[{b+2*r}:{b+2*r+1}], v[{b+2*r}:{b+2*r+1}], v[{d}:{d+1}] op_sel_hi:[1,0]")
        for r in range(4): a.I(f"v_cvt_pk_bf16_f32 v{b+r}, v{b+2*r}, v{b+2*r+1}")
        a.I(f"ds_write_b128 v{XW}, {vr(b, 4)} offset:{j*128}")
    W(["W0"], " lgkmcnt(0)"); a.I("s_barrier")
    a.I(f"s_lshl_b32 s33, s24, 10\ns_add_u32 s33, s33, {XQL}\nv_add_u32 v{T}, s33, v{L16}")
    for k_ in range(3): a.I(f"ds_read_b128 {vr(RAW + k_*4, 4)}, v{T} offset:{k_*4096}")
    for i in range(5):
        for qt in range(2): a.I(f"ds_read_b128 {vr(V_B + (i*2+qt)*4, 4)}, v{XR} offset:{qt*18432 + i*256}")
    a.auto = False
    a.I("s_waitcnt lgkmcnt(10)")
    for k_ in range(3):
        a.I(f"""
        s_add_u32 s33, s24, {4*k_}
        s_cmp_ge_u32 s33, 5
        s_cselect_b32 s34, 1, 0
        s_mul_i32 s35, s34, 5
        s_sub_u32 s35, s33, s35
        s_lshl_b32 s35, s35, 2
        s_add_u32 s35, s35, s49               ; ks
        s_lshl_b32 s47, s48, 1
        s_add_u32 s34, s34, s47
        s_mul_i32 s34, s34, 18
        s_add_u32 s34, s34, s35
        s_lshl_b32 s34, s34, 10
        s_cmp_ge_u32 s35, 18
        s_cselect_b32 s34, {OOB:#x}, s34
        s_cmp_ge_u32 s33, 10
        s_cselect_b32 s34, {OOB:#x}, s34
        """)
        a.vm_issue("XQ"); a.I(f"buffer_store_dwordx4 {vr(RAW + k_*4, 4)}, v{L16}, s[20:23], s34 offen sc1")
    def nat_reads(dst, off):
        base = off // 64512; o = off - base * 64512
        return [f"ds_read_b64_tr_b16 {ar(dst + nt*4 + 2*m, 2)}, v{TRA+base} offset:{o + m*4*288 + nt*32}" for nt in range(9) for m in range(2)]
    for x in nat_reads(AA1, 0): a.I(x)
    a.I(f"s_waitcnt lgkmcnt(0)\ns_barrier\ns_cmp_lt_u32 s24, 2\ns_cbranch_scc1 L_b4ok")
    for r in range(8): a.I(f"v_mov_b32 v{V_B+32+r}, 0")
    a.label("L_b4ok"); a.auto = True
    a.bg_add(loadW13(3, "W") + loadW13(4, "W"), front=True)
    pt(a, 'ln')
    if OPT.get('pfwq', 2) == 2: a.force(None); noauto(pf_wq)
    RED = 90112; XQS = OPT.get('xqs', 1)
    def small_gemm_steps(tagp, accr, AA, bfrag, late_w4, a_reads=a_reads, last_need=()):
        if late_w4:
            W([f"{tagp}0"])
            for x in a_reads(AA, 0): a.I(x)
        for i in range(5):
            W([f"{tagp}{min(i+1, 4)}", f"B{i}"] + (list(last_need) if i == XQS else []), " lgkmcnt(0)")
            if last_need and i == XQS:
                a.I("s_barrier\ns_lshr_b32 s33, s48, 3\ns_lshl_b32 s33, s33, 5\ns_add_u32 s33, s33, 4"); signal(a, 0x100)
            if late_w4 and i == 0: a.bg_add(loadW13(4, tagp), front=True)
            rd = a_reads(AA + 36*((i+1) % 2), slot13(i+1)) if i < 4 else []
            k = 0
            for nt in range(9):
                for qt in range(2):
                    d = accr(qt*9+nt)
                    a.I(mf(d, ar(AA + 36*(i % 2) + nt*4, 4), bfrag(i, qt), d if i else "0"))
                    if k < len(rd): a.I(rd[k]); k += 1
        a.I(f"s_nop 7\ns_barrier\ns_mul_i32 s33, s24, {18*1024}\ns_add_u32 s33, s33, {RED}\nv_add_u32 v{T}, s33, v{L16}")
    def acc_to_lds(accr):
        for t in range(18): a.I(f"ds_write_b128 v{T}, {accr(t)} offset:{t*1024}")
    RES = 64; BUF = 84; XL = 116; S1V = 64
    def reduce_tiles():
        a.I(f"s_waitcnt lgkmcnt(0)\ns_barrier\ns_add_u32 s33, s53, {RED}\nv_add_u32 v{T}, s33, v{L16}")
        def rd(j):
            for w in range(4): a.I(f"ds_read_b128 {vr(BUF + (j%2)*16 + w*4, 4)}, v{T} offset:{w*18*1024 + j*1024}")
        rd(0)
        for j in range(5):
            if j < 4: rd(j + 1)
            a.I(f"s_waitcnt lgkmcnt({4 if j < 4 else 0})")
            b = BUF + (j%2)*16
            for h in (0, 2):
                a.I(f"v_pk_add_f32 v[{b+h}:{b+h+1}], v[{b+h}:{b+h+1}], v[{b+4+h}:{b+5+h}]")
                a.I(f"v_pk_add_f32 v[{b+8+h}:{b+9+h}], v[{b+8+h}:{b+9+h}], v[{b+12+h}:{b+13+h}]")
                a.I(f"v_pk_add_f32 v[{RES+j*4+h}:{RES+j*4+h+1}], v[{b+h}:{b+h+1}], v[{b+8+h}:{b+9+h}]")
    def piece_off(j, dst):
        a.I(f"s_add_u32 s33, s60, {j}\ns_lshr_b32 s{dst}, s33, 1\ns_lshl_b32 s{dst}, s{dst}, 10\ns_and_b32 s33, s33, 1\ns_lshl_b32 s33, s33, 3\ns_add_u32 s{dst}, s{dst}, s33")
        if j == 4: a.I(f"s_cmp_ge_u32 s24, 2\ns_cselect_b32 s{dst}, {OOB:#x}, s{dst}")
    acc1 = lambda t: ar(ACC1 + t*4, 4)
    small_gemm_steps("W", acc1, AA1, lambda i, qt: vr(V_B + (i*2+qt)*4, 4), False, nat_reads, ["XQ", "CLR"]); pt(a, 't1m')
    acc_to_lds(acc1)
    NQ0 = OPT.get("nq0", 2)
    if OPT.get('c0early', 1):
        poll_issue(a, "P0", "s_lshl_b32 s33, s32, 3\ns_add_u32 s33, s33, 1\nv_cmp_eq_u32 vcc, s33, v0\ns_nop 1"); a.force({"P0"})
    for c in range(NQ0): a.bg_add(dma_wq(c))
    a.I(f"""
    v_lshrrev_b32 v{T+2}, 2, v0
    v_mul_u32_u24 v{T+2}, 288, v{T+2}
    v_and_b32 v{T+3}, 3, v0
    v_lshl_add_u32 v{TRA}, v{T+3}, 3, v{T+2}
    v_add_u32 v{TRA}, s30, v{TRA}
    v_add_u32 v{TRB}, 64512, v{TRA}
    v_add_u32 v{TRC}, 129024, v{TRA}
    """)
    reduce_tiles()
    def do_chk0():
        pt(a, 'c0a'); poll_check(a, "P0", 8, 32); a.I("s_barrier"); pt(a, 'c0b')
        a.bg_add(ld_x(0) + ld_x(1), front=True)
        for c in range(2, 6): a.bg_add((dma_wq(c) if NQ0 <= c < 5 else []) + ld_x(c))
    if OPT.get('c0early', 1): do_chk0()
    else:
        poll_issue(a, "P0", "s_lshl_b32 s33, s32, 3\ns_add_u32 s33, s33, 1\nv_cmp_eq_u32 vcc, s33, v0\ns_nop 1", front=False)
    a.I(f"s_mov_b32 s92, {f32(C2):#x}\ns_mov_b32 s93, {f32(C2):#x}\nv_mov_b32 v{T+4}, {f32(C1):#x}\nv_mov_b32 v{T+5}, {f32(C1):#x}")
    srd(a, 16, P['ws'], SZ_ACT, add_imm=WS_H)
    a.I(f"""
    s_cmp_eq_u32 s49, 0
    s_cselect_b32 s47, 1, -1
    s_cmp_eq_u32 s49, 2
    s_cselect_b32 s47, 2, s47
    s_cmp_eq_u32 s49, 3
    s_cselect_b32 s47, -2, s47
    s_lshl_b32 s33, s62, 4
    s_add_u32 s33, s33, s47
    v_and_b32 v{T}, 15, v0
    v_add_u32 v{T}, s33, v{T}
    v_cmp_gt_u32 vcc, 0x800, v{T}
    v_and_b32 v{T}, 0x7ff, v{T}
    v_lshrrev_b32 v{T+1}, 4, v{T}
    v_mul_u32_u24 v{T+1}, {18*1024}, v{T+1}
    v_and_b32 v{T}, 15, v{T}
    v_lshl_add_u32 v{T+1}, v{T}, 4, v{T+1}
    v_and_b32 v{T}, 0x30, v0
    v_lshl_add_u32 v{T+2}, v{T}, 4, v{T+1}
    """)
    for j in range(5):
        b = RES + j*4
        gelu4(a, b, BUF + (j%2)*4, T + 4, 92)
        a.I(f"v_cvt_pk_bf16_f32 v{b}, v{b}, v{b+1}\nv_cvt_pk_bf16_f32 v{b+1}, v{b+2}, v{b+3}")
        a.I(f"v_cndmask_b32 v{b}, 0, v{b}, vcc\nv_cndmask_b32 v{b+1}, 0, v{b+1}, vcc")
        piece_off(j, 35)
        a.vm_issue("H"); a.I(f"buffer_store_dwordx2 v[{b}:{b+1}], v{T+2}, s[16:19], s35 offen sc1")
    if not OPT.get('c0early', 1): do_chk0()
    pt(a, 't1')
    def abuf(y): return 128 + 32 * (y % 2)
    def w_reads(y):
        o = wq_lds(y >> 1) + (y & 1) * 8192
        base = WA + (4 if 65536 <= o < 131072 else 0); o %= 65536
        return [f"ds_read_b64_tr_b16 {ar(abuf(y) + (t*2+b)*4 + 2*m, 2)}, v{base+t} offset:{o + m*1024 + 8*b}" for t in range(4) for b in range(2) for m in range(2)]
    a.I("s_mul_i32 s33, s49, 288")
    resrd(4, P['w2'], 0, add_lo=33)
    a.I(f"""
    s_sub_u32 s6, {576*1152}, s33
    s_mul_i32 s26, s48, {2*18*1024}
    s_lshl_b32 s33, s24, 10
    s_add_u32 s26, s26, s33
    s_add_u32 s94, s26, {18*1024}
    s_add_u32 s95, s26, 16384
    s_add_u32 s47, s94, 16384
    s_cmp_ge_u32 s24, 2
    s_cselect_b32 s95, {OOB:#x}, s95
    s_cselect_b32 s47, {OOB:#x}, s47
    v_and_b32 v{T+14}, 15, v0
    v_lshlrev_b32 v{T+14}, 4, v{T+14}
    v_bfe_u32 v{T+15}, v0, 5, 1
    v_lshl_add_u32 v{T+14}, v{T+15}, 8, v{T+14}
    v_bfe_u32 v{T+15}, v0, 4, 1
    v_lshl_add_u32 v{T+14}, v{T+15}, 3, v{T+14}
    s_mul_i32 s63, s62, {18*1024}
    s_lshl_b32 s34, s60, 9
    s_add_u32 s63, s63, s34
    """)
    xl_items = [("vm", "XL", f"buffer_load_dwordx2 v[{XL+2*j}:{XL+2*j+1}], v{T+14}, s[20:23], s63 offen offset:{j*512}") for j in range(5)]
    def sig1():
        a.I("s_lshl_b32 s33, s48, 2"); signal(a, 1)
    def bT3(i): return 192 + i*8
    def pf_w2():
        a.I(f"s_mul_i32 s35, s0, 5184\ns_mul_i32 s33, s49, 288\ns_sub_u32 s56, s4, s33") if False else None
        srd(a, 56, P['w2'], 576*1152); a.I("s_mul_i32 s35, s0, 5184"); touch(a, 56, 35, 1); srd(a, 56, P['dbg'], 256)
    def pf_kv():
        m84 = OPT.get("map84", 0)
        a.I(f"s_lshl_b32 s33, s31, 19\ns_and_b32 s35, s0, {15 if m84 else 31}\ns_lshl_b32 s35, s35, {12 if m84 else 11}\ns_add_u32 s35, s35, s33\nv_and_b32 v{T}, {31 if m84 else 15}, v0\nv_lshlrev_b32 v{T}, 7, v{T}")
        srd(a, 56, P['k'], 0x1000000); touch(a, 56, 35, 1, addr=T)
        srd(a, 56, P['v'], 0x1000000); touch(a, 56, 35, 1, addr=T); srd(a, 56, P['dbg'], 256)
    def iss1():
        poll_issue(a, "P1", f"v_subrev_u32 v{T+2}, s48, v0\nv_add_u32 v{T+2}, 1, v{T+2}\nv_and_b32 v{T+2}, 63, v{T+2}\nv_cmp_gt_u32 vcc, 3, v{T+2}\ns_nop 1")
    def chk1():
        pt(a, 'c1a'); poll_check(a, "P1", 0, 4); pt(a, 'c1b')
    def ldb3():
        it = []
        for i in range(5):
            for qt in range(2):
                it.append(f"s_add_u32 s3, s{(26, 94)[qt]}, {i*4096}" if i < 4 else f"s_mov_b32 s3, s{(95, 47)[qt]}")
                it.append(("vm", f"B{i}", f"buffer_load_dwordx4 {ar(bT3(i) + qt*4, 4)}, v{L16}, s[16:19], s3 offen"))
        a.bg_add(it + xl_items, front=True)
    def wa_hi():
        for t in range(4): a.I(f"v_add_u32 v{WA+t}, 0x20000, v{WA+t}")
    hooks = {(0, "pre"): [lambda: a.bg_add(dma_wq(5) + dma_wq(6) + dma_wq(7) + dma_wq(8))],
             (1, "post"): [lambda: a.bg_add(ld_x(6)), lambda: noauto(pf_w2)],
             (3, "post"): [lambda: a.bg_add(ld_x(7))],
             (5, "bar"): [lambda: a.bg_add(loadW13(0, "U"))], (5, "post"): [lambda: a.bg_add(ld_x(8), front=True)],
             (7, "bar"): [wa_hi], (7, "post"): [lambda: noauto(pf_kv)],
             (9, "bar"): [lambda: a.bg_add(loadW13(1, "U"))],
             (11, "bar"): [lambda: a.bg_add(loadW13(2, "U")), iss1],
             (12, "post"): [chk1], (13, "bar"): [ldb3],
             (15, "bar"): [lambda: a.bg_add(loadW13(3, "U"))]}
    S1U = OPT.get("s1u", 5)
    hooks[(S1U, "need")] = {"H"}; hooks[(S1U, "bar")] = [sig1] + hooks.get((S1U, "bar"), [])
    if OPT.get("w2late"):
        hooks[(5, "bar")] = []; hooks[(9, "bar")] = []; hooks[(11, "bar")] = hooks[(11, "bar")][1:]; hooks[(15, "bar")] = []
        hooks[(17, "post")] = [lambda: a.bg_add(loadW13(0, "U") + loadW13(1, "U") + loadW13(2, "U") + loadW13(3, "U"))]
    if OPT.get("nox"):
        XS[:] = [27, 27, 27, 27]
    W(["Q0"]); a.I("s_barrier")
    for x in w_reads(0): a.I(x)
    for x in hooks[(0, "pre")]: x()
    for y in range(18):
        c = y >> 1
        a.C(f"qproj unit {y}"); pt(a, f"u{y}a")
        if y % 2 == 1 and y + 1 < 18:
            W({f"Q{c+1}", f"X{c}"} | hooks.get((y, "need"), set()), " lgkmcnt(0)"); a.I("s_barrier")
        else:
            W([f"X{c}"], " lgkmcnt(0)")
        for x in hooks.get((y, "bar"), []): x()
        rd = w_reads(y + 1) if y + 1 < 18 else []
        k = 0; g = 0
        for tb in range(8):
            for qt in range(4):
                d = vr(128 + (qt*8 + tb)*4, 4)
                a.I(mf(d, ar(abuf(y) + tb*4, 4), ar(xset(c) + ((y & 1)*4+qt)*4, 4), d if y else "0"))
                if g < 24 and g % 3 != 2 and k < len(rd): a.I(rd[k]); k += 1
                g += 1
        for x in hooks.get((y, "post"), []): x()
    pt(a, 'qp')
    QS = 160 * 1024 - 4096
    def cs_exchange(src, n, dst, bufs):
        a.I(f"""
        s_nop 7
        s_barrier
        v_lshrrev_b32 v{T+6}, 4, v0
        v_lshlrev_b32 v{T+6}, 4, v{T+6}
        v_add_u32 v{T+6}, {QS}, v{T+6}
        s_mul_i32 s33, s24, {n*64}
        v_add_u32 v{T+1}, s33, v{T+6}
        """)
        for t in range(n): a.I(f"ds_write_b128 v{T+1}, {src(t)} offset:{t*64}")
        a.I("s_waitcnt lgkmcnt(0)\ns_barrier")
    def cs_sum(n, dst, tmp):
        for w in range(4):
            for t in range(n): a.I(f"ds_read_b128 {vr((dst if w == 0 else tmp + (w-1)*n*4) + t*4, 4)}, v{T+6} offset:{w*n*64 + t*64}")
            if w: a.I("s_waitcnt lgkmcnt(0)") if w == 3 else None
        for t in range(n):
            for h in (0, 2):
                d = dst + t*4 + h; p = [tmp + w*n*4 + t*4 + h for w in range(3)]
                a.I(f"v_pk_add_f32 v[{d}:{d+1}], v[{d}:{d+1}], v[{p[0]}:{p[0]+1}]\nv_pk_add_f32 v[{p[1]}:{p[1]+1}], v[{p[1]}:{p[1]+1}], v[{p[2]}:{p[2]+1}]\nv_pk_add_f32 v[{d}:{d+1}], v[{d}:{d+1}], v[{p[1]}:{p[1]+1}]")
    a.I("s_nop 3")
    for qt in range(4):
        for t in range(4):
            b = 128 + (qt*8 + t*2)*4
            for i in range(4): a.I(f"v_cvt_pk_bf16_f32 v{b+i}, v{b+2*i}, v{b+2*i+1}")
            for i in range(4): a.I(f"v_accvgpr_write_b32 a{AT.A_Q + (qt*4+t)*4 + i}, v{b+i}")
    pt(a, 'qc')
    acc3 = lambda t: vr(128 + t*4, 4); AA3 = 0
    small_gemm_steps("U", acc3, AA3, lambda i, qt: ar(bT3(i) + qt*4, 4), True)
    pt(a, 't3m')
    assert not a.bg
    a.I("s_lshl_b32 s33, s31, 19\ns_mov_b32 s30, s55\ns_mov_b32 s25, s55\ns_mov_b32 s26, s55")
    srd(a, 4, P['k'], 524288, add_lo=33)
    srd(a, 8, P['v'], 524288, add_lo=33)
    AT.FIRST0[0] = True
    AT.V_KD = KD; AT.V_VD = VD; AT.V_L16 = L16; AT.V_T = T
    AT.V_KA = 64; AT.V_VA = 68; AT.V_LS = 76; AT.V_M = 80; AT.V_NEGM = 96
    def selfc(d):
        r = []
        for x in d[1:5]: r += [d[0], "s_nop 0", x]
        return r + [d[5]]
    def kv(lst):
        it = []
        for kind, t in lst: it += selfc(AT.dma_k(a, t) if kind == "k" else AT.dma_v(a, t))
        return it
    a.bg_add(kv((("k", 0), ("k", 1), ("v", 0), ("k", 2))))
    acc_to_lds(acc3)
    reduce_tiles()
    srd(a, 16, P['ws'], SZ_ACT, add_imm=WS_X1)
    a.I(f"""
    s_mul_i32 s47, s62, {18*1024}
    v_add_u32 v{T+2}, s47, v{L16}
    v_mov_b32 v{T+6}, {f32(1.0/CQ):#x}
    """)
    for j in range(5):
        b = RES + j*4; s_ = XL + 2*j; e = BUF + (j%2)*8
        piece_off(j, 35)
        a.I(f"""
        v_lshlrev_b32 v{e}, 16, v{s_}
        v_and_b32 v{e+1}, 0xffff0000, v{s_}
        v_lshlrev_b32 v{e+2}, 16, v{s_+1}
        v_and_b32 v{e+3}, 0xffff0000, v{s_+1}
        v_pk_fma_f32 v[{b}:{b+1}], v[{e}:{e+1}], v[{T+6}:{T+7}], v[{b}:{b+1}] op_sel_hi:[1,0,1]
        v_pk_fma_f32 v[{b+2}:{b+3}], v[{e+2}:{e+3}], v[{T+6}:{T+7}], v[{b+2}:{b+3}] op_sel_hi:[1,0,1]
        v_cvt_pk_bf16_f32 v{e+4}, v{b}, v{b+1}
        v_cvt_pk_bf16_f32 v{e+5}, v{b+2}, v{b+3}
        """)
        a.vm_issue("X1"); a.I(f"buffer_store_dwordx2 v[{e+4}:{e+5}], v{T+2}, s[16:19], s35 offen sc1")
        a.I(f"""
        v_lshlrev_b32 v{b}, 16, v{e+4}
        v_and_b32 v{b+1}, 0xffff0000, v{e+4}
        v_lshlrev_b32 v{b+2}, 16, v{e+5}
        v_and_b32 v{b+3}, 0xffff0000, v{e+5}
        """)
    a.auto = False
    a.I(f"""
    s_cmp_ge_u32 s24, 2
    s_cselect_b32 s92, 0, 1.0
    s_mov_b32 s93, {f32(1/80):#x}
    s_cbranch_scc0 L_five
    s_mov_b32 s93, {f32(1/64):#x}
    v_mov_b32 v{RES+16}, 0
    v_mov_b32 v{RES+17}, 0
    v_mov_b32 v{RES+18}, 0
    v_mov_b32 v{RES+19}, 0
    """)
    a.label("L_five"); a.auto = True
    vals = [RES + e for e in range(20)]
    a.I(f"v_add_f32 v{T+4}, v{vals[0]}, v{vals[1]}")
    for v in vals[2:]: a.I(f"v_add_f32 v{T+4}, v{T+4}, v{v}")
    xlane(a, "v_add_f32", T+4)
    a.I(f"v_mul_f32 v{T+6}, s93, v{T+4}\nv_mul_f32 v{T+7}, s92, v{T+6}\nv_mov_b32 v{T+8}, 0")
    for e, v in enumerate(vals):
        a.I(f"v_sub_f32 v{v}, v{v}, v{T+6 + (1 if e >= 16 else 0)}\nv_fmac_f32 v{T+8}, v{v}, v{v}")
    xlane(a, "v_add_f32", T+8)
    srd(a, 16, P['ws'], 2048*64, add_imm=WS_ST)
    a.I(f"""
    v_mov_b32 v{T+5}, v{T+8}
    s_lshl_b32 s33, s62, 10
    s_lshl_b32 s34, s49, 4
    s_add_u32 s33, s33, s34
    s_lshr_b32 s34, s24, 1
    s_lshl_b32 s34, s34, 3
    s_add_u32 s33, s33, s34
    v_lshlrev_b32 v{T}, 6, v0
    v_cmp_gt_u32 vcc, 16, v0
    v_mov_b32 v{T+1}, {OOB:#x}
    s_nop 0
    v_cndmask_b32 v{T}, v{T+1}, v{T}, vcc
    """)
    a.vm_issue("X1"); a.I(f"buffer_store_dwordx2 v[{T+4}:{T+5}], v{T}, s[16:19], s33 offen sc1")
    pt(a, 't3')
    KA, VA, LS, NEGM = AT.V_KA, AT.V_VA, AT.V_LS, AT.V_NEGM
    a.I(f"""
    v_lshrrev_b32 v{T}, 4, v0
    v_and_b32 v{T+1}, 15, v0
    v_xor_b32 v{T+2}, v{T+1}, v{T}
    v_lshlrev_b32 v{T+2}, 4, v{T+2}
    v_lshl_add_u32 v{KA}, v{T+1}, 8, v{T+2}
    v_xor_b32 v{KA+1}, 64, v{KA}
    v_xor_b32 v{KA+2}, 0x80, v{KA}
    v_xor_b32 v{KA+3}, 0xc0, v{KA}
    v_lshrrev_b32 v{T}, 2, v0
    v_and_b32 v{T+1}, 7, v{T}
    v_and_b32 v{T+2}, 3, v0
    v_lshlrev_b32 v{T+3}, 8, v{T}
    v_lshl_add_u32 v{T+4}, v{T+1}, 5, v{T+3}
    v_lshl_add_u32 v{T+4}, v{T+2}, 3, v{T+4}
    v_add_u32 v{VA}, {AT.VREG}, v{T+4}
    """)
    for dt in range(1, 8): a.I(f"v_xor_b32 v{VA+dt}, {dt*32}, v{VA}")
    def zero_o():
        for r in range(128): a.I(f"v_accvgpr_write_b32 a{AT.A_O + r}, 0")
        for r in range(16): a.I(f"v_mov_b32 v{AT.V_LSA + r}, 0")
    for r in range(4): a.I(f"v_mov_b32 v{AT.V_ONES + r}, 0x3f803f80")
    W(["K0"]); a.I("s_barrier")
    a.bg_add(kv((("v", 1), ("k", 3), ("v", 2))))
    for x in AT.k_reads(0): a.I(x)
    a.I("s_waitcnt lgkmcnt(0)")
    for x in AT.qk_mfmas(0, False): a.I(x)
    for x in AT.k_reads(1): a.I(x)
    a.force(None); a.auto = False
    PKR = 84; PKT = 80
    a.I(f"s_mov_b32 s90, {(1<<32)//6 + 1}")
    for p in range(3):
        a.I(f"""
        v_add_u32 v{T}, {p*64}, v0
        v_mul_hi_u32 v{T+1}, v{T}, s90
        v_mul_u32_u24 v{T+2}, 6, v{T+1}
        v_sub_u32 v{T+2}, v{T}, v{T+2}
        v_mul_u32_u24 v{T+1}, 1152, v{T+1}
        v_lshl_add_u32 v{PAT+p}, v{T+2}, 4, v{T+1}
        """)
        if p: a.I(f"v_subrev_u32 v{PAT+p}, {p*1024}, v{PAT+p}")
    a.I(f"""
    v_lshrrev_b32 v{T}, 2, v0
    v_mul_u32_u24 v{T}, 96, v{T}
    v_and_b32 v{T+1}, 3, v0
    v_lshl_add_u32 v{PKT}, v{T+1}, 3, v{T}
    s_add_u32 s91, s55, 0x20000
    v_add_u32 v{PKT}, s91, v{PKT}
    s_lshl_b32 s33, s2, 2
    s_add_u32 s33, s33, s24
    s_mul_i32 s63, s33, {SLAB}
    s_add_u32 s92, s33, 64
    s_mul_i32 s92, s92, {32*1152}
    s_add_u32 s92, s92, {3*288}
    s_add_u32 s93, s63, {1024*SLAB}
    s_cmp_ge_u32 s33, 64
    s_cselect_b32 s92, {OOB:#x}, s92
    s_cselect_b32 s93, {OOB:#x}, s93
    s_cmp_lt_u32 s33, 576
    s_cselect_b32 s12, s{P['w4']}, s{P['wo']}
    s_cselect_b32 s13, s{P['w4']+1}, s{P['wo']+1}
    s_mov_b32 s14, {4608*1152:#x}
    s_mov_b32 s34, {(1<<32)//144 + 1:#x}
    s_mov_b32 s35, 144
    s_cbranch_scc1 L_pk0
    s_sub_u32 s33, s33, 576
    s_mov_b32 s14, {4096*1152:#x}
    s_mov_b32 s34, {(1<<32)//128:#x}
    s_mov_b32 s35, 128
    """)
    a.label("L_pk0")
    a.I(f"""
    s_mov_b32 s15, 0x00020000
    s_mul_hi_u32 s34, s33, s34
    s_mul_i32 s35, s34, s35
    s_sub_u32 s33, s33, s35
    s_mul_i32 s33, s33, {32*1152}
    s_mul_i32 s34, s34, 288
    s_add_u32 s94, s33, s34
    s_mov_b32 s95, {OOB:#x}
    """)
    def pk_extra(k, dummy=False):
        if k in (0, 1, 2) and not dummy:
            return {6: ["s_mov_b32 m0, s91", "s_nop 0", ("vm", "PL", f"buffer_load_dwordx4 v{PAT+k}, s[12:15], s94 offen offset:{k*1024} {NT} lds")]}
        if k == 5 and not dummy:
            ex = {52: [lambda: W(["PL"])]}
            for n_ in range(6): ex[53 + 2*n_] = [f"ds_read_b64_tr_b16 {vr(PKR + (n_ >> 1)*4 + (n_ & 1)*2, 2)}, v{PKT} offset:{(n_ & 1)*16*96 + (n_ >> 1)*32}"]
            return ex
        if k in (6, 7):
            so = "s95" if dummy else "s63"
            ex = {}
            for n_ in ((0, 1) if k == 6 else (2,)):
                ex[6 + 12*(n_ & 1)] = [("vm", "PS", f"buffer_store_dwordx4 {vr(PKR + n_*4, 4)}, v{L16}, s[16:19], {so} offen offset:{n_*1024} sc1")]
            return ex
        return None
    PCS = [(0, 1), (2, 3), (4,), (5, 6), (7, 8)]
    PSZ = 10*1024
    GOFF = 64*16*PSZ
    srd(a, 20, P['ws'], 0x2800000, add_imm=WS_PART)
    srd(a, 16, P['ws'], 1088*SLAB, add_imm=WS_PK)
    a.I(f"""
    s_lshl_b32 s44, s52, 2
    s_add_u32 s44, s44, s49
    s_lshl_b32 s44, s44, 2
    s_add_u32 s44, s44, s54
    s_mul_i32 s44, s44, {4*PSZ}
    s_mul_i32 s33, s61, 5120
    s_add_u32 s44, s44, s33
    s_add_u32 s44, s44, {GOFF}
    s_add_u32 s45, s44, 3072
    s_cmp_ge_u32 s24, 2
    s_cselect_b32 s44, s45, s44
    s_add_u32 s45, s44, 2048
    s_cmp_ge_u32 s24, 2
    s_cselect_b32 s45, {OOB:#x}, s45
    """)
    for r in range(4): a.I(f"v_mov_b32 v{PKR+r}, -1")
    def sc_extra(d):
        ex = {}
        for k_ in range(3):
            ex[6 + 8*k_] = [f"s_add_u32 s33, s54, {d}\ns_and_b32 s33, s33, 3\ns_mul_i32 s33, s33, {PSZ}\ns_add_u32 s33, s33, s{44 if k_ < 2 else 45}",
                            ("vm", "SC", f"buffer_store_dwordx4 {vr(PKR, 4)}, v{L16}, s[20:23], s33 offen offset:{(k_%2)*1024} sc1")]
        return ex
    LSA = AT.V_LSA
    def rowmax(u, qt, dst):
        b = AT.sbuf(u) + 8*qt
        a.I(f"v_max3_f32 v{dst}, v{b}, v{b+1}, v{b+2}\nv_max3_f32 v{dst}, v{dst}, v{b+3}, v{b+4}\nv_max3_f32 v{dst}, v{dst}, v{b+5}, v{b+6}\nv_max_f32 v{dst}, v{dst}, v{b+7}")
        xlane(a, "v_max_f32", dst)
    for qt in range(4):
        rowmax(0, qt, T)
        for r in range(4): a.I(f"v_sub_f32 v{NEGM + 4*qt + r}, 0, v{T}")
        for r in range(8): a.I(f"v_sub_f32 v{AT.sbuf(0) + 8*qt + r}, v{AT.sbuf(0) + 8*qt + r}, v{T}")
    a.I("s_nop 1")
    pt(a, 'b0'); AT.body2(a, 0); AT.body2(a, 1); pt(a, 'b2')
    for u in range(2, 8):
        AT.body2(a, u, extra=sc_extra(u - 1) if (u < 5 and OPT.get("sent", 0)) else pk_extra(u, dummy=True))
        if u == 2:
            assert "X1" not in a.vm
            a.I("s_lshr_b32 s33, s48, 3\ns_lshl_b32 s33, s33, 5"); signal(a, 0x100)
    a.vm = [t for t in a.vm if t != "SC"]
    srd(a, 20, P['ws'], 0x1000000, add_imm=WS_O)
    pt(a, 'b8')
    a.I("s_mov_b32 s27, 6")
    if 'cyc' in PTS: a.I("s_memtime s[36:37]\ns_memrealtime s[38:39]")
    a.raw(".p2align 6"); a.label("L_att_loop")
    vb = list(a.vm)
    for u in range(8, 16): AT.body2(a, u, extra=pk_extra(u - 8))
    a.I(f"""
    s_add_u32 s94, s94, 96
    s_add_u32 s63, s63, 3072
    s_cmp_eq_u32 s27, 4
    s_cselect_b32 s94, s92, s94
    s_cselect_b32 s63, s93, s63
    s_cselect_b32 s12, s{P['wo']}, s12
    s_cselect_b32 s13, s{P['wo']+1}, s13
    s_cselect_b32 s14, {4096*1152:#x}, s14
    s_sub_u32 s27, s27, 1
    s_cmp_lg_u32 s27, 0
    s_cbranch_scc1 L_att_loop
    """)
    sh = lambda tag, d: tag if tag[0] == "P" else tag[0] + str(int(tag[1:]) + d)
    assert [sh(t, 4) for t in vb] == a.vm, (vb, a.vm)
    a.vm = [sh(t, 20) for t in a.vm]
    pt(a, 'b56')
    if 'cyc' in PTS: a.I("s_memtime s[40:41]\ns_memrealtime s[100:101]")
    BS4 = [192, 208, 128, 144, 160, 176, 224, 240, 72, 88, 104]; NB4 = 11
    def bset4(i): return BS4[i % NB4]
    STQ = [84, 88, 92, 28]; MU = 40; RS = 44
    def early4():
        it = dma_slab(PATB, 16, 92, 0, lambda o: f"s_add_u32 m0, s93, {o}", "Z0")
        for i in range(2):
            for qt in range(4):
                it += [f"s_add_u32 s3, s94, {qt*18*1024 + i*1024}", ("vm", f"B{i}", f"buffer_load_dwordx4 {ar(bset4(i) + qt*4, 4)}, v{L16}, s[12:15], s3 offen")]
        return it
    def spread(items, gaps):
        groups = []; cur = []
        for x in items:
            cur.append(x)
            if isinstance(x, tuple): groups.append(cur); cur = []
        return groups
    e4 = None
    for u in range(56, 64):
        extra = None
        if u == 61:
            pat_regs(a, PATB, 9216)
            srd(a, 16, P['ws'], 2048*64, add_imm=WS_ST)
            a.I(f"""
            s_lshl_b32 s62, s50, 4
            s_lshl_b32 s34, s24, 2
            s_add_u32 s62, s62, s34
            s_mul_i32 s94, s62, {18*1024}
            s_lshl_b32 s91, s62, 10
            s_mul_i32 s92, s24, {32*9216}
            s_mul_i32 s93, s24, {SLAB}
            v_and_b32 v{T+15}, 15, v0
            v_lshlrev_b32 v{T+15}, 6, v{T+15}
            v_and_b32 v{T+9}, 0x30, v0
            v_add_u32 v{T+15}, v{T+15}, v{T+9}
            s_mul_i32 s33, s51, 288
            """)
            for qt in range(4):
                a.vm_issue("ST"); a.I(f"buffer_load_dwordx4 {vr(STQ[qt], 4)}, v{T+15}, s[16:19], s91 offen offset:{qt*1024}")
            srd(a, 16, P['w3'], 0, add_lo=33)
            a.I(f"s_sub_u32 s18, {576*9216}, s33")
            e4 = spread(early4(), None)
        if u == 62: extra = {g: e4[k_] for k_, g in enumerate((34, 38, 42, 45, 48, 52, 56, 60, 65))}
        if u == 63: extra = {g: e4[9 + k_] for k_, g in enumerate((2, 8, 14, 20, 26, 34, 42, 50))}
        if u == 56:
            poll_issue(a, "P3", "s_lshl_b32 s33, s50, 3\nv_cmp_eq_u32 vcc, s33, v0\ns_nop 1"); a.force({"P3"})
        if u == 57:
            a.auto = False
            srd(a, 56, P['w3'], 576*9216)
            a.I(f"s_mul_i32 s35, s0, 81\ns_and_b32 s34, s2, 6\ns_mul_i32 s34, s34, 1152\ns_mov_b32 s33, {(1<<32)//18 + 1}")
            for i in range(2):
                a.I(f"""
                v_min_u32 v{T}, {80 - 64*i if i else 63}, v0
                v_add_u32 v{T}, s35, v{T}
                v_add_u32 v{T}, {64*i}, v{T}
                v_mul_hi_u32 v{T+1}, v{T}, s33
                v_mul_u32_u24 v{T+2}, 18, v{T+1}
                v_sub_u32 v{T}, v{T}, v{T+2}
                v_lshlrev_b32 v{T}, 7, v{T}
                v_mul_u32_u24 v{T+1}, 9216, v{T+1}
                v_add_u32 v{T}, v{T}, v{T+1}
                """)
                touch(a, 56, 34, 1, addr=T)
            srd(a, 56, P['dbg'], 256)
        if u == 58: poll_check(a, "P3", 8, 32)
        if u == 59:
            a.auto = False
            srd(a, 12, P['ws'], SZ_ACT, add_imm=WS_X1)
            a.I(f"s_and_b32 s35, s0, 31\ns_mul_i32 s35, s35, 9216\ns_mul_i32 s34, s50, {16*18*1024}\ns_add_u32 s35, s35, s34")
            touch(a, 12, 35, 1)
            a.I(f"s_add_u32 s35, s35, 8192\nv_min_u32 v{T}, 7, v0\nv_lshlrev_b32 v{T}, 7, v{T}"); touch(a, 12, 35, 1, addr=T)
        AT.body2(a, u, extra=extra)
    a.I(AT.sm_cvt(63, 14)); a.I(AT.sm_cvt(63, 15))
    for x in AT.v_reads(63): a.I(x)
    a.I(f"""
    s_mul_i32 s30, s24, {SLAB}
    v_subrev_u32 v{TRA}, s30, v{TRA}
    v_add_u32 v{TRB}, 64512, v{TRA}
    v_add_u32 v{TRC}, 129024, v{TRA}
    s_waitcnt lgkmcnt(0)
    """)
    for qt in range(4): a.I(mf(vr(LSA + 4*qt, 4), vr(AT.V_ONES, 4), vr(AT.sbuf(63) + qt*8, 4), vr(LSA + 4*qt, 4)))
    for x in AT.pv_mfmas(63): a.I(x)
    W(["ST"])
    a.I(f"s_mov_b32 s78, {f32(1/576):#x}\ns_mov_b32 s79, {f32(1/80):#x}\ns_mov_b32 s82, {f32(1/64):#x}\ns_mov_b32 s83, {f32(80.0):#x}\ns_mov_b32 s63, {f32(64.0):#x}\ns_mov_b32 s91, {f32(EPS):#x}")
    for qt in range(4):
        b = STQ[qt]
        a.I(f"v_add_f32 v{T}, v{b}, v{b+2}")
        xlane(a, "v_add_f32", T)
        a.I(f"""
        v_mul_f32 v{T}, s78, v{T}
        v_add_f32 v{T+2}, v{b+1}, v{b+3}
        v_fma_f32 v{T+4}, v{b}, s79, -v{T}
        v_mul_f32 v{T+5}, s83, v{T+4}
        v_fmac_f32 v{T+2}, v{T+5}, v{T+4}
        v_fma_f32 v{T+4}, v{b+2}, s82, -v{T}
        v_mul_f32 v{T+5}, s63, v{T+4}
        v_fmac_f32 v{T+2}, v{T+5}, v{T+4}
        v_sub_f32 v{MU+qt}, 0, v{T}
        """)
        xlane(a, "v_add_f32", T+2)
        a.I(f"v_mov_b32 v{T+4}, s91\nv_fmac_f32 v{T+4}, s78, v{T+2}\nv_rsq_f32 v{RS+qt}, v{T+4}")
    a.I(f"""
    s_mov_b32 s33, {AT.THR:#x}
    v_cmp_nle_f32 vcc, v{LSA}, s33
    v_cmp_nle_f32 s[34:35], v{LSA+4}, s33
    v_cmp_nle_f32 s[44:45], v{LSA+8}, s33
    v_cmp_nle_f32 s[60:61], v{LSA+12}, s33
    s_nop 1
    s_or_b64 vcc, vcc, s[34:35]
    s_or_b64 s[44:45], s[44:45], s[60:61]
    s_or_b64 vcc, vcc, s[44:45]
    s_cmp_lg_u64 vcc, 0
    s_cselect_b32 s33, 1, {OPT.get('fb', 0)}
    v_mov_b32 v{T}, s33
    v_lshlrev_b32 v{T+1}, 2, v0
    v_add_u32 v{T+1}, {QS}, v{T+1}
    s_lshl_b32 s34, s24, 8
    v_add_u32 v{T+5}, s34, v{T+1}
    ds_write_b32 v{T+5}, v{T}
    s_waitcnt lgkmcnt(0)
    s_barrier
    ds_read_b32 v{T}, v{T+1}
    ds_read_b32 v{T+2}, v{T+1} offset:256
    ds_read_b32 v{T+3}, v{T+1} offset:512
    ds_read_b32 v{T+4}, v{T+1} offset:768
    s_waitcnt lgkmcnt(0)
    v_or3_b32 v{T}, v{T}, v{T+2}, v{T+3}
    v_or_b32 v{T}, v{T}, v{T+4}
    s_nop 0
    v_readfirstlane_b32 s33, v{T}
    s_nop 3
    s_cmp_lg_u32 s33, 0
    s_cbranch_scc1 L_fallback
    """)
    a.label("L_att_epi"); pt(a, 'attl')
    a.I("s_mul_i32 s33, s51, 288")
    srd(a, 4, P['w3'], 0, add_lo=33)
    srd(a, 8, P['ws'], SZ_ACT, add_imm=WS_X1)
    a.I(f"""
    s_sub_u32 s6, {576*9216}, s33
    s_mul_i32 s25, s24, {32*9216}
    s_sub_u32 s47, s30, {SLAB}
    s_cmp_eq_u32 s24, 0
    s_cselect_b32 s47, {16*SLAB}, s47
    s_mul_i32 s26, s62, {18*1024}
    """)
    def loadW4(j):
        if j < 4: return dma_slab(PATB, 4, 25, j*128*9216, lambda o: f"s_add_u32 m0, s30, {j*4*SLAB + o}", f"Z{j}")
        return dma_slab(PATB, 4, 25, j*128*9216, lambda o: f"s_add_u32 m0, s47, {o}", f"Z{j}")
    def loadB4(i):
        r = []
        for qt in range(4):
            r.append(f"s_add_u32 s3, s26, {qt*18*1024 + i*1024}")
            r.append(("vm", f"B{i}", f"buffer_load_dwordx4 {ar(bset4(i) + qt*4, 4)}, v{L16}, s[8:11], s3 offen"))
        return r
    for qt in range(4): a.I(f"v_rcp_f32 v{T+10+qt}, v{LSA+4*qt}")
    a.pace = OPT["pace"]; a.auto = True
    a.bg_add(loadW4(1) + loadB4(2) + loadB4(3) + loadW4(2) + loadB4(4) + loadB4(5) + loadW4(3) + loadB4(6) + loadB4(7))
    a.I(f"s_lshl_b32 s33, s46, 17\ns_lshl_b32 s34, s31, 12\ns_add_u32 s63, s33, s34")
    tb = 128
    for qt in range(4):
        for t in range(4):
            src = AT.A_O + (qt*4+t)*8
            tt = tb; tb += 8
            for i in range(8): a.I(f"v_accvgpr_read_b32 v{tt+i}, a{src+i}")
            for i in range(0, 8, 2): a.I(f"v_pk_mul_f32 v[{tt+i}:{tt+i+1}], v[{tt+i}:{tt+i+1}], v[{T+10+(qt&2)}:{T+11+(qt&2)}] op_sel:[0,{qt&1}] op_sel_hi:[1,{qt&1}]")
            for i in range(4): a.I(f"v_cvt_pk_bf16_f32 v{tt+i}, v{tt+2*i}, v{tt+2*i+1}")
            a.vm_issue("O"); a.I(f"buffer_store_dwordx4 {vr(tt,4)}, v{L16}, s[20:23], s63 offen offset:{t*1024} sc1")
        if qt < 3: a.I("s_add_u32 s63, s63, 0x20000")
    pt(a, 'att')
    a.bg_add(loadB4(8) + loadB4(9) + loadB4(10))
    ONE4 = 72; CS = 76; ACC4 = 112; A4 = 0
    for r in range(4): a.I(f"v_mov_b32 v{ONE4+r}, 0x3f803f80")
    def slot4(i): return (i if i < 17 else 0) * SLAB
    COS = OPT.get("cos", 1); COC = OPT.get("coc", 10)
    srd(a, 16, P['ws'], 1088*SLAB, add_imm=WS_PK)
    a.I(f"""
    s_mul_i32 s78, s49, 144
    s_mul_i32 s33, s54, 36
    s_add_u32 s78, s78, s33
    s_add_u32 s78, s78, s24
    s_mul_i32 s78, s78, {SLAB}
    s_lshl_b32 s79, s49, 7
    s_lshl_b32 s33, s54, 5
    s_add_u32 s79, s79, s33
    s_add_u32 s79, s79, s24
    s_mul_i32 s79, s79, {SLAB}
    s_add_u32 s79, s79, {PK_WO}
    s_lshl_b32 s44, s52, 3
    s_lshl_b32 s34, s24, 1
    s_add_u32 s44, s44, s34
    s_lshl_b32 s27, s44, 17
    s_lshl_b32 s33, s54, 15
    s_add_u32 s27, s27, s33
    s_mul_i32 s28, s44, {144*1024}
    s_mul_i32 s33, s54, {36*1024}
    s_add_u32 s28, s28, s33
    v_add_u32 v{XA}, {128*1024}, v{L16}
    """)
    NS = 68; ACC5 = 184; A5 = 0; NB5 = 13; B5 = 72
    def slot5(i): return ((i + 4) % 16) * SLAB
    a.I("s_and_b32 s77, s52, 7\ns_lshl_b32 s33, s49, 1\ns_add_u32 s77, s77, s33")
    if not OPT.get("rot5", 0): a.I("s_mov_b32 s77, 0")
    def rotg(j, dst):
        n, g = (8, j) if j < 8 else (9, j - 8)
        a.I(f"s_add_u32 s{dst}, s77, {g}")
        if n == 8: a.I(f"s_and_b32 s{dst}, s{dst}, 7")
        else:
            for _ in range(2): a.I(f"s_sub_u32 s33, s{dst}, 9\ns_cmp_ge_u32 s{dst}, 9\ns_cselect_b32 s{dst}, s33, s{dst}")
    GA = [66, 67, 68, 69]; GB = [70, 71, 72, 73, 76]
    def loadW5(j):
        d = GA[j % 4]
        for g in a.bg:
            for x in g: assert f"s{d}," not in str(x)
        rotg(j, d); a.I(f"s_mul_i32 s{d}, s{d}, {4*SLAB}\ns_add_u32 s{d}, s{d}, s{79 if j < 8 else 78}")
        r = []
        for p in range(9):
            if p % 4 == 0: r += [f"s_add_u32 m0, s30, {((j + 1) % 4)*4*SLAB + p*1024}", f"s_add_u32 s83, s{d}, {p*1024}"]
            r.append(("vm", f"Y{j}", f"buffer_load_dwordx4 v{L16}, {'s[16:19]' if j < 3 else 's[4:7]'}, s83 offen offset:{(p%4)*1024} lds"))
        return r
    B5S = [72 + 8*k_ for k_ in range(7)] + [192, 200, 208, 216, 128, 136]
    def b5(i): return B5S[i % NB5]
    def loadB5(i):
        r = []
        d = GB[(i // 4) % 5]
        if i % 4 == 0:
            for g in a.bg:
                for x in g: assert f"s{d}," not in str(x) and f"s{d} " not in str(x)
            rotg(i // 4, d); a.I(f"s_lshl_b32 s{d}, s{d}, 12\ns_add_u32 s{d}, s{d}, s{27 if i < 32 else 28}")
        sr = "s[20:23]" if i < NB5 else "s[8:11]" if i < 32 else "s[12:15]"
        r.append(("vm", f"C{i}", f"buffer_load_dwordx4 {ar(b5(i), 4)}, v{L16}, {sr}, s{d} offen offset:{(i%4)*1024}"))
        r.append(("vm", f"C{i}", f"buffer_load_dwordx4 {ar(b5(i) + 4, 4)}, v{XA if i < 32 else T+14}, {sr}, s{d} offen offset:{(i%4)*1024}"))
        return r
    pt(a, 't4a'); W(["Z0"]); a.I("s_barrier"); pt(a, 't4b')
    for x in a_reads(A4, 0): a.I(x)
    for i in range(18):
        a.C(f"T4 step {i}"); pt(a, f"f{i}")
        if i % 4 == 3:
            W([f"Z{(i+1)//4}", f"B{i}"] + (["O", "PS"] if i == COS else []), " lgkmcnt(0)"); a.I("s_barrier")
            if i == COS: a.I("s_lshl_b32 s33, s32, 5"); signal(a, 0x1000000)
            if i == 3: a.bg_add(loadW4(4))
        elif i == COS:
            W([f"B{i}", "O", "PS"], " lgkmcnt(0)"); a.I("s_barrier")
            a.I("s_lshl_b32 s33, s32, 5"); signal(a, 0x1000000)
        else:
            W([f"B{i}"], " lgkmcnt(0)")
        if i == COC - 2: poll_issue(a, "P5", f"v_and_b32 v{T+2}, 7, v0\nv_cmp_eq_u32 vcc, 0, v{T+2}\ns_nop 1")
        if i == COC:
            pt(a, 'coa'); poll_check(a, "P5", 24, 32); pt(a, 'cob')
        if i == 11:
            assert COC == 10
            it = loadW5(0)
            for k_ in range(4): it += loadB5(k_)
            it += loadW5(1)
            for k_ in range(4, 7): it += loadB5(k_)
            a.bg_add(it)
        if i == 14:
            it = []
            for k_ in range(7, NB5): it += loadB5(k_)
            a.bg_add(it)
        if i == 15: a.bg_add(loadW5(2))
        if i == OPT.get("pf5", 99):
            a.auto = False
            a.I(f"""
            s_lshr_b32 s33, s0, 5
            s_lshl_b32 s33, s33, 7
            s_lshl_b32 s34, s54, 5
            s_add_u32 s33, s33, s34
            s_add_u32 s33, s33, 12
            s_mul_i32 s33, s33, {SLAB}
            s_and_b32 s35, s0, 31
            s_mul_i32 s35, s35, {45*128}
            s_add_u32 s35, s35, s33
            s_add_u32 s35, s35, {PK_WO}
            """)
            touch(a, 16, 35, 1)
            a.I(f"""
            s_and_b32 s33, s52, 8
            s_lshl_b32 s33, s33, 3
            s_lshr_b32 s35, s0, 1
            s_add_u32 s33, s33, s35
            s_lshl_b32 s33, s33, 17
            s_lshl_b32 s34, s54, 15
            s_add_u32 s33, s33, s34
            s_and_b32 s35, s0, 1
            s_mul_i32 s35, s35, {10*1024}
            s_add_u32 s35, s35, s33
            s_add_u32 s35, s35, {13*1024}
            """)
            touch(a, 20, 35, 1)
            a.I(f"s_add_u32 s35, s35, 2048"); touch(a, 20, 35, 1)
            a.auto = True
        rd = a_reads(A4 + 36*((i+1) % 2), slot4(i+1)) if i + 1 < 18 else []
        k = 0
        for ft in range(9):
            for qt in range(4):
                d = vr(ACC4 + (qt*9+ft)*4, 4)
                a.I(mf(d, ar(A4 + 36*(i % 2) + ft*4, 4), ar(bset4(i) + qt*4, 4), d if i else "0"))
                if (ft*4+qt) % 3 != 2 and k < len(rd):
                    a.auto = False; a.I(rd[k]); k += 1; a.auto = True
        a.auto = False
        a.I(f"s_cmp_gt_u32 s24, 1\ns_cbranch_scc1 L_cs{i}_2\ns_cmp_eq_u32 s24, 1\ns_cbranch_scc1 L_cs{i}_1")
        for w in range(4):
            if w: a.label(f"L_cs{i}_{w}")
            if w == 2: a.I(f"s_cmp_eq_u32 s24, 3\ns_cbranch_scc1 L_cs{i}_3")
            for k_, ft in enumerate(range(w, 9, 4)):
                d = vr(CS + k_*4, 4)
                a.I(mf(d, ar(A4 + 36*(i % 2) + ft*4, 4), vr(ONE4, 4), d if i else "0"))
            if w < 3: a.I(f"s_branch L_cs{i}")
        a.label(f"L_cs{i}"); a.auto = True
        if i + NB4 < 18: a.bg_add(loadB4(i + NB4))
    pt(a, 't4m')
    a.I(f"""
    s_nop 7
    s_barrier
    v_lshrrev_b32 v{T+6}, 4, v0
    v_lshlrev_b32 v{T+6}, 4, v{T+6}
    v_add_u32 v{T+6}, {QS}, v{T+6}
    s_lshl_b32 s33, s24, 6
    v_add_u32 v{T+1}, s33, v{T+6}
    """)
    for k_ in range(3): a.I(f"ds_write_b128 v{T+1}, {vr(CS + k_*4, 4)} offset:{k_*256}")
    a.I("s_waitcnt lgkmcnt(0)\ns_barrier")
    a.force(None)
    srd(a, 4, P['ws'], 1088*SLAB, add_imm=WS_PK)
    srd(a, 8, P['ws'], 0x1000000, add_imm=WS_O)
    a.bg_add(loadW5(3))
    a.pace = OPT.get("pacee", OPT["pace"])
    for ft in range(9): a.I(f"ds_read_b128 {vr(CS + ft*4, 4)}, v{T+6} offset:{ft*64}")
    srd(a, 16, P['ws'], 0x1200000, add_imm=WS_H3)
    srd(a, 12, P['ws'], 0x1200000, add_imm=WS_H3)
    a.I(f"s_mov_b32 s92, {f32(C2):#x}\ns_mov_b32 s93, {f32(C2):#x}\nv_mov_b32 v{T+4}, {f32(C1):#x}\nv_mov_b32 v{T+5}, {f32(C1):#x}\ns_waitcnt lgkmcnt(0)")
    a.auto = False
    a.I(f"""
    s_mul_i32 s60, s51, 9
    s_lshr_b32 s33, s60, 1
    s_lshl_b32 s33, s33, 10
    s_mul_i32 s47, s62, {144*1024}
    s_add_u32 s47, s47, s33
    v_add_u32 v{T+10}, 0x1000, v{L16}
    s_bitcmp1_b32 s51, 0
    s_cbranch_scc1 L_t4odd
    """)
    a.auto = True
    import copy
    st0 = (list(a.vm), copy.deepcopy(a.bg), a.cyc, a.last_bg)
    ends = []
    for par in range(2):
        a.vm, a.bg, a.cyc, a.last_bg = list(st0[0]), copy.deepcopy(st0[1]), st0[2], st0[3]
        if par: a.label("L_t4odd")
        for qt in range(4):
            pt(a, f"e{qt}")
            a.I(f"v_mov_b32 v{T+6}, v{MU+qt}\nv_mov_b32 v{T+8}, v{RS+qt}")
            for ft in range(9):
                b = ACC4 + (qt*9+ft)*4; c = CS + ft*4; t = T + 12
                for h in (0, 2):
                    a.I(f"v_pk_fma_f32 v[{b+h}:{b+h+1}], v[{c+h}:{c+h+1}], v[{T+6}:{T+7}], v[{b+h}:{b+h+1}] op_sel_hi:[1,0,1]")
                for h in (0, 2):
                    a.I(f"v_pk_mul_f32 v[{b+h}:{b+h+1}], v[{b+h}:{b+h+1}], v[{T+8}:{T+9}] op_sel_hi:[1,0]")
                gelu4(a, b, t, T + 4, 92)
                gt = ft + par; ks = gt >> 1; half = gt & 1
                ad = f"v{L16 if ks < 4 else T+10}"; off = (ks % 4) * 1024
                if half == 0 and ft < 8:
                    a.I(f"v_cvt_pk_bf16_f32 v{b}, v{b}, v{b+1}\nv_cvt_pk_bf16_f32 v{b+1}, v{b+2}, v{b+3}")
                elif half == 1 and ft > 0:
                    pb = b - 4
                    a.I(f"v_cvt_pk_bf16_f32 v{pb+2}, v{b}, v{b+1}\nv_cvt_pk_bf16_f32 v{pb+3}, v{b+2}, v{b+3}")
                    a.vm_issue("H3"); a.I(f"buffer_store_dwordx4 v[{pb}:{pb+3}], {ad}, s[16:19], s47 offen offset:{off} sc1") if not OPT.get("nost") else None
                else:
                    a.I(f"v_cvt_pk_bf16_f32 v{b}, v{b}, v{b+1}\nv_cvt_pk_bf16_f32 v{b+1}, v{b+2}, v{b+3}")
                    a.vm_issue("H3"); a.I(f"buffer_store_dwordx2 v[{b}:{b+1}], {ad}, s[16:19], s47 offen offset:{off + half*8} sc1") if not OPT.get("nost") else None
            if qt < 3: a.I(f"s_add_u32 s47, s47, {144*1024}")
        pt(a, "e4")
        a.force(None)
        a.vm_issue("H3L"); a.I(f"buffer_load_dword v{PFD}, v{L16}, s[4:7], 0 offen")
        ends.append(list(a.vm))
        if par == 0: a.I("s_branch L_t4done")
    a.label("L_t4done")
    a.vm = [t for t in ends[0] if t != "H3"]
    assert a.vm == [t for t in ends[1] if t != "H3"]
    pt(a, 't4')
    a.pace = OPT["pace5"]
    srd(a, 16, P['ws'], 0x2800000, add_imm=WS_PART)
    srd(a, 20, P['x'], SZ_ACT)
    a.I(f"""
    s_lshl_b32 s47, s52, 2
    s_add_u32 s47, s47, s49
    s_lshl_b32 s93, s47, 2
    s_add_u32 s93, s93, s24
    s_lshl_b32 s93, s93, 2
    s_add_u32 s93, s93, s54
    s_mul_i32 s93, s93, {PSZ}
    s_lshl_b32 s92, s47, 8
    s_cmp_ge_u32 s24, 2
    s_cselect_b32 s34, 5, 0
    s_mul_i32 s60, s49, 9
    s_add_u32 s60, s60, s34
    s_lshl_b32 s44, s52, 3
    s_lshl_b32 s33, s54, 1
    s_add_u32 s44, s44, s33
    s_and_b32 s61, s24, 1
    s_add_u32 s44, s44, s61
    s_mul_i32 s45, s44, {16*1152}
    s_lshl_b32 s34, s60, 5
    s_add_u32 s45, s45, s34
    s_mul_i32 s34, s44, {18*1024}
    v_add_u32 v{T+10}, s34, v{L16}
    s_lshl_b32 s94, s47, 2
    s_add_u32 s94, s94, s54
    s_mul_i32 s94, s94, {4*PSZ}
    s_mul_i32 s33, s61, 5120
    s_add_u32 s94, s94, s33
    s_add_u32 s91, s94, 3072
    s_cmp_ge_u32 s24, 2
    s_cselect_b32 s94, s91, s94
    s_add_u32 s91, s94, 2048
    s_cmp_ge_u32 s24, 2
    s_cselect_b32 s91, {OOB:#x}, s91
    """)
    def flush_global():
        for qt in range(2):
            for k_, tl in enumerate(PCS):
                b = ACC5 + (qt*9 + tl[0])*4
                a.I(f"v_cvt_pk_bf16_f32 v{b}, v{b}, v{b+1}\nv_cvt_pk_bf16_f32 v{b+1}, v{b+2}, v{b+3}")
                if len(tl) == 2: a.I(f"v_cvt_pk_bf16_f32 v{b+2}, v{b+4}, v{b+5}\nv_cvt_pk_bf16_f32 v{b+3}, v{b+6}, v{b+7}")
                p = qt*5 + k_
                a.vm_issue("PT0"); a.I(f"buffer_store_dwordx4 {vr(b, 4)}, v{L16}, s[16:19], s93 offen offset:{(p%4)*1024} sc1")
                if p % 4 == 3: a.I("s_add_u32 s93, s93, 4096")
    XV = 28; X1V = 38
    a.I(f"v_add_u32 v{T+14}, {144*1024}, v{L16}\nv_mov_b32 v{TRA}, v{L16}\nv_add_u32 v{TRB}, 64512, v{L16}\nv_add_u32 v{TRC}, 129024, v{L16}")
    def f_reads(dst, off):
        base = off // 64512; o = off - base * 64512
        return [f"ds_read_b128 {ar(dst + nt*4, 4)}, v{TRA+base} offset:{o + nt*1024}" for nt in range(9)]
    W(["Y0"]); a.I("s_barrier")
    for x in f_reads(A5, slot5(0)): a.I(x)
    for i in range(NS):
        a.C(f"T5 step {i}"); pt(a, f"s{i}a")
        if i % 4 == 3 and i + 1 < NS:
            b = (i + 1) // 4
            need = {f"Y{b}", f"C{i}"}
            if i == OPT.get("c4s", 7): need |= {"H3L"}
            if i == OPT.get("pts", 39): need |= {"PT0"}
            W(need, " lgkmcnt(0)"); a.I("s_barrier")
            if i == OPT.get("c4s", 7):
                a.I("s_lshl_b32 s33, s50, 5"); signal(a, 0x10000)
            if i == OPT.get("pts", 39):
                srd(a, 56, P['ws'], 0x10000, add_imm=WS_CX)
                a.I("s_mov_b32 s33, s92"); signal(a, 1)
            if b + 3 < 17: a.bg_add(loadW5(b + 3))
        else:
            W([f"C{i}"], " lgkmcnt(0)")
        if i == OPT.get('xls', 5):
            for j in range(5):
                a.vm_issue("XL"); a.I(f"buffer_load_dwordx2 v[{XV+2*j}:{XV+2*j+1}], v{XD}, s[20:23], s45 offen offset:{j*32}")
            srd(a, 20, P['ws'], SZ_ACT, add_imm=WS_X1)
        if i == OPT.get('xls', 5) + 1:
            for j in range(5):
                piece_off(j, 35)
                a.vm_issue("XL"); a.I(f"buffer_load_dwordx2 v[{X1V+2*j}:{X1V+2*j+1}], v{T+10}, s[20:23], s35 offen")
        if i == OPT.get('w4t', 8):
            a.I(f"""
            s_lshr_b32 s33, s0, 5
            s_mul_i32 s33, s33, 144
            s_mul_i32 s34, s54, 36
            s_add_u32 s33, s33, s34
            s_mul_i32 s33, s33, {SLAB}
            s_and_b32 s35, s0, 31
            s_mul_i32 s35, s35, {81*128}
            s_add_u32 s35, s35, s33
            """)
            touch(a, 4, 35, 2)
        if i == 15: poll_issue(a, "P4", "s_lshr_b32 s33, s52, 1\ns_lshl_b32 s33, s33, 3\nv_cmp_eq_u32 vcc, s33, v0\ns_nop 1")
        if i == 18:
            pt(a, 'c4a'); poll_check(a, "P4", 16, 32); pt(a, 'c4b')
        if i == 19 and OPT.get("pfh3", 0):
            a.I(f"""
            s_and_b32 s35, s0, 15
            s_lshr_b32 s33, s35, 1
            s_lshl_b32 s34, s52, 3
            s_add_u32 s33, s33, s34
            s_mul_i32 s33, s33, {144*1024}
            s_mul_i32 s34, s54, {36*1024}
            s_add_u32 s33, s33, s34
            s_and_b32 s35, s35, 1
            s_mul_i32 s35, s35, 18432
            s_add_u32 s35, s35, s33
            """)
            touch(a, 12, 35, 3)
        if i == 51: poll_issue(a, "P6", "v_cmp_eq_u32 vcc, 0, v0\ns_nop 1", 56, "s92")
        if i == 54: poll_check(a, "P6", 0, 4, 56, "s92")
        if i == 55:
            it = []
            for src in range(4):
                for k_ in range(3):
                    it.append(f"s_add_u32 s82, s{94 if k_ < 2 else 91}, {src*PSZ}")
                    it.append(("vm", "HP", f"buffer_load_dwordx4 {vr(128 + (src*3+k_)*4, 4)}, v{L16}, s[16:19], s82 offen offset:{(k_%2)*1024}"))
            a.bg_add(it)
        rd = f_reads(A5 + 36*((i+1) % 2), slot5(i+1)) if i + 1 < NS else []
        first = i in (0, 32)
        k = 0
        for nt in range(9):
            for qt in range(2):
                d = vr(ACC5 + (qt*9+nt)*4, 4)
                if qt == 0 and k < len(rd) and nt < 7: a.auto = False
                a.I(mf(d, ar(A5 + 36*(i % 2) + nt*4, 4), ar(b5(i) + qt*4, 4), "0" if first else d))
                if (qt == 0 or nt < 2) and k < len(rd):
                    a.auto = False; a.I(rd[k]); k += 1
                a.auto = True
        assert not (i + NB5 >= 32 and i < 19)
        if i + NB5 < NS: a.bg_add(loadB5(i + NB5), front=True)
        if i == 31:
            a.auto = False
            a.I("s_nop 7")
            flush_global()
            a.I(f"s_add_u32 s93, s93, {GOFF - 8192}\ns_nop 0"); a.auto = True
    a.force(None); a.auto = False
    pt(a, 't5')
    a.I("s_nop 7\ns_barrier\ns_cmp_eq_u32 s24, s54\ns_cbranch_scc1 L_own")
    flush_global()
    a.I("s_waitcnt vmcnt(10)\ns_branch L_own_done")
    a.label("L_own")
    for t in range(18): a.I(f"ds_write_b128 v{L16}, {vr(ACC5 + t*4, 4)} offset:{t*1024}")
    a.I("s_waitcnt vmcnt(0)")
    a.label("L_own_done")
    SV = 64; XF = 84; X1F = 104
    def add_pieces(dst, base, nsrc, first):
        for j in range(5):
            for s_ in range(nsrc):
                p = base + (s_*3 + j//2)*4 + (j % 2)*2; d = dst + j*4; e = T + 2*((j*nsrc + s_) % 2)*2
                if first and s_ == 0:
                    a.I(f"v_lshlrev_b32 v{d}, 16, v{p}\nv_and_b32 v{d+1}, 0xffff0000, v{p}\nv_lshlrev_b32 v{d+2}, 16, v{p+1}\nv_and_b32 v{d+3}, 0xffff0000, v{p+1}")
                else:
                    a.I(f"v_lshlrev_b32 v{e}, 16, v{p}\nv_and_b32 v{e+1}, 0xffff0000, v{p}\nv_lshlrev_b32 v{e+2}, 16, v{p+1}\nv_and_b32 v{e+3}, 0xffff0000, v{p+1}")
                    a.I(f"v_pk_add_f32 v[{d}:{d+1}], v[{d}:{d+1}], v[{e}:{e+1}]\nv_pk_add_f32 v[{d+2}:{d+3}], v[{d+2}:{d+3}], v[{e+2}:{e+3}]")
    add_pieces(SV, 128, 4, True)
    for j in range(5):
        for (src, dst) in ((XV + 2*j, XF + 4*j), (X1V + 2*j, X1F + 4*j)):
            a.I(f"v_lshlrev_b32 v{dst}, 16, v{src}\nv_and_b32 v{dst+1}, 0xffff0000, v{src}\nv_lshlrev_b32 v{dst+2}, 16, v{src+1}\nv_and_b32 v{dst+3}, 0xffff0000, v{src+1}")
    srd(a, 20, P['out'], SZ_ACT)
    PR = 128
    a.I(f"""
    s_mov_b32 s63, {f32(-1.4426950408889634):#x}
    v_add_u32 v{T+8}, s53, v{L16}
    s_waitcnt {"" if OPT.get("sent", 0) else "vmcnt(0) "}lgkmcnt(0)
    s_barrier
    s_mov_b32 s27, 20000
    """)
    pt(a, 'pst')
    if not OPT.get("sent", 0):
        a.I(f"""
        v_mov_b32 v{T}, 0
        s_cmp_lg_u32 s24, 0
        s_cbranch_scc1 L_cx_wait
        v_mov_b32 v{T+1}, 0x100
        s_mov_b64 exec, 1
        buffer_atomic_add v{T+1}, v{T}, s[56:59], s92 offen
        s_mov_b64 exec, -1
        s_mov_b32 s35, 400000
        """)
        a.label("L_cx_poll")
        a.I(f"""
        buffer_load_dword v{T+1}, v{T}, s[56:59], s92 offen sc1
        s_waitcnt vmcnt(0)
        v_readfirstlane_b32 s34, v{T+1}
        s_cmp_ge_u32 s34, 0x400
        s_cbranch_scc1 L_cx_wait
        s_sleep 1
        s_sub_u32 s35, s35, 1
        s_cmp_lg_u32 s35, 0
        s_cbranch_scc1 L_cx_poll
        """)
        a.label("L_cx_wait")
        a.I("s_barrier\ns_mov_b32 s27, 1")
    for j in range(5): a.I(f"ds_read_b128 {vr(192 + j*4, 4)}, v{T+8} offset:{j*1024}")
    for d in range(1, 4):
        a.I(f"s_add_u32 s33, s54, {d}\ns_and_b32 s33, s33, 3\ns_mul_i32 s33, s33, {PSZ}\ns_add_u32 s33, s33, {GOFF}\ns_add_u32 s{64+2*d}, s33, s94\ns_add_u32 s{65+2*d}, s33, s91")
    a.I("s_waitcnt lgkmcnt(0)")
    for j in range(5):
        b = 192 + j*4
        for h in (0, 2): a.I(f"v_pk_add_f32 v[{X1F+4*j+h}:{X1F+4*j+h+1}], v[{X1F+4*j+h}:{X1F+4*j+h+1}], v[{b+h}:{b+h+1}]")
    a.label("L_fin_poll")
    for d in range(1, 4):
        for k_ in range(3):
            a.I(f"buffer_load_dwordx4 {vr(PR + ((d-1)*3+k_)*4, 4)}, v{L16}, s[16:19], s{64+2*d if k_ < 2 else 65+2*d} offen offset:{(k_%2)*1024} sc1")
    regs = [PR + (dd*3+k_)*4 + r for dd in range(3) for k_ in range(3) for r in range(4 if k_ < 2 else 2)]
    a.I(f"s_waitcnt vmcnt(0)\nv_max3_u32 v{T}, v{regs[0]}, v{regs[1]}, v{regs[2]}")
    for k_ in range(3, len(regs) - 1, 2): a.I(f"v_max3_u32 v{T}, v{T}, v{regs[k_]}, v{regs[k_+1]}")
    a.I(f"""
    v_max_u32 v{T}, v{T}, v{regs[-1]}
    v_cmp_eq_u32 vcc, -1, v{T}
    s_sub_u32 s27, s27, 1
    s_cbranch_vccz L_fin_ok
    s_cmp_lg_u32 s27, 0
    s_cbranch_scc1 L_fin_poll
    """)
    a.label("L_fin_ok"); pt(a, 'cx')
    add_pieces(X1F, PR, 3, False)
    for j in range(5):
        b = 192 + j*4; e = XF + j*4; g = SV + j*4; y = X1F + 4*j
        for r in range(4): a.I(f"v_mul_f32 v{b+r}, s63, v{y+r}")
        for r in range(4): a.I(f"v_exp_f32 v{b+r}, v{b+r}")
        for h in (0, 2): a.I(f"v_pk_mul_f32 v[{y+h}:{y+h+1}], v[{y+h}:{y+h+1}], v[{g+h}:{g+h+1}]")
        for r in range(4): a.I(f"v_add_f32 v{b+r}, 1.0, v{b+r}")
        for r in range(4): a.I(f"v_rcp_f32 v{b+r}, v{b+r}")
        a.I("s_nop 0")
        for h in (0, 2): a.I(f"v_pk_fma_f32 v[{e+h}:{e+h+1}], v[{y+h}:{y+h+1}], v[{b+h}:{b+h+1}], v[{e+h}:{e+h+1}]")
        a.I(f"v_cvt_pk_bf16_f32 v{b}, v{e}, v{e+1}\nv_cvt_pk_bf16_f32 v{b+1}, v{e+2}, v{e+3}")
        if j == 4: a.I(f"s_cmp_ge_u32 s24, 2\ns_cselect_b32 s45, {OOB:#x}, s45")
        a.I(f"buffer_store_dwordx2 v[{b}:{b+1}], v{XD}, s[20:23], s45 offen offset:{j*32} {('sc1', 'nt', '')[OPT.get('outst', 2)]}")
    if OPT.get("dbgst"):
        a.I("s_waitcnt vmcnt(0)\ns_memrealtime s[64:65]\ns_waitcnt lgkmcnt(0)")
        srd(a, 4, P['dbg'], 256)
        a.I(f"s_xor_b32 s33, s2, {OPT['dbgst'] - 1}\ns_or_b32 s33, s33, s24\ns_cmp_eq_u32 s33, 0\ns_cselect_b32 s33, 0, {OOB:#x}\nv_mov_b32 v1, 0")
        for j, r in zip((2, 3, 4, 5, 6, 7), MIDS + [64]):
            a.I(f"s_sub_u32 s34, s{r}, s96\nv_mov_b32 v2, s34\nbuffer_store_dword v2, v1, s[4:7], s33 offen offset:{4*j}")
    else: g_end(a, 1, wsreg=P['ws'])
    a.label("L_exit")
    a.I("s_endpgm")
    a.label("L_fallback")
    a.I("s_waitcnt vmcnt(0)")
    zero_o()
    M = AT.V_M
    AT.V_LS = LS = 84
    for qt in range(4): a.I(f"v_mov_b32 v{M+qt}, 0xff800000\nv_mov_b32 v{LS+qt}, 0")
    a.I("s_mov_b32 s30, s55\ns_mov_b32 s25, s30\ns_mov_b32 s26, s30\ns_mov_b32 s27, 64")
    a.label("L_fb_loop")
    a.I("s_bitcmp1_b32 s27, 0\ns_cbranch_scc1 L_fb_odd\ns_barrier")
    for x in AT.dma_k(a, 0) + AT.dma_v(a, 0): a.I(x[2] if isinstance(x, tuple) else x + "\ns_nop 0")
    a.I("s_waitcnt vmcnt(0)\ns_barrier")
    a.label("L_fb_odd")
    for x in AT.k_reads(0): a.I(x)
    a.I("s_waitcnt lgkmcnt(0)")
    for x in AT.v_reads(0): a.I(x)
    a.I("s_waitcnt lgkmcnt(0)")
    for r in range(12): a.I(f"v_xor_b32 v{KA+r}, 0x2000, v{KA+r}")
    for x in AT.qk_mfmas(0, False): a.I(x)
    a.I("s_nop 7\ns_nop 7")
    for qt in range(4):
        rowmax(0, qt, T)
        a.I(f"v_max_f32 v{T}, v{T}, v{M+qt}\nv_sub_f32 v{T+2}, v{M+qt}, v{T}\nv_exp_f32 v{T+2}, v{T+2}\nv_mov_b32 v{M+qt}, v{T}\nv_mul_f32 v{LS+qt}, v{LS+qt}, v{T+2}")
        for r in range(0, 32, 4):
            o = AT.A_O + qt*32 + r
            for i in range(4): a.I(f"v_accvgpr_read_b32 v{T+4+i}, a{o+i}")
            for i in range(4): a.I(f"v_mul_f32 v{T+4+i}, v{T+4+i}, v{T+2}")
            for i in range(4): a.I(f"v_accvgpr_write_b32 a{o+i}, v{T+4+i}")
        for r in range(8):
            e = 8*qt + r
            a.I(f"v_sub_f32 v{AT.sbuf(0)+e}, v{AT.sbuf(0)+e}, v{T}"); a.I(AT.sm_exp(0, e))
        a.I("s_nop 0")
        for r in range(8): a.I(AT.sm_add(0, 8*qt + r))
        for p in range(4): a.I(AT.sm_cvt(0, 4*qt + p))
    a.I("s_nop 1")
    for x in AT.pv_mfmas(0): a.I(x)
    a.I("s_nop 7\ns_nop 7")
    a.I("s_sub_u32 s27, s27, 1\ns_cmp_lg_u32 s27, 0\ns_cbranch_scc1 L_fb_loop")
    for qt in range(4):
        a.I(f"v_mov_b32 v{T}, v{LS+qt}"); xlane(a, "v_add_f32", T); a.I(f"v_mov_b32 v{LSA+4*qt}, v{T}")
    a.I(f"s_mul_i32 s30, s24, {SLAB}\ns_barrier")
    for x in early4(): a.I(x[2] if isinstance(x, tuple) else x)
    a.I("s_waitcnt vmcnt(0)\ns_branch L_att_epi")
    a.label("L_code_end")
    return a

def build(path):
    a = gen()
    hdr = open("recurrent_scan__mha_block_cached__mixer_s_mlp__prompt.s.ref").read().split("; Override launch")[0]
    hdr += "; @launch grid=(256,1,1) block=(256,1,1) lds=163840\n"
    hdr += '.amdgcn_target "amdgcn-amd-amdhsa--gfx950"\n'
    txt = "\n".join(l[4:] if l.startswith("    ") else l for l in a.L) + "\n"
    open(path, "w").write(hdr + txt + kernel_desc(NAME, 512, 256))
if __name__ == "__main__":
    GSTAMP[0] = "stamp" in sys.argv
    MIDS[:] = [36, 38, 40, 100, 98]; ENDR[0] = 64
    for x in sys.argv:
        if x.startswith("pts=") and not x[4:].isdigit(): PTS[:] = x[4:].split(",")
        elif x.startswith("ntt="): NTT.update(x[4:].split(","))
        elif "=" in x: k, v = x.split("="); OPT[k] = int(v)
    build(sys.argv[1])
```

```python
import sys; sys.path.insert(0, "dev")
from gen_common import *
from gen_gemm import f32, mf, SLAB, EPS, C1, C2, xlane, gelu4, emit
import gen_attn16 as AT

WS_ST1 = 0x0950000
WS_PK  = 0x4000000
PK_WO  = 4 * 144 * SLAB
WS_PART = 0x5000000
WS_CX  = 0x7800000
CQ = 1.4426950408889634 / 128 ** 0.5
NAME = "recurrent_scan__mha_block_cached__mixer_s_mlp__prompt_kernel"
P = dict(x=64, k=66, v=68, wq=70, wo=72, w1=76, w2=78, w3=80, w4=82, out=84, dbg=86, ws=88)
PAT = 1; PFD = 10; L16 = 11; T = 12; ST1 = 28
KD = 32; VD = 36; WD = 38; WA = 40; XA = 48; TRA = 49; TRB = 50; TRC = 51; PATB = 52; PCNT = 61; XD = 63
OOB = 0x7fff0000
PTS = []
OPT = dict(pace=72, pace5=50)
def pt(a, name):
    if name in PTS: g_mid(a, PTS.index(name))
    if "CA:" + name in PTS: a.I("s_memtime s[36:37]\ns_memrealtime s[38:39]")
    if "CB:" + name in PTS: a.I("s_memtime s[40:41]\ns_memrealtime s[100:101]")

def pat_regs(a, dst, pitch):
    a.I(f"s_mov_b32 s90, {(1<<32)//18 + 1}\ns_mov_b32 s91, {pitch}")
    for p in range(9):
        a.I(f"""
        v_add_u32 v{T}, {p*64}, v0
        v_mul_hi_u32 v{T+1}, v{T}, s90
        v_mul_u32_u24 v{T+2}, 18, v{T+1}
        v_sub_u32 v{T+2}, v{T}, v{T+2}
        v_mul_lo_u32 v{T+1}, v{T+1}, s91
        v_lshl_add_u32 v{dst+p}, v{T+2}, 4, v{T+1}
        """)
        if p % 4: a.I(f"v_subrev_u32 v{dst+p}, {(p%4)*1024}, v{dst+p}")

def dma_slab(pat, srdW, s_soff, goff, m0expr, tag):
    r = []
    for p in range(9):
        r.append(m0expr((p // 4) * 4096))
        r.append(f"s_add_u32 s3, s{s_soff}, {goff + (0 if pat is not None else (p // 4) * 4096)}")
        r.append(("vm", tag, f"buffer_load_dwordx4 v{pat+p if pat is not None else L16}, s[{srdW}:{srdW+3}], s3 offen offset:{(p%4)*1024} lds"))
    return r

def a_reads(dst, off):
    base = off // 64512; o = off - base * 64512
    assert o + 16*288 + 256 < 65536, off
    return [f"ds_read_b64_tr_b16 {ar(dst + nt*4 + 2*m, 2)}, v{TRA+base} offset:{o + m*16*288 + nt*32}" for nt in range(9) for m in range(2)]

_lbl = [0]
def signal(a, inc, srd_=56):
    inc = inc if isinstance(inc, str) else f"{inc:#x}"
    _lbl[0] += 1; l = f"L_sig{_lbl[0]}"
    au = a.auto; a.auto = False
    a.I(f"""
    s_cmp_lg_u32 s24, 0
    s_cbranch_scc1 {l}
    v_mov_b32 v{T}, 0
    v_mov_b32 v{T+1}, {inc}
    s_mov_b64 exec, 1
    buffer_atomic_add v{T+1}, v{T}, s[{srd_}:{srd_+3}], s33 offen
    s_mov_b64 exec, -1
    """)
    a.label(l); a.auto = au

def poll_issue(a, tag, mask_code, srd_=56, soff="0", front=True):
    au = a.auto; a.auto = False
    a.I(mask_code)
    a.I(f"""
    s_mov_b64 s[42:43], vcc
    s_cmp_eq_u32 s24, 0
    s_cselect_b64 vcc, s[42:43], 0
    v_mov_b32 v{T}, {OOB:#x}
    v_lshlrev_b32 v{T+1}, 2, v0
    v_cndmask_b32 v{PCNT+1}, v{T}, v{T+1}, vcc
    """)
    a.auto = au
    a.bg_add([("vm", tag, f"buffer_load_dword v{PCNT}, v{PCNT+1}, s[{srd_}:{srd_+3}], {soff} offen sc1")], front=front)

def poll_check(a, tag, shift, want, srd_=56, soff="0"):
    _lbl[0] += 1; l = f"L_poll{_lbl[0]}"
    n = a.vm_wait({tag})
    au = a.auto; a.auto = False
    a.I(f"s_cmp_lg_u32 s24, 0\ns_cbranch_scc1 {l}_ok\ns_waitcnt vmcnt({n})\ns_mov_b32 s35, 400000")
    a.label(l)
    a.I(f"""
    v_bfe_u32 v{T}, v{PCNT}, {shift}, 8
    v_cmp_gt_u32 vcc, {want}, v{T}
    s_nop 1
    s_and_b64 vcc, vcc, s[42:43]
    s_cmp_eq_u64 vcc, 0
    s_cbranch_scc1 {l}_ok
    s_sleep 2
    buffer_load_dword v{PCNT}, v{PCNT+1}, s[{srd_}:{srd_+3}], {soff} offen sc1
    s_waitcnt vmcnt(0)
    s_sub_u32 s35, s35, 1
    s_cmp_lg_u32 s35, 0
    s_cbranch_scc1 {l}
    """)
    a.label(l + "_ok"); a.auto = au

def touch(a, srd_, soff, n, addr=None):
    if not OPT.get("pf", 1): return
    au = a.auto; a.auto = False
    if addr is None:
        a.I(f"v_lshlrev_b32 v{T+9}, 7, v0"); addr = T + 9
    for i in range(n):
        if i: a.I(f"s_add_u32 s{soff}, s{soff}, 8192")
        a.vm_issue("PF"); a.I(f"buffer_load_dword v{PFD}, v{addr}, s[{srd_}:{srd_+3}], s{soff} offen")
    a.auto = au


NTT = set()
class Asm2(Asm):
    def vm_issue(self, tag):
        self._tag = tag; super().vm_issue(tag)
    def I(self, s_):
        t = getattr(self, "_tag", None)
        if t and s_.startswith("buffer_load") and " nt" not in s_ and "sc1" not in s_ and (t.rstrip("0123456789") in NTT):
            s_ = s_.replace(" lds", " nt lds") if s_.endswith(" lds") else s_ + " nt"
        self._tag = None
        super().I(s_)

def gen():
    a = Asm2(); kernel_begin(a, NAME); g_begin(a)
    a.pace = OPT["pace"]
    GRP = [1]; SL13 = [0, 1, 2, 3, 0]
    NT = "nt" if OPT.get("nt", 1) else ""
    def resrd(d, *args, **kw):
        for g in a.bg:
            for x in g:
                assert f"s[{d}:{d+3}]" not in (x[2] if isinstance(x, tuple) else x), ("pending bg item uses SRD", d, x)
        srd(a, d, *args, **kw)
    def W(tags, extra=""):
        n = a.vm_wait(set(tags)); a.I(f"s_waitcnt vmcnt({n}){extra}")
    def noauto(f):
        au = a.auto; a.auto = False; f(); a.auto = au
    a.I(f"""
    s_cmp_ge_u32 s2, 256
    s_cbranch_scc0 L_go
    s_endpgm
    """)
    a.label("L_go")
    a.I(f"""
    s_load_dwordx16 s[64:79], s[0:1], 0
    s_load_dwordx8 s[80:87], s[0:1], 64
    s_load_dwordx2 s[88:89], s[0:1], 96
    s_getpc_b64 s[12:13]
    """)
    a.label("L_pc0")
    a.I(f"""
    s_sub_u32 s12, s12, L_pc0-{NAME}
    s_subb_u32 s13, s13, 0
    s_mov_b32 s14, L_code_end-{NAME}
    s_mov_b32 s15, 0x00020000
    s_lshr_b32 s34, s2, 3
    s_lshl_b32 s33, s34, 12
    v_lshlrev_b32 v2, 4, v0
    buffer_load_dwordx4 v[252:255], v2, s[12:15], s33 offen
    s_add_u32 s33, s33, 0x20000
    buffer_load_dwordx4 v[248:251], v2, s[12:15], s33 offen
    v_lshrrev_b32 v1, 6, v0
    v_and_b32 v0, 63, v0
    s_and_b32 s33, s2, 7
    v_readfirstlane_b32 s24, v1
    s_lshl_b32 s48, s33, 3
    s_lshr_b32 s35, s34, 2
    s_add_u32 s48, s48, s35               ; qb32
    v_lshrrev_b32 v{T}, 3, v0
    v_mul_u32_u24 v{T+2}, 1152, v{T}
    v_and_b32 v{T+1}, 7, v0
    v_lshl_add_u32 v{XA}, v{T+1}, 4, v{T+2}
    s_lshl_b32 s26, s48, 2
    s_add_u32 s26, s26, s24
    s_mul_i32 s26, s26, {8*1152}
    s_mov_b32 s10, {SZ_ACT:#x}
    s_mov_b32 s11, 0x00020000
    s_waitcnt lgkmcnt(0)
    s_mov_b32 s8, s{P['x']}
    s_mov_b32 s9, s{P['x']+1}
    """)
    a.vm_issue("PF"); a.vm_issue("PF"); pt(a, 'ka')
    V_B = 64; V_X = 128; ACC1 = 96; AA1 = 168; RAW = 208
    for j in range(9):
        a.vm_issue("B"); a.I(f"buffer_load_dwordx4 {vr(RAW + j*4, 4)}, v{XA}, s[8:11], s26 offen offset:{j*128}")
    a.I(f"""
    s_lshl_b32 s0, s34, 2
    s_add_u32 s0, s0, s24
    s_mul_i32 s35, s0, 5184
    """)
    pt(a, 'xi')
    srd(a, 16, P['w1'], 576*1152)
    touch(a, 16, 35, 1); pt(a, 'tw1')
    a.I(f"""
    s_and_b32 s49, s34, 3                 ; nb (T1 / T3)
    s_and_b32 s47, s34, 1                 ; group
    s_lshr_b32 s34, s34, 1                ; j
    s_lshl_b32 s31, s33, 2
    s_lshr_b32 s35, s34, 2
    s_add_u32 s31, s31, s35               ; head = x*4 + (j>>2)
    s_and_b32 s32, s34, 3
    s_lshl_b32 s32, s32, 1
    s_add_u32 s32, s32, s47               ; Q = 2*(j&3) + grp
    s_lshr_b32 s52, s33, 2
    s_lshl_b32 s52, s52, 2
    s_add_u32 s52, s52, s35               ; r
    s_and_b32 s35, s52, 1
    s_lshr_b32 s52, s52, 1
    s_lshl_b32 s52, s52, 1
    s_add_u32 s52, s52, s47
    s_lshl_b32 s52, s52, 1
    s_add_u32 s52, s52, s35
    s_and_b32 s54, s33, 3                 ; kq
    s_lshr_b32 s51, s33, 1
    s_lshl_b32 s51, s51, 3
    s_and_b32 s35, s34, 7
    s_add_u32 s51, s51, s35               ; fb
    s_and_b32 s50, s33, 1
    s_lshl_b32 s50, s50, 1
    s_lshr_b32 s35, s34, 3
    s_add_u32 s50, s50, s35
    s_lshl_b32 s50, s50, 1
    s_add_u32 s50, s50, s47               ; Q4
    s_mul_i32 s30, s24, {SLAB}
    s_lshl_b32 s55, s24, 12
    s_mul_i32 s33, s49, 288
    s_cmp_ge_u32 s24, 2
    s_cselect_b32 s34, 5, 0
    s_mul_i32 s60, s49, 9
    s_add_u32 s60, s60, s34               ; ntg0
    s_and_b32 s61, s24, 1                 ; qt
    s_mul_i32 s53, s61, 9
    s_add_u32 s53, s53, s34
    s_lshl_b32 s53, s53, 10
    s_lshl_b32 s62, s48, 1
    s_add_u32 s62, s62, s61
    """)
    srd(a, 4, P['w1'], 0, add_lo=33)
    a.I(f"s_sub_u32 s6, {576*1152}, s33")
    pat_regs(a, PAT, 1152)
    a.I(f"v_lshlrev_b32 v{L16}, 4, v0\ns_mul_i32 s25, s24, {32*1152}")
    def slot13(j): return SL13[j] * 4 * SLAB
    def loadW13(j, tagp):
        return dma_slab(PAT, 4, 25, j*128*1152, lambda o: f"s_add_u32 m0, s30, {slot13(j) + o}", f"{tagp}{j}")
    pt(a, 'w0a')
    NW0 = OPT.get("nw0", 3)
    for j in range(NW0):
        for x in loadW13(j, "W"): emit(a, x)
    pt(a, 'w1b')
    for j in range(NW0, 3): a.bg_add(loadW13(j, "W"))
    srd(a, 56, P['dbg'], 256)
    srd(a, 20, P['ws'], 0x10000000)
    XIMG = 3*4*SLAB; XQL = 16*SLAB
    XW = T + 12; XR = T + 13; XQW = T + 14
    a.I(f"""
    v_lshrrev_b32 v{T}, 4, v0
    v_bfe_u32 v{T+1}, v0, 2, 2
    v_lshl_add_u32 v{T}, v{T}, 3, v{T+1}
    v_mul_u32_u24 v{T}, 288, v{T}
    v_and_b32 v{T+1}, 3, v0
    v_lshl_add_u32 v{TRA}, v{T+1}, 3, v{T}
    v_lshlrev_b32 v{PCNT+1}, 2, v0
    v_add_u32 v{TRA}, s30, v{TRA}
    v_add_u32 v{TRB}, 64512, v{TRA}
    s_lshl_b32 s33, s52, 2
    s_bfe_u32 s34, s2, 0x20004
    s_add_u32 s33, s33, s34
    s_lshl_b32 s33, s33, 8
    s_add_u32 s33, s33, {WS_CX:#x}
    s_or_b32 s34, s24, s54
    s_cmp_eq_u32 s34, 0
    s_cselect_b32 s33, s33, {OOB:#x}
    v_mov_b32 v{T}, 0
    """)
    a.vm_issue("CLR"); a.I(f"buffer_store_dword v{T}, v{PCNT+1}, s[20:23], s33 offen sc1")
    a.I(f"""
    v_and_b32 v{T}, 15, v0
    v_mul_u32_u24 v{T}, 1152, v{T}
    v_lshrrev_b32 v{T+1}, 4, v0
    v_lshl_add_u32 v{XD}, v{T+1}, 3, v{T}
    s_lshl_b32 s33, s24, 3
    v_lshrrev_b32 v{T}, 3, v0
    v_add_u32 v{T}, s33, v{T}
    v_bfe_u32 v{T+1}, v{T}, 1, 3
    v_and_b32 v{T+2}, 7, v0
    v_xor_b32 v{T+1}, v{T+1}, v{T+2}
    v_mul_u32_u24 v{T+3}, 1152, v{T}
    v_lshl_add_u32 v{XW}, v{T+1}, 4, v{T+3}
    v_add_u32 v{XW}, {XIMG}, v{XW}
    v_and_b32 v{T}, 15, v{T}
    v_and_b32 v{T+1}, 3, v0
    v_lshl_add_u32 v{T}, v{T+1}, 4, v{T}
    v_lshlrev_b32 v{T}, 4, v{T}
    s_lshr_b32 s33, s24, 1
    s_mul_i32 s33, s33, 5120
    s_add_u32 s33, s33, {XQL}
    v_add_u32 v{XQW}, s33, v{T}
    v_and_b32 v{T}, 15, v0
    v_lshrrev_b32 v{T+1}, 4, v0
    s_lshl_b32 s33, s61, 2
    v_add_u32 v{T+1}, s33, v{T+1}
    v_lshrrev_b32 v{T+2}, 1, v{T}
    v_xor_b32 v{T+1}, v{T+1}, v{T+2}
    v_mul_u32_u24 v{T}, 1152, v{T}
    v_lshl_add_u32 v{XR}, v{T+1}, 4, v{T}
    s_lshr_b32 s33, s24, 1
    s_lshl_b32 s33, s33, 7
    s_add_u32 s33, s33, {XIMG}
    v_add_u32 v{XR}, s33, v{XR}
    v_lshrrev_b32 v{T}, 4, v0
    v_and_b32 v{T+1}, 15, v0
    v_xor_b32 v{T+2}, v{T+1}, v{T}
    v_lshlrev_b32 v{T+2}, 4, v{T+2}
    v_lshl_add_u32 v{KD}, v{T}, 8, v{T+2}
    v_xor_b32 v{KD+1}, 64, v{KD}
    v_xor_b32 v{KD+2}, 0x80, v{KD}
    v_xor_b32 v{KD+3}, 0xc0, v{KD}
    v_lshlrev_b32 v{T+2}, 1, v{T}
    v_xor_b32 v{T+2}, v{T+1}, v{T+2}
    v_lshlrev_b32 v{T+2}, 4, v{T+2}
    v_lshl_add_u32 v{VD}, v{T}, 8, v{T+2}
    v_xor_b32 v{VD+1}, 0x80, v{VD}
    v_lshl_add_u32 v{WD}, v{T}, 13, v{T+2}
    v_xor_b32 v{WD+1}, 0x80, v{WD}
    v_bfe_u32 v{T+1}, v0, 2, 2
    v_lshl_add_u32 v{T+2}, v{T}, 3, v{T+1}
    v_and_b32 v{T}, 1, v{T}
    v_lshl_add_u32 v{T}, v{T}, 2, v{T+1}
    v_lshlrev_b32 v{T}, 1, v{T}
    v_and_b32 v{T+1}, 3, v0
    v_xor_b32 v{T}, v{T}, v{T+1}
    v_lshlrev_b32 v{T}, 4, v{T}
    v_lshl_add_u32 v{WA}, v{T+2}, 8, v{T}
    s_lshl_b32 s33, s32, 4
    s_lshl_b32 s34, s24, 2
    s_add_u32 s46, s33, s34              ; first q tile of this wave (attention rows)
    s_mul_i32 s27, s46, {18*1024}
    s_add_u32 s27, s27, {WS_XQ:#x}
    s_add_u32 s28, s27, {18*1024}
    s_add_u32 s29, s27, {36*1024}
    s_add_u32 s45, s27, {54*1024}
    s_lshl_b32 s34, s31, 8
    s_lshl_b32 s44, s24, 17
    """)
    srd(a, 12, P['wq'], 0, add_lo=34)
    a.I("s_sub_u32 s14, 0x480000, s34")
    for t in range(1, 4): a.I(f"v_xor_b32 v{WA+t}, {t*64}, v{WA}")
    for t in range(4): a.I(f"v_add_u32 v{WA+4+t}, 0x10000, v{WA+t}")
    XS = [27, 28, 29, 45]
    TBL = [74, 75, 1]
    a.I("s_mov_b32 s33, 0\ns_mov_b32 s74, 0\ns_mov_b32 s75, 0\ns_mov_b32 s1, 0")
    if not OPT.get("rot", 0): a.I("s_mov_b32 s33, 0")
    for c in range(9):
        a.I(f"s_add_u32 s34, s33, {c}\ns_sub_u32 s35, s34, 9\ns_cmp_ge_u32 s34, 9\ns_cselect_b32 s34, s35, s34\ns_sub_u32 s35, s34, 9\ns_cmp_ge_u32 s34, 9\ns_cselect_b32 s34, s35, s34\ns_lshl_b32 s34, s34, {3 + 8*(c%4)}\ns_or_b32 s{TBL[c//4]}, s{TBL[c//4]}, s34")
    def cbfe(c): return f"s_bfe_u32 s3, s{TBL[c//4]}, {(8 << 16) | (8*(c%4)):#x}"
    def xset(c): s_ = c % 6; return 32 * s_ if s_ < 4 else 192 + 32*(s_-4)
    def ld_x(c):
        r = []
        for qt in range(4):
            for kl in range(2):
                r += [cbfe(c), "s_lshl_b32 s3, s3, 8", f"s_add_u32 s3, s3, s{XS[qt]}",
                      ("vm", f"X{c}", f"buffer_load_dwordx4 {ar(xset(c) + (kl*4+qt)*4, 4)}, v{L16}, s[20:23], s3 offen offset:{kl*1024}")]
        return r
    def wq_lds(c): return 16384*c if c < 5 else (98304 if GRP[0] == 1 else 0) + 16384*(c-5)
    def dma_wq(c):
        r = []
        for i in range(4):
            r.append(f"s_add_u32 m0, s55, {wq_lds(c) + i*1024}")
            r += [cbfe(c), "s_lshl_b32 s3, s3, 16", "s_add_u32 s3, s3, s44", f"s_add_u32 s3, s3, {i*4*8192}"] if i else [cbfe(c), "s_lshl_b32 s3, s3, 16", "s_add_u32 s3, s3, s44"]
            r.append(("vm", f"Q{c}", f"buffer_load_dwordx4 v{WD+(i>>1)}, s[12:15], s3 offen lds"))
        return r
    def pf_wq():
        srd(a, 16, P['wq'], 0x480000)
        m84 = OPT.get("map84", 0)
        for i in range(2 if m84 else 1):
            a.I(f"""
            s_mul_i32 s35, s0, {72 if m84 else 36}
            v_min_u32 v{T}, 35, v0
            v_add_u32 v{T}, s35, v{T}
            v_add_u32 v{T}, {36*i}, v{T}
            v_lshrrev_b32 v{T+1}, {4 if m84 else 3}, v{T}
            v_and_b32 v{T}, {15 if m84 else 7}, v{T}
            v_lshlrev_b32 v{T}, 7, v{T}
            v_lshl_add_u32 v{T}, v{T+1}, 13, v{T}
            s_and_b32 s35, s2, {6 if m84 else 7}
            s_lshl_b32 s35, s35, 10
            """)
            touch(a, 16, 35, 1, addr=T)
    if OPT.get('pfwq', 2) == 1: pf_wq()
    pt(a, 'xw'); W(["B"]); pt(a, 'xarr')
    a.auto = True
    for r in range(36): a.I(f"v_lshlrev_b32 v{V_X+2*r}, 16, v{RAW+r}\nv_and_b32 v{V_X+2*r+1}, 0xffff0000, v{RAW+r}")
    def red8(d):
        a.I(f"""v_add_f32 v{d}, v{d}, v{d+1}
        s_nop 1
        v_add_f32_dpp v{d}, v{d}, v{d} quad_perm:[1,0,3,2] row_mask:0xf bank_mask:0xf
        s_nop 1
        v_add_f32_dpp v{d}, v{d}, v{d} quad_perm:[2,3,0,1] row_mask:0xf bank_mask:0xf
        s_nop 1
        v_add_f32_dpp v{d}, v{d}, v{d} row_half_mirror row_mask:0xf bank_mask:0xf""")
    d = T + 4
    a.I(f"v_pk_add_f32 v[{d}:{d+1}], v[{V_X}:{V_X+1}], v[{V_X+2}:{V_X+3}]\nv_pk_add_f32 v[{d+2}:{d+3}], v[{V_X+4}:{V_X+5}], v[{V_X+6}:{V_X+7}]")
    for e in range(8, 72, 2): a.I(f"v_pk_add_f32 v[{d+(e&2)}:{d+(e&2)+1}], v[{d+(e&2)}:{d+(e&2)+1}], v[{V_X+e}:{V_X+e+1}]")
    a.I(f"v_pk_add_f32 v[{d}:{d+1}], v[{d}:{d+1}], v[{d+2}:{d+3}]")
    red8(d)
    a.I(f"s_mov_b32 s47, {f32(-1.0/576):#x}\nv_mul_f32 v{d}, s47, v{d}")
    for e in range(0, 72, 2): a.I(f"v_pk_add_f32 v[{V_X+e}:{V_X+e+1}], v[{V_X+e}:{V_X+e+1}], v[{d}:{d+1}] op_sel_hi:[1,0]")
    a.I(f"v_pk_mul_f32 v[{d}:{d+1}], v[{V_X}:{V_X+1}], v[{V_X}:{V_X+1}]\nv_pk_mul_f32 v[{d+2}:{d+3}], v[{V_X+2}:{V_X+3}], v[{V_X+2}:{V_X+3}]")
    for e in range(4, 72, 2): a.I(f"v_pk_fma_f32 v[{d+(e&2)}:{d+(e&2)+1}], v[{V_X+e}:{V_X+e+1}], v[{V_X+e}:{V_X+e+1}], v[{d+(e&2)}:{d+(e&2)+1}]")
    a.I(f"v_pk_add_f32 v[{d}:{d+1}], v[{d}:{d+1}], v[{d+2}:{d+3}]")
    red8(d)
    a.I(f"""
    s_mov_b32 s34, {f32(EPS):#x}
    s_mov_b32 s47, {f32(1.0/576):#x}
    s_mov_b32 s33, {f32(CQ):#x}
    v_mul_f32 v{d}, s47, v{d}
    v_add_f32 v{d+2}, s34, v{d}
    v_fma_f32 v{d+3}, v{d+2}, s34, v{d}
    v_rsq_f32 v{d+2}, v{d+2}
    v_rsq_f32 v{d}, v{d+3}
    s_nop 0
    v_mul_f32 v{d+2}, s33, v{d+2}
    """)
    a.auto = False
    a.I(f"""
    s_mov_b32 s34, 0x0f0f0f0f
    s_bitcmp1_b32 s49, 0
    s_cselect_b32 s34, 0xf0f0f0f0, s34
    s_mov_b32 s35, s34
    s_bitcmp1_b32 s49, 1
    s_cbranch_scc1 L_xq_odd
    """)
    for par in range(2):
        if par: a.label("L_xq_odd")
        for j in range(par, 9, 2):
            b = V_X + j*8; o = RAW + (j >> 1)*4; t = V_B
            for r in range(4): a.I(f"v_pk_mul_f32 v[{t+2*r}:{t+2*r+1}], v[{b+2*r}:{b+2*r+1}], v[{d+2}:{d+3}] op_sel_hi:[1,0]")
            for r in range(4): a.I(f"v_cvt_pk_bf16_f32 v{o+r}, v{t+2*r}, v{t+2*r+1}")
        a.I("s_mov_b64 exec, s[34:35]")
        for j in range(par, 9, 2): a.I(f"ds_write_b128 v{XQW}, {vr(RAW + (j >> 1)*4, 4)} offset:{(j >> 1)*1024}")
        a.I("s_mov_b64 exec, -1")
        if par == 0: a.I("s_branch L_xq_done")
    a.label("L_xq_done"); a.auto = True
    for j in range(9):
        b = V_X + j*8
        for r in range(4): a.I(f"v_pk_mul_f32 v[{b+2*r}:{b+2*r+1}], v[{b+2*r}:{b+2*r+1}], v[{d}:{d+1}] op_sel_hi:[1,0]")
        for r in range(4): a.I(f"v_cvt_pk_bf16_f32 v{b+r}, v{b+2*r}, v{b+2*r+1}")
        a.I(f"ds_write_b128 v{XW}, {vr(b, 4)} offset:{j*128}")
    W(["W0"], " lgkmcnt(0)"); a.I("s_barrier")
    a.I(f"s_lshl_b32 s33, s24, 10\ns_add_u32 s33, s33, {XQL}\nv_add_u32 v{T}, s33, v{L16}")
    for k_ in range(3): a.I(f"ds_read_b128 {vr(RAW + k_*4, 4)}, v{T} offset:{k_*4096}")
    for i in range(5):
        for qt in range(2): a.I(f"ds_read_b128 {vr(V_B + (i*2+qt)*4, 4)}, v{XR} offset:{qt*18432 + i*256}")
    a.auto = False
    a.I("s_waitcnt lgkmcnt(10)")
    for k_ in range(3):
        a.I(f"""
        s_add_u32 s33, s24, {4*k_}
        s_cmp_ge_u32 s33, 5
        s_cselect_b32 s34, 1, 0
        s_mul_i32 s35, s34, 5
        s_sub_u32 s35, s33, s35
        s_lshl_b32 s35, s35, 2
        s_add_u32 s35, s35, s49               ; ks
        s_lshl_b32 s47, s48, 1
        s_add_u32 s34, s34, s47
        s_mul_i32 s34, s34, 18
        s_add_u32 s34, s34, s35
        s_lshl_b32 s34, s34, 10
        s_add_u32 s34, s34, {WS_XQ:#x}
        s_cmp_ge_u32 s35, 18
        s_cselect_b32 s34, {OOB:#x}, s34
        s_cmp_ge_u32 s33, 10
        s_cselect_b32 s34, {OOB:#x}, s34
        """)
        a.vm_issue("XQ"); a.I(f"buffer_store_dwordx4 {vr(RAW + k_*4, 4)}, v{L16}, s[20:23], s34 offen sc1")
    def nat_reads(dst, off):
        base = off // 64512; o = off - base * 64512
        return [f"ds_read_b64_tr_b16 {ar(dst + nt*4 + 2*m, 2)}, v{TRA+base} offset:{o + m*4*288 + nt*32}" for nt in range(9) for m in range(2)]
    for x in nat_reads(AA1, 0): a.I(x)
    a.I(f"s_waitcnt lgkmcnt(0)\ns_barrier\ns_cmp_lt_u32 s24, 2\ns_cbranch_scc1 L_b4ok")
    for r in range(8): a.I(f"v_mov_b32 v{V_B+32+r}, 0")
    a.label("L_b4ok"); a.auto = True
    a.bg_add(loadW13(3, "W") + loadW13(4, "W"), front=True)
    pt(a, 'ln')
    if OPT.get('pfwq', 2) == 2: a.force(None); noauto(pf_wq)
    RED = 90112; XQS = OPT.get('xqs', 2)
    def small_gemm_steps(tagp, accr, AA, bfrag, late_w4, a_reads=a_reads, last_need=()):
        if late_w4:
            W([f"{tagp}0"])
            for x in a_reads(AA, slot13(0)): a.I(x)
        for i in range(5):
            W([f"{tagp}{min(i+1, 4)}", f"B{i}"] + (list(last_need) if i == XQS else []), " lgkmcnt(0)")
            if last_need and i == XQS:
                a.I("s_barrier\ns_lshr_b32 s33, s48, 3\ns_lshl_b32 s33, s33, 5\ns_add_u32 s33, s33, 4"); signal(a, 0x100)
            if late_w4 and i == 0: a.bg_add(loadW13(4, tagp), front=True)
            rd = a_reads(AA + 36*((i+1) % 2), slot13(i+1)) if i < 4 else []
            k = 0
            for nt in range(9):
                for qt in range(2):
                    d = accr(qt*9+nt)
                    a.I(mf(d, ar(AA + 36*(i % 2) + nt*4, 4), bfrag(i, qt), d if i else "0"))
                    if k < len(rd): a.I(rd[k]); k += 1
        a.I(f"s_nop 7\ns_barrier\ns_mul_i32 s33, s24, {18*1024}\ns_add_u32 s33, s33, {RED}\nv_add_u32 v{T}, s33, v{L16}")
    def acc_to_lds(accr):
        for t in range(18): a.I(f"ds_write_b128 v{T}, {accr(t)} offset:{t*1024}")
    RES = 64; BUF = 84; XL = 116; S1V = 64
    def reduce_tiles():
        a.I(f"s_waitcnt lgkmcnt(0)\ns_barrier\ns_add_u32 s33, s53, {RED}\nv_add_u32 v{T}, s33, v{L16}")
        def rd(j):
            for w in range(4): a.I(f"ds_read_b128 {vr(BUF + (j%2)*16 + w*4, 4)}, v{T} offset:{w*18*1024 + j*1024}")
        rd(0)
        for j in range(5):
            if j < 4: rd(j + 1)
            a.I(f"s_waitcnt lgkmcnt({4 if j < 4 else 0})")
            b = BUF + (j%2)*16
            for h in (0, 2):
                a.I(f"v_pk_add_f32 v[{b+h}:{b+h+1}], v[{b+h}:{b+h+1}], v[{b+4+h}:{b+5+h}]")
                a.I(f"v_pk_add_f32 v[{b+8+h}:{b+9+h}], v[{b+8+h}:{b+9+h}], v[{b+12+h}:{b+13+h}]")
                a.I(f"v_pk_add_f32 v[{RES+j*4+h}:{RES+j*4+h+1}], v[{b+h}:{b+h+1}], v[{b+8+h}:{b+9+h}]")
    def piece_off(j, dst):
        a.I(f"s_add_u32 s33, s60, {j}\ns_lshr_b32 s{dst}, s33, 1\ns_lshl_b32 s{dst}, s{dst}, 10\ns_and_b32 s33, s33, 1\ns_lshl_b32 s33, s33, 3\ns_add_u32 s{dst}, s{dst}, s33")
        if j == 4: a.I(f"s_cmp_ge_u32 s24, 2\ns_cselect_b32 s{dst}, {OOB:#x}, s{dst}")
    acc1 = lambda t: ar(ACC1 + t*4, 4)
    small_gemm_steps("W", acc1, AA1, lambda i, qt: vr(V_B + (i*2+qt)*4, 4), False, nat_reads, ["XQ", "CLR"]); pt(a, 't1m')
    acc_to_lds(acc1)
    NQ0 = OPT.get("nq0", 2)
    if OPT.get('c0early', 1):
        poll_issue(a, "P0", "s_lshl_b32 s33, s32, 3\ns_add_u32 s33, s33, 1\nv_cmp_eq_u32 vcc, s33, v0\ns_nop 1"); a.force({"P0"})
    for c in range(NQ0): a.bg_add(dma_wq(c))
    a.I(f"""
    v_lshrrev_b32 v{T+2}, 2, v0
    v_mul_u32_u24 v{T+2}, 288, v{T+2}
    v_and_b32 v{T+3}, 3, v0
    v_lshl_add_u32 v{TRA}, v{T+3}, 3, v{T+2}
    v_add_u32 v{TRA}, s30, v{TRA}
    v_add_u32 v{TRB}, 64512, v{TRA}
    v_add_u32 v{TRC}, 129024, v{TRA}
    """)
    reduce_tiles()
    def do_chk0():
        pt(a, 'c0a'); poll_check(a, "P0", 8, 32); a.I("s_barrier"); pt(a, 'c0b')
        a.bg_add(ld_x(0) + ld_x(1), front=True)
        for c in range(2, 6): a.bg_add((dma_wq(c) if NQ0 <= c < 5 else []) + ld_x(c))
    if OPT.get('c0early', 1): do_chk0()
    else:
        poll_issue(a, "P0", "s_lshl_b32 s33, s32, 3\ns_add_u32 s33, s33, 1\nv_cmp_eq_u32 vcc, s33, v0\ns_nop 1", front=False)
    a.I(f"s_mov_b32 s92, {f32(C2):#x}\ns_mov_b32 s93, {f32(C2):#x}\nv_mov_b32 v{T+4}, {f32(C1):#x}\nv_mov_b32 v{T+5}, {f32(C1):#x}")
    a.I(f"""
    s_cmp_eq_u32 s49, 0
    s_cselect_b32 s47, 1, -1
    s_cmp_eq_u32 s49, 2
    s_cselect_b32 s47, 2, s47
    s_cmp_eq_u32 s49, 3
    s_cselect_b32 s47, -2, s47
    s_lshl_b32 s33, s62, 4
    s_add_u32 s33, s33, s47
    v_and_b32 v{T}, 15, v0
    v_add_u32 v{T}, s33, v{T}
    v_cmp_gt_u32 vcc, 0x800, v{T}
    v_and_b32 v{T}, 0x7ff, v{T}
    v_lshrrev_b32 v{T+1}, 4, v{T}
    v_mul_u32_u24 v{T+1}, {18*1024}, v{T+1}
    v_and_b32 v{T}, 15, v{T}
    v_lshl_add_u32 v{T+1}, v{T}, 4, v{T+1}
    v_and_b32 v{T}, 0x30, v0
    v_lshl_add_u32 v{T+2}, v{T}, 4, v{T+1}
    v_add_u32 v{T+2}, {WS_H:#x}, v{T+2}
    """)
    for j in range(5):
        b = RES + j*4
        gelu4(a, b, BUF + (j%2)*4, T + 4, 92)
        a.I(f"v_cvt_pk_bf16_f32 v{b}, v{b}, v{b+1}\nv_cvt_pk_bf16_f32 v{b+1}, v{b+2}, v{b+3}")
        a.I(f"v_cndmask_b32 v{b}, 0, v{b}, vcc\nv_cndmask_b32 v{b+1}, 0, v{b+1}, vcc")
        piece_off(j, 35)
        a.vm_issue("H"); a.I(f"buffer_store_dwordx2 v[{b}:{b+1}], v{T+2}, s[20:23], s35 offen sc1")
    pt(a, 't1')
    import copy
    def save(): return (list(a.vm), copy.deepcopy(a.bg), a.cyc, a.last_bg, a.auto, a.pace)
    def restore(st): a.vm, a.bg, a.cyc, a.last_bg, a.auto, a.pace = list(st[0]), copy.deepcopy(st[1]), *st[2:]
    def L(n): return f"{n}_g{GRP[0]}"
    def ptg(n): pt(a, f"{n}.{GRP[0]}")
    W64 = "s_lshr_b32 s35, s0, 3\ns_lshl_b32 s35, s35, 2\ns_add_u32 s35, s35, s24"
    QS = 160 * 1024 - 4096
    PCS = [(0, 1), (2, 3), (4,), (5, 6), (7, 8)]; PSZ = 10*1024; GOFF = 64*16*PSZ
    AT.FIRST0[0] = True
    AT.V_KD = KD; AT.V_VD = VD; AT.V_L16 = L16; AT.V_T = T
    AT.V_KA = 64; AT.V_VA = 68; AT.V_LS = 76; AT.V_M = 80; AT.V_NEGM = 96
    KA, VA, NEGM, LSA = AT.V_KA, AT.V_VA, AT.V_NEGM, AT.V_LSA
    a.I("s_mul_i32 s33, s49, 288")
    resrd(4, P['w2'], 0, add_lo=33)
    a.I(f"""
    s_sub_u32 s6, {576*1152}, s33
    s_mul_i32 s26, s48, {2*18*1024}
    s_lshl_b32 s33, s24, 10
    s_add_u32 s26, s26, s33
    s_add_u32 s26, s26, {WS_H:#x}
    s_add_u32 s94, s26, {18*1024}
    s_add_u32 s95, s26, 16384
    s_add_u32 s47, s94, 16384
    s_cmp_ge_u32 s24, 2
    s_cselect_b32 s95, {OOB:#x}, s95
    s_cselect_b32 s47, {OOB:#x}, s47
    v_and_b32 v{T+14}, 15, v0
    v_lshlrev_b32 v{T+14}, 4, v{T+14}
    v_bfe_u32 v{T+15}, v0, 5, 1
    v_lshl_add_u32 v{T+14}, v{T+15}, 8, v{T+14}
    v_bfe_u32 v{T+15}, v0, 4, 1
    v_lshl_add_u32 v{T+14}, v{T+15}, 3, v{T+14}
    s_mul_i32 s63, s62, {18*1024}
    s_lshl_b32 s34, s60, 9
    s_add_u32 s63, s63, s34
    s_add_u32 s63, s63, {WS_XQ:#x}
    """)
    def abuf(y): return 128 + 32 * (y % 2)
    def w_reads(y):
        o = wq_lds(y >> 1) + (y & 1) * 8192
        base = WA + (4 if 65536 <= o < 131072 else 0); o %= 65536
        return [f"ds_read_b64_tr_b16 {ar(abuf(y) + (t*2+b)*4 + 2*m, 2)}, v{base+t} offset:{o + m*1024 + 8*b}" for t in range(4) for b in range(2) for m in range(2)]
    xl_items = [("vm", "XL", f"buffer_load_dwordx2 v[{XL+2*j}:{XL+2*j+1}], v{T+14}, s[20:23], s63 offen offset:{j*512}") for j in range(5)]
    def sig1(): a.I("s_lshl_b32 s33, s48, 2"); signal(a, 1)
    def pf_w2():
        srd(a, 16, P['w2'], 576*1152); a.I("s_mul_i32 s35, s0, 5184"); touch(a, 16, 35, 1)
    def pf_kv():
        a.I(f"{W64}\ns_lshl_b32 s33, s31, 19\ns_and_b32 s35, s35, 15\ns_lshl_b32 s35, s35, 12\ns_add_u32 s35, s35, s33\nv_and_b32 v{T}, 31, v0\nv_lshlrev_b32 v{T}, 7, v{T}")
        srd(a, 56, P['k'], 0x1000000); touch(a, 56, 35, 1, addr=T)
        srd(a, 56, P['v'], 0x1000000); touch(a, 56, 35, 1, addr=T); srd(a, 56, P['dbg'], 256)
    def iss1(): poll_issue(a, "P1", f"v_subrev_u32 v{T+2}, s48, v0\nv_add_u32 v{T+2}, 1, v{T+2}\nv_and_b32 v{T+2}, 63, v{T+2}\nv_cmp_gt_u32 vcc, 3, v{T+2}\ns_nop 1")
    def chk1(): poll_check(a, "P1", 0, 4)
    def ldb3(bT3):
        it = []
        for i in range(5):
            for qt in range(2):
                it.append(f"s_add_u32 s3, s{(26, 94)[qt]}, {i*4096}" if i < 4 else f"s_mov_b32 s3, s{(95, 47)[qt]}")
                it.append(("vm", f"B{i}", f"buffer_load_dwordx4 {ar(bT3(i) + qt*4, 4)}, v{L16}, s[20:23], s3 offen"))
        a.bg_add(it + xl_items, front=True)
    def qp_units(y0, y1, hooks):
        W([f"Q{y0 >> 1}"]); a.I("s_barrier")
        for x in w_reads(y0): a.I(x)
        for x in hooks.get((y0, "pre"), []): x()
        for y in range(y0, y1):
            c = y >> 1
            a.C(f"qproj unit {y}"); ptg(f"u{y}a")
            if y % 2 == 1 and (y + 1 < y1 or (y, "bar") in hooks):
                W(({f"Q{c+1}"} if y + 1 < y1 else set()) | {f"X{c}"} | hooks.get((y, "need"), set()), " lgkmcnt(0)"); a.I("s_barrier")
            else:
                W([f"X{c}"], " lgkmcnt(0)")
            for x in hooks.get((y, "bar"), []): x()
            rd = w_reads(y + 1) if y + 1 < y1 else []
            k = 0; g = 0
            for tb in range(8):
                for qt in range(4):
                    d = vr(128 + (qt*8 + tb)*4, 4)
                    a.I(mf(d, ar(abuf(y) + tb*4, 4), ar(xset(c) + ((y & 1)*4+qt)*4, 4), d if y else "0"))
                    if g < 24 and g % 3 != 2 and k < len(rd): a.I(rd[k]); k += 1
                    g += 1
            for x in hooks.get((y, "post"), []): x()
    def q_convert():
        a.I("s_nop 3")
        for qt in range(4):
            for t in range(4):
                b = 128 + (qt*8 + t*2)*4
                for i in range(4): a.I(f"v_cvt_pk_bf16_f32 v{b+i}, v{b+2*i}, v{b+2*i+1}")
                for i in range(4): a.I(f"v_accvgpr_write_b32 a{AT.A_Q + (qt*4+t)*4 + i}, v{b+i}")
    def selfc(d):
        r = []
        for x in d[1:5]: r += [d[0], "s_nop 0", x]
        return r + [d[5]]
    def kv(lst):
        it = []
        for kind, t in lst: it += selfc(AT.dma_k(a, t) if kind == "k" else AT.dma_v(a, t))
        return it
    def kv_setup():
        a.I("s_lshl_b32 s33, s31, 19\ns_mov_b32 s30, s55\ns_mov_b32 s25, s55\ns_mov_b32 s26, s55")
        resrd(4, P['k'], 524288, add_lo=33); resrd(8, P['v'], 524288, add_lo=33)
        a.bg_add(kv((("k", 0), ("k", 1), ("v", 0), ("k", 2))))
    def t3_epilogue():
        a.I(f"s_mul_i32 s47, s62, {18*1024}\ns_add_u32 s47, s47, {WS_X1:#x}\nv_add_u32 v{T+2}, s47, v{L16}\nv_mov_b32 v{T+6}, {f32(1.0/CQ):#x}")
        for j in range(5):
            b = RES + j*4; s_ = XL + 2*j; e = BUF + (j%2)*8
            piece_off(j, 35)
            a.I(f"""
            v_lshlrev_b32 v{e}, 16, v{s_}
            v_and_b32 v{e+1}, 0xffff0000, v{s_}
            v_lshlrev_b32 v{e+2}, 16, v{s_+1}
            v_and_b32 v{e+3}, 0xffff0000, v{s_+1}
            v_pk_fma_f32 v[{b}:{b+1}], v[{e}:{e+1}], v[{T+6}:{T+7}], v[{b}:{b+1}] op_sel_hi:[1,0,1]
            v_pk_fma_f32 v[{b+2}:{b+3}], v[{e+2}:{e+3}], v[{T+6}:{T+7}], v[{b+2}:{b+3}] op_sel_hi:[1,0,1]
            v_cvt_pk_bf16_f32 v{e+4}, v{b}, v{b+1}
            v_cvt_pk_bf16_f32 v{e+5}, v{b+2}, v{b+3}
            """)
            a.vm_issue("X1"); a.I(f"buffer_store_dwordx2 v[{e+4}:{e+5}], v{T+2}, s[20:23], s35 offen sc1")
            a.I(f"v_lshlrev_b32 v{b}, 16, v{e+4}\nv_and_b32 v{b+1}, 0xffff0000, v{e+4}\nv_lshlrev_b32 v{b+2}, 16, v{e+5}\nv_and_b32 v{b+3}, 0xffff0000, v{e+5}")
        a.auto = False
        a.I(f"""
        s_cmp_ge_u32 s24, 2
        s_cselect_b32 s92, 0, 1.0
        s_mov_b32 s93, {f32(1/80):#x}
        s_cbranch_scc0 {L('L_five')}
        s_mov_b32 s93, {f32(1/64):#x}
        v_mov_b32 v{RES+16}, 0
        v_mov_b32 v{RES+17}, 0
        v_mov_b32 v{RES+18}, 0
        v_mov_b32 v{RES+19}, 0
        """)
        a.label(L("L_five")); a.auto = True
        vals = [RES + e for e in range(20)]
        a.I(f"v_add_f32 v{T+4}, v{vals[0]}, v{vals[1]}")
        for v in vals[2:]: a.I(f"v_add_f32 v{T+4}, v{T+4}, v{v}")
        xlane(a, "v_add_f32", T+4)
        a.I(f"v_mul_f32 v{T+6}, s93, v{T+4}\nv_mul_f32 v{T+7}, s92, v{T+6}\nv_mov_b32 v{T+8}, 0")
        for e, v in enumerate(vals):
            a.I(f"v_sub_f32 v{v}, v{v}, v{T+6 + (1 if e >= 16 else 0)}\nv_fmac_f32 v{T+8}, v{v}, v{v}")
        xlane(a, "v_add_f32", T+8)
        a.I(f"""
        v_mov_b32 v{T+5}, v{T+8}
        s_lshl_b32 s33, s62, 10
        s_lshl_b32 s34, s49, 4
        s_add_u32 s33, s33, s34
        s_lshr_b32 s34, s24, 1
        s_lshl_b32 s34, s34, 3
        s_add_u32 s33, s33, s34
        s_add_u32 s33, s33, {WS_ST:#x}
        v_lshlrev_b32 v{T}, 6, v0
        v_cmp_gt_u32 vcc, 16, v0
        v_mov_b32 v{T+1}, {OOB:#x}
        s_nop 0
        v_cndmask_b32 v{T}, v{T+1}, v{T}, vcc
        """)
        a.vm_issue("X1"); a.I(f"buffer_store_dwordx2 v[{T+4}:{T+5}], v{T}, s[20:23], s33 offen sc1")
    STQ = [84, 88, 92, 28]; MU = 40; RS = 44; ONE4 = 72; CS = 76; ACC4 = 112; A4 = 0
    def f_setup():
        pat_regs(a, PATB, 9216)
        a.I(f"""
        s_lshl_b32 s62, s50, 4
        s_lshl_b32 s34, s24, 2
        s_add_u32 s62, s62, s34
        s_mul_i32 s94, s62, {18*1024}
        s_add_u32 s94, s94, {WS_X1:#x}
        s_lshl_b32 s91, s62, 10
        s_add_u32 s91, s91, {WS_ST:#x}
        s_mul_i32 s92, s24, {32*9216}
        s_mul_i32 s93, s24, {SLAB}
        s_sub_u32 s95, s93, {SLAB}
        s_cmp_eq_u32 s24, 0
        s_cselect_b32 s95, {16*SLAB}, s95
        v_and_b32 v{T+15}, 15, v0
        v_lshlrev_b32 v{T+15}, 6, v{T+15}
        v_and_b32 v{T+9}, 0x30, v0
        v_add_u32 v{T+15}, v{T+15}, v{T+9}
        s_mul_i32 s33, s51, 288
        """)
        resrd(16, P['w3'], 0, add_lo=33)
        a.I(f"s_sub_u32 s18, {576*9216}, s33")
    def tr_plain():
        a.I(f"v_subrev_u32 v{TRA}, s93, v{TRA}\nv_add_u32 v{TRB}, 64512, v{TRA}\nv_add_u32 v{TRC}, 129024, v{TRA}")
    ZB = {1: [(93, 0), (93, 4), (93, 8), (93, 12), (95, 0)], 2: [(93, 8), (93, 12), (95, 0), (93, 3), (93, 7)]}
    SL4 = {1: list(range(17)) + [0], 2: [8, 9, 10, 11, 12, 13, 14, 15, 16, 0, 1, 2, 3, 4, 5, 6, 7, 8]}
    BS4 = {1: [192, 208, 128, 144, 160, 176, 224, 240, 72, 88, 104], 2: [192, 208, 224, 240, 72, 88, 104]}
    def bset4(i): r = BS4[GRP[0]]; return r[i % len(r)]
    def loadW4(j):
        reg, sl = ZB[GRP[0]][j]
        return dma_slab(PATB, 16, 92, j*128*9216, lambda o: f"s_add_u32 m0, s{reg}, {sl*SLAB + o}", f"Z{j}")
    def loadB4(i):
        r = []
        for qt in range(4):
            r += [f"s_add_u32 s3, s94, {qt*18*1024 + i*1024}", ("vm", f"B{i}", f"buffer_load_dwordx4 {ar(bset4(i) + qt*4, 4)}, v{L16}, s[20:23], s3 offen")]
        return r
    st_items = [("vm", "ST", f"buffer_load_dwordx4 {vr(STQ[qt], 4)}, v{T+15}, s[20:23], s91 offen offset:{qt*1024}") for qt in range(4)]
    def f_stats():
        W(["ST"])
        a.I(f"s_mov_b32 s78, {f32(1/576):#x}\ns_mov_b32 s79, {f32(1/80):#x}\ns_mov_b32 s44, {f32(1/64):#x}\ns_mov_b32 s45, {f32(80.0):#x}\ns_mov_b32 s63, {f32(64.0):#x}\ns_mov_b32 s91, {f32(EPS):#x}")
        for qt in range(4):
            b = STQ[qt]
            a.I(f"v_add_f32 v{T}, v{b}, v{b+2}")
            xlane(a, "v_add_f32", T)
            a.I(f"""
            v_mul_f32 v{T}, s78, v{T}
            v_add_f32 v{T+2}, v{b+1}, v{b+3}
            v_fma_f32 v{T+4}, v{b}, s79, -v{T}
            v_mul_f32 v{T+5}, s45, v{T+4}
            v_fmac_f32 v{T+2}, v{T+5}, v{T+4}
            v_fma_f32 v{T+4}, v{b+2}, s44, -v{T}
            v_mul_f32 v{T+5}, s63, v{T+4}
            v_fmac_f32 v{T+2}, v{T+5}, v{T+4}
            v_sub_f32 v{MU+qt}, 0, v{T}
            """)
            xlane(a, "v_add_f32", T+2)
            a.I(f"v_mov_b32 v{T+4}, s91\nv_fmac_f32 v{T+4}, s78, v{T+2}\nv_rsq_f32 v{RS+qt}, v{T+4}")
    def f_phase(hooks, after_loop):
        NB4 = len(BS4[GRP[0]]); sl = SL4[GRP[0]]
        for r in range(4): a.I(f"v_mov_b32 v{ONE4+r}, 0x3f803f80")
        W(["Z0"]); a.I("s_barrier"); ptg('t4b')
        for x in a_reads(A4, sl[0]*SLAB): a.I(x)
        for i in range(18):
            a.C(f"T4 step {i}"); ptg(f"f{i}")
            if i % 4 == 3 or (i, "need") in hooks:
                W(({f"Z{(i+1)//4}"} if i % 4 == 3 else set()) | {f"B{i}"} | hooks.get((i, "need"), set()), " lgkmcnt(0)"); a.I("s_barrier")
                if i == 3: a.bg_add(loadW4(4))
            else:
                W([f"B{i}"], " lgkmcnt(0)")
            for x in hooks.get(i, []): x()
            rd = a_reads(A4 + 36*((i+1) % 2), sl[i+1]*SLAB) if i + 1 < 18 else []
            k = 0
            for ft in range(9):
                for qt in range(4):
                    d = vr(ACC4 + (qt*9+ft)*4, 4)
                    a.I(mf(d, ar(A4 + 36*(i % 2) + ft*4, 4), ar(bset4(i) + qt*4, 4), d if i else "0"))
                    if (ft*4+qt) % 3 != 2 and k < len(rd):
                        a.auto = False; a.I(rd[k]); k += 1; a.auto = True
            a.auto = False
            n = L(f"L_cs{i}")
            a.I(f"s_cmp_gt_u32 s24, 1\ns_cbranch_scc1 {n}_2\ns_cmp_eq_u32 s24, 1\ns_cbranch_scc1 {n}_1")
            for w in range(4):
                if w: a.label(f"{n}_{w}")
                if w == 2: a.I(f"s_cmp_eq_u32 s24, 3\ns_cbranch_scc1 {n}_3")
                for k_, ft in enumerate(range(w, 9, 4)):
                    d = vr(CS + k_*4, 4)
                    a.I(mf(d, ar(A4 + 36*(i % 2) + ft*4, 4), vr(ONE4, 4), d if i else "0"))
                if w < 3: a.I(f"s_branch {n}")
            a.label(n); a.auto = True
            if i + NB4 < 18: a.bg_add(loadB4(i + NB4))
        ptg('t4m')
        a.I(f"""
        s_nop 7
        s_barrier
        v_lshrrev_b32 v{T+6}, 4, v0
        v_lshlrev_b32 v{T+6}, 4, v{T+6}
        v_add_u32 v{T+6}, {QS}, v{T+6}
        s_lshl_b32 s33, s24, 6
        v_add_u32 v{T+1}, s33, v{T+6}
        """)
        for k_ in range(3): a.I(f"ds_write_b128 v{T+1}, {vr(CS + k_*4, 4)} offset:{k_*256}")
        a.I("s_waitcnt lgkmcnt(0)\ns_barrier")
        a.force(None)
        after_loop()
        for ft in range(9): a.I(f"ds_read_b128 {vr(CS + ft*4, 4)}, v{T+6} offset:{ft*64}")
        a.I(f"s_mov_b32 s92, {f32(C2):#x}\ns_mov_b32 s93, {f32(C2):#x}\nv_mov_b32 v{T+4}, {f32(C1):#x}\nv_mov_b32 v{T+5}, {f32(C1):#x}\ns_waitcnt lgkmcnt(0)")
        a.auto = False
        a.I(f"""
        s_mul_i32 s60, s51, 9
        s_lshr_b32 s33, s60, 1
        s_lshl_b32 s33, s33, 10
        s_mul_i32 s47, s62, {144*1024}
        s_add_u32 s47, s47, s33
        s_add_u32 s47, s47, {WS_H3:#x}
        v_add_u32 v{T+10}, 0x1000, v{L16}
        s_bitcmp1_b32 s51, 0
        s_cbranch_scc1 {L('L_t4odd')}
        """)
        a.auto = True
        st0 = save(); ends = []
        for par in range(2):
            restore(st0)
            if par: a.label(L("L_t4odd"))
            for qt in range(4):
                a.I(f"v_mov_b32 v{T+6}, v{MU+qt}\nv_mov_b32 v{T+8}, v{RS+qt}")
                for ft in range(9):
                    b = ACC4 + (qt*9+ft)*4; c = CS + ft*4; t = T + 12
                    for h in (0, 2):
                        a.I(f"v_pk_fma_f32 v[{b+h}:{b+h+1}], v[{c+h}:{c+h+1}], v[{T+6}:{T+7}], v[{b+h}:{b+h+1}] op_sel_hi:[1,0,1]")
                    for h in (0, 2):
                        a.I(f"v_pk_mul_f32 v[{b+h}:{b+h+1}], v[{b+h}:{b+h+1}], v[{T+8}:{T+9}] op_sel_hi:[1,0]")
                    gelu4(a, b, t, T + 4, 92)
                    gt = ft + par; ks = gt >> 1; half = gt & 1
                    ad = f"v{L16 if ks < 4 else T+10}"; off = (ks % 4) * 1024
                    if half == 0 and ft < 8:
                        a.I(f"v_cvt_pk_bf16_f32 v{b}, v{b}, v{b+1}\nv_cvt_pk_bf16_f32 v{b+1}, v{b+2}, v{b+3}")
                    elif half == 1 and ft > 0:
                        pb = b - 4
                        a.I(f"v_cvt_pk_bf16_f32 v{pb+2}, v{b}, v{b+1}\nv_cvt_pk_bf16_f32 v{pb+3}, v{b+2}, v{b+3}")
                        a.vm_issue("H3"); a.I(f"buffer_store_dwordx4 v[{pb}:{pb+3}], {ad}, s[20:23], s47 offen offset:{off} sc1")
                    else:
                        a.I(f"v_cvt_pk_bf16_f32 v{b}, v{b}, v{b+1}\nv_cvt_pk_bf16_f32 v{b+1}, v{b+2}, v{b+3}")
                        a.vm_issue("H3"); a.I(f"buffer_store_dwordx2 v[{b}:{b+1}], {ad}, s[20:23], s47 offen offset:{off + half*8} sc1")
                if qt < 3: a.I(f"s_add_u32 s47, s47, {144*1024}")
            a.force(None)
            a.vm_issue("MK"); a.I(f"buffer_load_dword v{PFD}, v{L16}, s[56:59], 0 offen")
            ends.append(list(a.vm))
            if par == 0: a.I(f"s_branch {L('L_t4done')}")
        a.label(L("L_t4done"))
        a.vm = [t for t in ends[0] if t != "H3"]
        assert a.vm == [t for t in ends[1] if t != "H3"]
        ptg('t4')
    noauto(lambda: a.I("s_bitcmp1_b32 s2, 3\ns_cbranch_scc1 L_g2_pre"))
    S0 = save()
    def wa_hi():
        for t in range(4): a.I(f"v_add_u32 v{WA+t}, 0x20000, v{WA+t}")
    bT3 = lambda i: 192 + i*8
    qp_units(0, 18, {(0, "pre"): [lambda: a.bg_add(dma_wq(5) + dma_wq(6) + dma_wq(7) + dma_wq(8))],
             (1, "post"): [lambda: a.bg_add(ld_x(6)), lambda: noauto(pf_w2)],
             (3, "need"): {"H"}, (3, "bar"): [sig1], (3, "post"): [lambda: a.bg_add(ld_x(7))],
             (5, "bar"): [lambda: a.bg_add(loadW13(0, "U"))], (5, "post"): [lambda: a.bg_add(ld_x(8), front=True)],
             (7, "bar"): [wa_hi], (7, "post"): [lambda: noauto(pf_kv)],
             (9, "bar"): [lambda: a.bg_add(loadW13(1, "U"))],
             (11, "bar"): [lambda: a.bg_add(loadW13(2, "U")), iss1],
             (12, "post"): [chk1], (13, "bar"): [lambda: ldb3(bT3)],
             (15, "bar"): [lambda: a.bg_add(loadW13(3, "U"))]})
    ptg('qp'); q_convert()
    acc3 = lambda t: vr(128 + t*4, 4)
    small_gemm_steps("U", acc3, 0, lambda i, qt: ar(bT3(i) + qt*4, 4), True)
    assert not a.bg
    kv_setup(); acc_to_lds(acc3); reduce_tiles(); t3_epilogue()
    a.force(None); a.auto = False
    a.I("s_lshr_b32 s44, s48, 3\ns_lshl_b32 s44, s44, 5\ns_movk_i32 s45, 0x100\ns_branch L_att")
    a.label("L_g2_pre"); GRP[0] = 2; restore(S0); SL13[:] = [3, 0, 2, 1, 3]
    bT3 = lambda i: i*8
    qp_units(0, 10, {(0, "pre"): [lambda: noauto(pf_w2), lambda: a.bg_add(loadW13(0, "U"))],
             (3, "need"): {"H"}, (3, "bar"): [sig1],
             (5, "bar"): [lambda: a.bg_add(loadW13(1, "U"))], (5, "post"): [iss1],
             (6, "post"): [chk1], (7, "bar"): [lambda: ldb3(bT3)],
             (9, "bar"): [lambda: a.bg_add(loadW13(2, "U") + loadW13(3, "U"))]})
    ptg('qp1')
    acc3 = lambda t: ar(40 + t*4, 4)
    small_gemm_steps("U", acc3, 112, lambda i, qt: ar(bT3(i) + qt*4, 4), True)
    a.bg_add(dma_wq(5) + ld_x(6) + dma_wq(6))
    acc_to_lds(acc3); reduce_tiles()
    a.bg_add(ld_x(7) + dma_wq(7) + ld_x(8) + dma_wq(8))
    t3_epilogue(); ptg('t3')
    f_setup(); tr_plain()
    def sig3(): a.I("s_lshr_b32 s33, s48, 3\ns_lshl_b32 s33, s33, 5"); signal(a, 0x100)
    qp_units(10, 18, {(10, "pre"): [lambda: a.bg_add(loadW4(0) + loadW4(1))],
             (11, "need"): {"X1"}, (11, "bar"): [sig3],
             (13, "bar"): [lambda: a.bg_add(loadW4(2))],
             (16, "post"): [lambda: poll_issue(a, "P3", "s_lshl_b32 s33, s50, 3\nv_cmp_eq_u32 vcc, s33, v0\ns_nop 1")]})
    ptg('qp'); q_convert()
    ptg('c3a'); poll_check(a, "P3", 8, 32); a.I("s_barrier"); ptg('c3b')
    a.bg_add(st_items + loadB4(0) + loadB4(1) + loadB4(2) + loadB4(3), front=True)
    a.bg_add(loadW4(3) + loadB4(4) + loadB4(5) + loadB4(6))
    f_stats()
    f_phase({8: [lambda: noauto(pf_kv)]}, kv_setup)
    a.auto = False
    a.I("s_lshl_b32 s44, s50, 5\ns_mov_b32 s45, 0x10000")
    a.label("L_att"); GRP[0] = 0
    a.vm = [t for x in ("K0", "K1", "V0", "K2") for t in [x]*4]; a.bg = []; a.pace = OPT["pace"]; a.auto = True
    a.I(f"""
    v_lshrrev_b32 v{T}, 4, v0
    v_and_b32 v{T+1}, 15, v0
    v_xor_b32 v{T+2}, v{T+1}, v{T}
    v_lshlrev_b32 v{T+2}, 4, v{T+2}
    v_lshl_add_u32 v{KA}, v{T+1}, 8, v{T+2}
    v_xor_b32 v{KA+1}, 64, v{KA}
    v_xor_b32 v{KA+2}, 0x80, v{KA}
    v_xor_b32 v{KA+3}, 0xc0, v{KA}
    v_lshrrev_b32 v{T}, 2, v0
    v_and_b32 v{T+1}, 7, v{T}
    v_and_b32 v{T+2}, 3, v0
    v_lshlrev_b32 v{T+3}, 8, v{T}
    v_lshl_add_u32 v{T+4}, v{T+1}, 5, v{T+3}
    v_lshl_add_u32 v{T+4}, v{T+2}, 3, v{T+4}
    v_add_u32 v{VA}, {AT.VREG}, v{T+4}
    """)
    for dt in range(1, 8): a.I(f"v_xor_b32 v{VA+dt}, {dt*32}, v{VA}")
    for r in range(4): a.I(f"v_mov_b32 v{AT.V_ONES + r}, 0x3f803f80")
    W(["K0"]); a.I("s_barrier")
    a.bg_add(kv((("v", 1), ("k", 3), ("v", 2))))
    for x in AT.k_reads(0): a.I(x)
    a.I("s_waitcnt lgkmcnt(0)")
    for x in AT.qk_mfmas(0, False): a.I(x)
    for x in AT.k_reads(1): a.I(x)
    a.force(None); a.auto = False
    PKR = 84; PKT = 80
    a.I(f"s_mov_b32 s90, {(1<<32)//6 + 1}")
    for p in range(3):
        a.I(f"""
        v_add_u32 v{T}, {p*64}, v0
        v_mul_hi_u32 v{T+1}, v{T}, s90
        v_mul_u32_u24 v{T+2}, 6, v{T+1}
        v_sub_u32 v{T+2}, v{T}, v{T+2}
        v_mul_u32_u24 v{T+1}, 1152, v{T+1}
        v_lshl_add_u32 v{PAT+p}, v{T+2}, 4, v{T+1}
        """)
        if p: a.I(f"v_subrev_u32 v{PAT+p}, {p*1024}, v{PAT+p}")
    a.I(f"""
    v_lshrrev_b32 v{T}, 2, v0
    v_mul_u32_u24 v{T}, 96, v{T}
    v_and_b32 v{T+1}, 3, v0
    v_lshl_add_u32 v{PKT}, v{T+1}, 3, v{T}
    s_add_u32 s91, s55, 0x20000
    v_add_u32 v{PKT}, s91, v{PKT}
    s_and_b32 s33, s2, 7
    s_lshl_b32 s33, s33, 4
    s_lshr_b32 s34, s2, 4
    s_add_u32 s33, s33, s34
    s_lshl_b32 s33, s33, 2
    s_add_u32 s33, s33, s24
    s_mul_i32 s63, s33, {SLAB}
    s_add_u32 s63, s63, {WS_PK:#x}
    s_add_u32 s92, s33, {512 - 432}
    s_mul_i32 s92, s92, {32*1152}
    s_add_u32 s92, s92, {3*288}
    s_add_u32 s93, s63, {512*SLAB}
    s_cmp_ge_u32 s33, 64
    s_cselect_b32 s92, {OOB:#x}, s92
    s_cselect_b32 s93, {OOB:#x}, s93
    s_mov_b32 s12, s{P['w4']}
    s_mov_b32 s13, s{P['w4']+1}
    s_mov_b32 s14, {4608*1152:#x}
    s_mov_b32 s34, {(1<<32)//144 + 1:#x}
    s_mov_b32 s35, 144
    s_bitcmp1_b32 s2, 3
    s_cbranch_scc1 L_pk0
    s_mov_b32 s12, s{P['wo']}
    s_mov_b32 s13, s{P['wo']+1}
    s_mov_b32 s14, {4096*1152:#x}
    s_mov_b32 s34, {(1<<32)//128:#x}
    s_mov_b32 s35, 128
    s_add_u32 s63, s63, {PK_WO}
    s_mov_b32 s92, {OOB:#x}
    s_mov_b32 s93, {OOB:#x}
    """)
    a.label("L_pk0")
    a.I(f"""
    s_mov_b32 s15, 0x00020000
    s_mul_hi_u32 s34, s33, s34
    s_mul_i32 s35, s34, s35
    s_sub_u32 s33, s33, s35
    s_mul_i32 s33, s33, {32*1152}
    s_mul_i32 s34, s34, 288
    s_add_u32 s94, s33, s34
    """)
    def pk_extra(k):
        if k in (0, 1, 2):
            return {6: ["s_mov_b32 m0, s91", "s_nop 0", ("vm", "PL", f"buffer_load_dwordx4 v{PAT+k}, s[12:15], s94 offen offset:{k*1024} {NT} lds")]}
        if k == 5:
            ex = {52: [lambda: W(["PL"])]}
            for n_ in range(6): ex[53 + 2*n_] = [f"ds_read_b64_tr_b16 {vr(PKR + (n_ >> 1)*4 + (n_ & 1)*2, 2)}, v{PKT} offset:{(n_ & 1)*16*96 + (n_ >> 1)*32}"]
            return ex
        if k in (6, 7):
            return {6 + 12*(n_ & 1): [("vm", "PS", f"buffer_store_dwordx4 {vr(PKR + n_*4, 4)}, v{L16}, s[20:23], s63 offen offset:{n_*1024} sc1")] for n_ in ((0, 1) if k == 6 else (2,))}
        return None
    def rowmax(u, qt, dst):
        b = AT.sbuf(u) + 8*qt
        a.I(f"v_max3_f32 v{dst}, v{b}, v{b+1}, v{b+2}\nv_max3_f32 v{dst}, v{dst}, v{b+3}, v{b+4}\nv_max3_f32 v{dst}, v{dst}, v{b+5}, v{b+6}\nv_max_f32 v{dst}, v{dst}, v{b+7}")
        xlane(a, "v_max_f32", dst)
    for qt in range(4):
        rowmax(0, qt, T)
        for r in range(4): a.I(f"v_sub_f32 v{NEGM + 4*qt + r}, 0, v{T}")
        for r in range(8): a.I(f"v_sub_f32 v{AT.sbuf(0) + 8*qt + r}, v{AT.sbuf(0) + 8*qt + r}, v{T}")
    a.I("s_nop 1")
    pt(a, 'b0')
    for u in range(8):
        AT.body2(a, u, extra=pk_extra(u))
        if u == 2:
            a.I("s_mov_b32 s33, s44"); signal(a, "s45")
    pt(a, 'b8')
    a.I("s_add_u32 s94, s94, 96\ns_add_u32 s63, s63, 3072\ns_mov_b32 s27, 6")
    a.raw(".p2align 6"); a.label("L_att_loop")
    vb = list(a.vm)
    for u in range(8, 16):
        AT.body2(a, u, extra=pk_extra(u - 8))
        if u == 10:
            a.I("s_cmp_lg_u32 s27, 1\ns_cbranch_scc1 L_nocp\ns_lshl_b32 s33, s32, 5\ns_add_u32 s33, s33, 8"); signal(a, 0x01010000); a.label("L_nocp")
    a.I(f"""
    s_add_u32 s94, s94, 96
    s_add_u32 s63, s63, 3072
    s_cmp_eq_u32 s27, 5
    s_cselect_b32 s94, s92, s94
    s_cselect_b32 s63, s93, s63
    s_cmp_eq_u32 s27, 2
    s_cselect_b32 s94, {OOB:#x}, s94
    s_cselect_b32 s63, {OOB:#x}, s63
    s_sub_u32 s27, s27, 1
    s_cmp_lg_u32 s27, 0
    s_cbranch_scc1 L_att_loop
    """)
    sh = lambda tag, d: tag if tag[0] == "P" else tag[0] + str(int(tag[1:]) + d)
    assert [sh(t, 4) for t in vb] == a.vm, (vb, a.vm)
    a.vm = [sh(t, 20) for t in a.vm]
    pt(a, 'b56')
    a.I("s_bfe_u32 s49, s2, 0x20004\ns_bitcmp1_b32 s2, 3\ns_cbranch_scc1 L_g2_post")
    S1 = save()
    NS = 68; ACC5 = 184; A5 = 0; NB5 = 13
    def t5_setup():
        a.I(f"""
        s_mul_i32 s78, s49, 144
        s_mul_i32 s33, s54, 36
        s_add_u32 s78, s78, s33
        s_add_u32 s78, s78, s24
        s_mul_i32 s78, s78, {SLAB}
        s_add_u32 s78, s78, {WS_PK:#x}
        s_lshl_b32 s79, s49, 7
        s_lshl_b32 s33, s54, 5
        s_add_u32 s79, s79, s33
        s_add_u32 s79, s79, s24
        s_mul_i32 s79, s79, {SLAB}
        s_add_u32 s79, s79, {WS_PK + PK_WO:#x}
        s_lshl_b32 s44, s52, 3
        s_lshl_b32 s34, s24, 1
        s_add_u32 s44, s44, s34
        s_lshl_b32 s70, s44, 17
        s_lshl_b32 s33, s54, 15
        s_add_u32 s70, s70, s33
        s_add_u32 s70, s70, {WS_O:#x}         ; O frags
        s_add_u32 s71, s70, {128*1024}
        s_mul_i32 s72, s44, {144*1024}
        s_mul_i32 s33, s54, {36*1024}
        s_add_u32 s72, s72, s33
        s_add_u32 s72, s72, {WS_H3:#x}        ; h3 frags
        s_add_u32 s73, s72, {144*1024}
        s_mul_i32 s76, s24, {SLAB}
        """)
    def N1(): return 32 if GRP[0] == 1 else 36
    def is_s(i): return (i < 32) if GRP[0] == 1 else (i >= 36)
    def kidx(i): return i if i < N1() else i - N1()
    def slot5(i): return ((i + 4) % 16) * SLAB
    def loadW5(j):
        r = []
        for p in range(9):
            if p % 4 == 0: r += [f"s_add_u32 m0, s76, {((j + 1) % 4)*4*SLAB + p*1024}", f"s_add_u32 s83, s{79 if is_s(4*j) else 78}, {kidx(4*j)*SLAB + p*1024}"]
            r.append(("vm", f"Y{j}", f"buffer_load_dwordx4 v{L16}, s[20:23], s83 offen offset:{(p%4)*1024} lds"))
        return r
    B5S = {1: [72 + 8*k_ for k_ in range(7)] + [192, 200, 208, 216, 128, 136], 2: [192, 200, 208, 216, 224, 232, 240, 248, 128, 136, 144, 152, 160]}
    def b5(i): return B5S[GRP[0]][i % NB5]
    def loadB5(i):
        r = []
        for qt in range(2):
            r += [f"s_add_u32 s82, s{(70 if is_s(i) else 72) + qt}, {kidx(i)*1024}", ("vm", f"C{i}", f"buffer_load_dwordx4 {ar(b5(i) + qt*4, 4)}, v{L16}, s[20:23], s82 offen")]
        return r
    def groups(items):
        gs = []; cur = []
        for x in items:
            cur.append(x)
            if isinstance(x, tuple): gs.append(cur); cur = []
        return gs
    def blockmask(par): return f"s_lshr_b32 s33, s52, 1\ns_lshl_b32 s33, s33, 3\nv_cmp_eq_u32 vcc, s33, v0\nv_and_b32 v{T+2}, 15, v0\nv_cmp_eq_u32 s[34:35], {2 + 8*par}, v{T+2}\ns_nop 1\ns_or_b64 vcc, vcc, s[34:35]"
    def att_tail(pre_body, early, mid):
        eg = None
        for u in range(56, 64):
            for x in pre_body.get(u, []): x()
            extra = None
            if u == 62: eg = groups(early()); extra = {g: eg[k_] for k_, g in enumerate((34, 38, 42, 45, 48, 52, 56, 60, 65))}
            if u == 63: extra = {g: eg[9 + k_] for k_, g in enumerate((2, 8, 14, 20, 26, 34, 42, 50))}
            AT.body2(a, u, extra=extra)
        a.I(AT.sm_cvt(63, 14)); a.I(AT.sm_cvt(63, 15))
        for x in AT.v_reads(63): a.I(x)
        a.I("s_waitcnt lgkmcnt(0)")
        for qt in range(4): a.I(mf(vr(LSA + 4*qt, 4), vr(AT.V_ONES, 4), vr(AT.sbuf(63) + qt*8, 4), vr(LSA + 4*qt, 4)))
        for x in AT.pv_mfmas(63): a.I(x)
        mid()
        a.I(f"""
        s_mov_b32 s33, {AT.THR:#x}
        v_cmp_nle_f32 vcc, v{LSA}, s33
        v_cmp_nle_f32 s[34:35], v{LSA+4}, s33
        v_cmp_nle_f32 s[44:45], v{LSA+8}, s33
        v_cmp_nle_f32 s[60:61], v{LSA+12}, s33
        s_nop 1
        s_or_b64 vcc, vcc, s[34:35]
        s_or_b64 s[44:45], s[44:45], s[60:61]
        s_or_b64 vcc, vcc, s[44:45]
        s_cmp_lg_u64 vcc, 0
        s_cselect_b32 s33, 1, {OPT.get('fb', 0)}
        v_mov_b32 v{T}, s33
        v_lshlrev_b32 v{T+1}, 2, v0
        v_add_u32 v{T+1}, {QS}, v{T+1}
        s_lshl_b32 s34, s24, 8
        v_add_u32 v{T+5}, s34, v{T+1}
        ds_write_b32 v{T+5}, v{T}
        s_waitcnt lgkmcnt(0)
        s_barrier
        ds_read_b32 v{T}, v{T+1}
        ds_read_b32 v{T+2}, v{T+1} offset:256
        ds_read_b32 v{T+3}, v{T+1} offset:512
        ds_read_b32 v{T+4}, v{T+1} offset:768
        s_waitcnt lgkmcnt(0)
        v_or3_b32 v{T}, v{T}, v{T+2}, v{T+3}
        v_or_b32 v{T}, v{T}, v{T+4}
        s_nop 0
        v_readfirstlane_b32 s33, v{T}
        s_nop 3
        s_cmp_lg_u32 s33, 0
        s_cbranch_scc1 {L('L_fallback')}
        """)
        a.label(L("L_att_epi")); ptg('attl')
    def o_epilogue(tmax):
        for qt in range(4): a.I(f"v_rcp_f32 v{T+10+qt}, v{LSA+4*qt}")
        a.I(f"s_lshl_b32 s33, s46, 17\ns_lshl_b32 s34, s31, 12\ns_add_u32 s63, s33, s34\ns_add_u32 s63, s63, {WS_O:#x}")
        a.auto = True
        tb = 128
        for qt in range(4):
            for t in range(4):
                src = AT.A_O + (qt*4+t)*8
                tt = tb; tb += 8
                if tb >= tmax: tb = 128
                for i in range(8): a.I(f"v_accvgpr_read_b32 v{tt+i}, a{src+i}")
                for i in range(0, 8, 2): a.I(f"v_pk_mul_f32 v[{tt+i}:{tt+i+1}], v[{tt+i}:{tt+i+1}], v[{T+10+(qt&2)}:{T+11+(qt&2)}] op_sel:[0,{qt&1}] op_sel_hi:[1,{qt&1}]")
                for i in range(4): a.I(f"v_cvt_pk_bf16_f32 v{tt+i}, v{tt+2*i}, v{tt+2*i+1}")
                a.vm_issue("O"); a.I(f"buffer_store_dwordx4 {vr(tt,4)}, v{L16}, s[20:23], s63 offen offset:{t*1024} sc1")
            if qt < 3: a.I("s_add_u32 s63, s63, 0x20000")
        ptg('att')
    def t5_phase(sig_tag, sig_off, sig_inc, chk_shift):
        n1 = N1()
        a.pace = OPT["pace5"]
        srd(a, 4, P['x'], SZ_ACT)
        a.I(f"""
        s_lshl_b32 s47, s52, 2
        s_add_u32 s47, s47, s49
        s_lshl_b32 s93, s47, 2
        s_add_u32 s93, s93, s24
        s_lshl_b32 s93, s93, 2
        s_add_u32 s93, s93, s54
        s_mul_i32 s93, s93, {PSZ}
        s_add_u32 s93, s93, {WS_PART:#x}
        s_lshl_b32 s92, s47, 8
        s_add_u32 s92, s92, {WS_CX:#x}
        s_cmp_ge_u32 s24, 2
        s_cselect_b32 s34, 5, 0
        s_mul_i32 s60, s49, 9
        s_add_u32 s60, s60, s34
        s_lshl_b32 s44, s52, 3
        s_lshl_b32 s33, s54, 1
        s_add_u32 s44, s44, s33
        s_and_b32 s61, s24, 1
        s_add_u32 s44, s44, s61
        s_mul_i32 s45, s44, {16*1152}
        s_lshl_b32 s34, s60, 5
        s_add_u32 s45, s45, s34
        s_mul_i32 s34, s44, {18*1024}
        s_add_u32 s34, s34, {WS_X1:#x}
        v_add_u32 v{T+10}, s34, v{L16}
        s_lshl_b32 s94, s47, 2
        s_add_u32 s94, s94, s54
        s_mul_i32 s94, s94, {4*PSZ}
        s_mul_i32 s33, s61, 5120
        s_add_u32 s94, s94, s33
        s_add_u32 s94, s94, {WS_PART:#x}
        s_add_u32 s91, s94, 3072
        s_cmp_ge_u32 s24, 2
        s_cselect_b32 s94, s91, s94
        s_add_u32 s91, s94, 2048
        s_cmp_ge_u32 s24, 2
        s_cselect_b32 s91, {OOB:#x}, s91
        v_mov_b32 v{TRA}, v{L16}
        v_add_u32 v{TRB}, 64512, v{L16}
        v_add_u32 v{TRC}, 129024, v{L16}
        """)
        def flush_global():
            for qt in range(2):
                for k_, tl in enumerate(PCS):
                    b = ACC5 + (qt*9 + tl[0])*4
                    a.I(f"v_cvt_pk_bf16_f32 v{b}, v{b}, v{b+1}\nv_cvt_pk_bf16_f32 v{b+1}, v{b+2}, v{b+3}")
                    if len(tl) == 2: a.I(f"v_cvt_pk_bf16_f32 v{b+2}, v{b+4}, v{b+5}\nv_cvt_pk_bf16_f32 v{b+3}, v{b+6}, v{b+7}")
                    p = qt*5 + k_
                    a.vm_issue("PT0"); a.I(f"buffer_store_dwordx4 {vr(b, 4)}, v{L16}, s[20:23], s93 offen offset:{(p%4)*1024} sc1")
                    if p % 4 == 3: a.I("s_add_u32 s93, s93, 4096")
        XV = 28; X1V = 38
        def f_reads(dst, off):
            base = off // 64512; o = off - base * 64512
            return [f"ds_read_b128 {ar(dst + nt*4, 4)}, v{TRA+base} offset:{o + nt*1024}" for nt in range(9)]
        W(["Y0"]); a.I("s_barrier")
        for x in f_reads(A5, slot5(0)): a.I(x)
        CK = n1 - NB5 - 1
        assert (CK + 1) % 4 == 3
        nextW = [4]
        for i in range(NS):
            a.C(f"T5 step {i}"); ptg(f"s{i}a")
            if i % 4 == 3 and i + 1 < NS:
                b = (i + 1) // 4
                need = {f"Y{b}", f"C{i}"}
                if i == 3: need |= {sig_tag}
                if i == n1 + 7: need |= {"PT0"}
                W(need, " lgkmcnt(0)"); a.I("s_barrier")
                if i == 3: a.I(sig_off); signal(a, sig_inc)
                if i == n1 + 7: a.I("s_mov_b32 s33, s92"); signal(a, 1, 20)
                while nextW[0] <= b + 3 and nextW[0] < 17 and (4*nextW[0] < n1 or i >= CK + 1): a.bg_add(loadW5(nextW[0])); nextW[0] += 1
            else:
                W([f"C{i}"], " lgkmcnt(0)")
            if i == 5:
                for j in range(5):
                    a.vm_issue("XL"); a.I(f"buffer_load_dwordx2 v[{XV+2*j}:{XV+2*j+1}], v{XD}, s[4:7], s45 offen offset:{j*32}")
            if i == 6:
                for j in range(5):
                    piece_off(j, 35)
                    a.vm_issue("XL"); a.I(f"buffer_load_dwordx2 v[{X1V+2*j}:{X1V+2*j+1}], v{T+10}, s[20:23], s35 offen")
            if i == CK + 1 and OPT.get("pf5b", 0):
                ns, base = (36, WS_PK) if GRP[0] == 1 else (32, WS_PK + PK_WO)
                a.I(f"""
                {W64}
                s_lshr_b32 s33, s35, 4
                s_mul_i32 s33, s33, {ns*4}
                s_mul_i32 s34, s54, {ns}
                s_add_u32 s33, s33, s34
                s_mul_i32 s33, s33, {SLAB}
                s_and_b32 s35, s35, 15
                s_mul_i32 s35, s35, {ns*72//16*128}
                s_add_u32 s35, s35, s33
                s_add_u32 s35, s35, {base:#x}
                """)
                touch(a, 20, 35, 2)
            if i == CK - 3: poll_issue(a, "P4", blockmask(1 if GRP[0] == 1 else 0))
            if i == CK: ptg('c4a'); poll_check(a, "P4", chk_shift, 32); ptg('c4b')
            if i == 51: poll_issue(a, "P6", "v_cmp_eq_u32 vcc, 0, v0\ns_nop 1", 20, "s92")
            if i == 54: poll_check(a, "P6", 0, 4, 20, "s92")
            if i == 55:
                it = []
                for src in range(4):
                    for k_ in range(3):
                        it += [f"s_add_u32 s81, s{94 if k_ < 2 else 91}, {src*PSZ}", ("vm", "HP", f"buffer_load_dwordx4 {vr(128 + (src*3+k_)*4, 4)}, v{L16}, s[20:23], s81 offen offset:{(k_%2)*1024}")]
                a.bg_add(it)
            rd = f_reads(A5 + 36*((i+1) % 2), slot5(i+1)) if i + 1 < NS else []
            first = i in (0, n1)
            k = 0
            for nt in range(9):
                for qt in range(2):
                    d = vr(ACC5 + (qt*9+nt)*4, 4)
                    if qt == 0 and k < len(rd) and nt < 7: a.auto = False
                    a.I(mf(d, ar(A5 + 36*(i % 2) + nt*4, 4), ar(b5(i) + qt*4, 4), "0" if first else d))
                    if (qt == 0 or nt < 2) and k < len(rd):
                        a.auto = False; a.I(rd[k]); k += 1
                    a.auto = True
            if i + NB5 < NS: a.bg_add(loadB5(i + NB5), front=True)
            if i == n1 - 1:
                a.auto = False
                a.I("s_nop 7"); flush_global()
                a.I(f"s_add_u32 s93, s93, {GOFF - 8192}\ns_nop 0"); a.auto = True
        a.force(None); a.auto = False
        ptg('t5')
        a.I(f"s_nop 7\ns_barrier\ns_cmp_eq_u32 s24, s54\ns_cbranch_scc1 {L('L_own')}")
        flush_global()
        a.I(f"s_waitcnt vmcnt(10)\ns_branch {L('L_own_done')}")
        a.label(L("L_own"))
        for t in range(18): a.I(f"ds_write_b128 v{L16}, {vr(ACC5 + t*4, 4)} offset:{t*1024}")
        a.I("s_waitcnt vmcnt(0)")
        a.label(L("L_own_done"))
        SV = 64; XF = 84; X1F = 104; PR = 128
        def add_pieces(dst, base, nsrc, first):
            for j in range(5):
                for s_ in range(nsrc):
                    p = base + (s_*3 + j//2)*4 + (j % 2)*2; d = dst + j*4; e = T + 4*((j*nsrc + s_) % 2)
                    if first and s_ == 0:
                        a.I(f"v_lshlrev_b32 v{d}, 16, v{p}\nv_and_b32 v{d+1}, 0xffff0000, v{p}\nv_lshlrev_b32 v{d+2}, 16, v{p+1}\nv_and_b32 v{d+3}, 0xffff0000, v{p+1}")
                    else:
                        a.I(f"v_lshlrev_b32 v{e}, 16, v{p}\nv_and_b32 v{e+1}, 0xffff0000, v{p}\nv_lshlrev_b32 v{e+2}, 16, v{p+1}\nv_and_b32 v{e+3}, 0xffff0000, v{p+1}")
                        a.I(f"v_pk_add_f32 v[{d}:{d+1}], v[{d}:{d+1}], v[{e}:{e+1}]\nv_pk_add_f32 v[{d+2}:{d+3}], v[{d+2}:{d+3}], v[{e+2}:{e+3}]")
        def silu(y, t):
            for r in range(4): a.I(f"v_mul_f32 v{t+r}, s63, v{y+r}")
            for r in range(4): a.I(f"v_exp_f32 v{t+r}, v{t+r}")
            a.I("s_nop 0")
            for r in range(4): a.I(f"v_add_f32 v{t+r}, 1.0, v{t+r}")
            for r in range(4): a.I(f"v_rcp_f32 v{t+r}, v{t+r}")
            a.I("s_nop 0")
            for h in (0, 2): a.I(f"v_pk_mul_f32 v[{y+h}:{y+h+1}], v[{y+h}:{y+h+1}], v[{t+h}:{t+h+1}]")
        a.I(f"s_mov_b32 s63, {f32(-1.4426950408889634):#x}")
        for j in range(5):
            for (src, dst) in ((XV + 2*j, XF + 4*j), (X1V + 2*j, X1F + 4*j)):
                a.I(f"v_lshlrev_b32 v{dst}, 16, v{src}\nv_and_b32 v{dst+1}, 0xffff0000, v{src}\nv_lshlrev_b32 v{dst+2}, 16, v{src+1}\nv_and_b32 v{dst+3}, 0xffff0000, v{src+1}")
        if GRP[0] == 1: add_pieces(SV, 128, 4, True); LAST = X1F
        else:
            add_pieces(X1F, 128, 4, False); LAST = SV
            for j in range(5): silu(X1F + 4*j, T + 4*(j % 2))
        srd(a, 4, P['out'], SZ_ACT)
        a.I(f"""
        v_add_u32 v{T+8}, s53, v{L16}
        s_waitcnt vmcnt(0) lgkmcnt(0)
        s_barrier
        v_mov_b32 v{T}, 0
        s_cmp_lg_u32 s24, 0
        s_cbranch_scc1 {L('L_cx_wait')}
        v_mov_b32 v{T+1}, 0x100
        s_mov_b64 exec, 1
        buffer_atomic_add v{T+1}, v{T}, s[20:23], s92 offen
        s_mov_b64 exec, -1
        s_mov_b32 s35, 400000
        """)
        a.label(L("L_cx_poll"))
        a.I(f"""
        buffer_load_dword v{T+1}, v{T}, s[20:23], s92 offen sc1
        s_waitcnt vmcnt(0)
        v_readfirstlane_b32 s34, v{T+1}
        s_cmp_ge_u32 s34, 0x400
        s_cbranch_scc1 {L('L_cx_wait')}
        s_sleep 1
        s_sub_u32 s35, s35, 1
        s_cmp_lg_u32 s35, 0
        s_cbranch_scc1 {L('L_cx_poll')}
        """)
        a.label(L("L_cx_wait")); a.I("s_barrier"); ptg('cx')
        for d in range(1, 4):
            a.I(f"s_add_u32 s33, s54, {d}\ns_and_b32 s33, s33, 3\ns_mul_i32 s33, s33, {PSZ}\ns_add_u32 s33, s33, {GOFF}\ns_add_u32 s34, s33, s94\ns_add_u32 s35, s33, s91")
            for k_ in range(3):
                a.I(f"buffer_load_dwordx4 {vr(PR + ((d-1)*3+k_)*4, 4)}, v{L16}, s[20:23], s{34 if k_ < 2 else 35} offen offset:{(k_%2)*1024}")
        if GRP[0] == 1:
            for j in range(5): a.I(f"ds_read_b128 {vr(192 + j*4, 4)}, v{T+8} offset:{j*1024}")
            a.I("s_waitcnt lgkmcnt(0)")
            for j in range(5):
                for h in (0, 2): a.I(f"v_pk_add_f32 v[{X1F+4*j+h}:{X1F+4*j+h+1}], v[{X1F+4*j+h}:{X1F+4*j+h+1}], v[{192+4*j+h}:{193+4*j+h}]")
        else:
            for j in range(5): a.I(f"ds_read_b128 {vr(SV + j*4, 4)}, v{T+8} offset:{j*1024}")
            a.I("s_waitcnt lgkmcnt(0)")
        a.I("s_waitcnt vmcnt(0)")
        add_pieces(LAST, PR, 3, False)
        for j in range(5):
            e = XF + j*4; g = SV + j*4; y = X1F + 4*j
            if GRP[0] == 1: silu(y, 192 + 4*j)
            for h in (0, 2): a.I(f"v_pk_fma_f32 v[{e+h}:{e+h+1}], v[{y+h}:{y+h+1}], v[{g+h}:{g+h+1}], v[{e+h}:{e+h+1}]")
            a.I(f"v_cvt_pk_bf16_f32 v{y}, v{e}, v{e+1}\nv_cvt_pk_bf16_f32 v{y+1}, v{e+2}, v{e+3}")
            if j == 4: a.I(f"s_cmp_ge_u32 s24, 2\ns_cselect_b32 s45, {OOB:#x}, s45")
            a.I(f"buffer_store_dwordx2 v[{y}:{y+1}], v{XD}, s[4:7], s45 offen offset:{j*32}")
        g_end(a, 1, wsreg=P['ws'])
        a.I("s_endpgm")
    def fallback(early):
        a.label(L("L_fallback"))
        a.I("s_waitcnt vmcnt(0)")
        for r in range(128): a.I(f"v_accvgpr_write_b32 a{AT.A_O + r}, 0")
        M = AT.V_M; AT.V_LS = LS = 84
        for qt in range(4): a.I(f"v_mov_b32 v{M+qt}, 0xff800000\nv_mov_b32 v{LS+qt}, 0")
        a.I("s_mov_b32 s25, s30\ns_mov_b32 s26, s30\ns_mov_b32 s27, 64")
        a.label(L("L_fb_loop"))
        a.I(f"s_bitcmp1_b32 s27, 0\ns_cbranch_scc1 {L('L_fb_odd')}\ns_barrier")
        for x in AT.dma_k(a, 0) + AT.dma_v(a, 0): a.I(x[2] if isinstance(x, tuple) else x + "\ns_nop 0")
        a.I("s_waitcnt vmcnt(0)\ns_barrier")
        a.label(L("L_fb_odd"))
        for x in AT.k_reads(0): a.I(x)
        a.I("s_waitcnt lgkmcnt(0)")
        for x in AT.v_reads(0): a.I(x)
        a.I("s_waitcnt lgkmcnt(0)")
        for r in range(12): a.I(f"v_xor_b32 v{KA+r}, 0x2000, v{KA+r}")
        for x in AT.qk_mfmas(0, False): a.I(x)
        a.I("s_nop 7\ns_nop 7")
        for qt in range(4):
            rowmax(0, qt, T)
            a.I(f"v_max_f32 v{T}, v{T}, v{M+qt}\nv_sub_f32 v{T+2}, v{M+qt}, v{T}\nv_exp_f32 v{T+2}, v{T+2}\nv_mov_b32 v{M+qt}, v{T}\nv_mul_f32 v{LS+qt}, v{LS+qt}, v{T+2}")
            for r in range(0, 32, 4):
                o = AT.A_O + qt*32 + r
                for i in range(4): a.I(f"v_accvgpr_read_b32 v{T+4+i}, a{o+i}")
                for i in range(4): a.I(f"v_mul_f32 v{T+4+i}, v{T+4+i}, v{T+2}")
                for i in range(4): a.I(f"v_accvgpr_write_b32 a{o+i}, v{T+4+i}")
            for r in range(8):
                e = 8*qt + r
                a.I(f"v_sub_f32 v{AT.sbuf(0)+e}, v{AT.sbuf(0)+e}, v{T}"); a.I(AT.sm_exp(0, e))
            a.I("s_nop 0")
            for r in range(8): a.I(AT.sm_add(0, 8*qt + r))
            for p in range(4): a.I(AT.sm_cvt(0, 4*qt + p))
        a.I("s_nop 1")
        for x in AT.pv_mfmas(0): a.I(x)
        a.I("s_nop 7\ns_nop 7")
        a.I(f"s_sub_u32 s27, s27, 1\ns_cmp_lg_u32 s27, 0\ns_cbranch_scc1 {L('L_fb_loop')}")
        for qt in range(4):
            a.I(f"v_mov_b32 v{T}, v{LS+qt}"); xlane(a, "v_add_f32", T); a.I(f"v_mov_b32 v{LSA+4*qt}, v{T}")
        a.I("s_barrier")
        for x in early(): a.I(x[2] if isinstance(x, tuple) else x)
        a.I(f"s_waitcnt vmcnt(0)\ns_branch {L('L_att_epi')}")
    GRP[0] = 1
    def pf_w3():
        srd(a, 12, P['w3'], 576*9216)
        a.I(f"{W64}\ns_mul_i32 s35, s35, 162\ns_and_b32 s34, s2, 6\ns_mul_i32 s34, s34, 1152\ns_mov_b32 s33, {(1<<32)//18 + 1}")
        for i in range(3):
            a.I(f"""
            v_min_u32 v{T}, {63 if i < 2 else 33}, v0
            v_add_u32 v{T}, s35, v{T}
            v_add_u32 v{T}, {64*i}, v{T}
            v_mul_hi_u32 v{T+1}, v{T}, s33
            v_mul_u32_u24 v{T+2}, 18, v{T+1}
            v_sub_u32 v{T}, v{T}, v{T+2}
            v_lshlrev_b32 v{T}, 7, v{T}
            v_mul_u32_u24 v{T+1}, 9216, v{T+1}
            v_add_u32 v{T}, v{T}, v{T+1}
            """)
            touch(a, 12, 34, 1, addr=T)
    def pf_x1():
        a.I(f"{W64}\ns_and_b32 s35, s35, 31\ns_mul_i32 s35, s35, 9216\ns_mul_i32 s34, s50, {16*18*1024}\ns_add_u32 s35, s35, s34\ns_add_u32 s35, s35, {WS_X1:#x}")
        touch(a, 20, 35, 1)
        a.I(f"s_add_u32 s35, s35, 8192\nv_min_u32 v{T}, 7, v0\nv_lshlrev_b32 v{T}, 7, v{T}"); touch(a, 20, 35, 1, addr=T)
    def st_now():
        f_setup()
        for x in st_items: emit(a, x)
    early1 = lambda: loadW4(0) + loadB4(0) + loadB4(1)
    att_tail({56: [lambda: (poll_issue(a, "P3", "s_lshl_b32 s33, s50, 3\nv_cmp_eq_u32 vcc, s33, v0\ns_nop 1"), a.force({"P3"}))],
              57: [pf_w3], 58: [lambda: poll_check(a, "P3", 8, 32)], 59: [pf_x1], 61: [st_now]}, early1, lambda: (tr_plain(), f_stats()))
    a.pace = OPT["pace"]
    a.bg_add(loadW4(1) + loadB4(2) + loadB4(3) + loadW4(2) + loadB4(4) + loadB4(5) + loadW4(3) + loadB4(6) + loadB4(7))
    o_epilogue(256)
    a.bg_add(loadB4(8) + loadB4(9) + loadB4(10))
    t5_setup()
    def t5a():
        it = loadW5(0)
        for k_ in range(4): it += loadB5(k_)
        it += loadW5(1)
        for k_ in range(4, 7): it += loadB5(k_)
        a.bg_add(it)
    def t5b():
        for k_ in range(7, NB5): a.bg_add(loadB5(k_))
    f_phase({(1, "need"): {"O"}, 1: [lambda: (a.I("s_lshl_b32 s33, s32, 5"), signal(a, 0x1000000))],
             8: [lambda: poll_issue(a, "P5", blockmask(0))], 10: [lambda: poll_check(a, "P5", 24, 32)],
             11: [t5a], 14: [t5b], 15: [lambda: a.bg_add(loadW5(2))]}, lambda: a.bg_add(loadW5(3)))
    t5_phase("MK", "s_lshl_b32 s33, s50, 5", 0x10000, 16)
    fallback(early1)
    a.label("L_g2_post"); GRP[0] = 2; restore(S1)
    def early2():
        it = []
        for g_ in groups(loadW5(0)): it += g_ if len(g_) > 1 else ["s_nop 0"] + g_
        for k_ in range(4): it += loadB5(k_)
        return it
    att_tail({56: [t5_setup], 58: [lambda: (poll_issue(a, "P5", blockmask(1)), a.force({"P5"}))], 60: [lambda: poll_check(a, "P5", 16, 32)]}, early2, lambda: None)
    a.pace = OPT["pace"]
    it = loadW5(1)
    for k_ in range(4, 8): it += loadB5(k_)
    it += loadW5(2)
    for k_ in range(8, NB5): it += loadB5(k_)
    a.bg_add(it + loadW5(3))
    o_epilogue(184)
    a.force(None)
    t5_phase("O", "s_lshl_b32 s33, s32, 5", 0x1000000, 24)
    fallback(early2)
    a.label("L_code_end")
    return a

MAC = {}
def compress(l):
    import re
    m = re.fullmatch(r"v_mfma_f32_16x16x32_bf16 ([va])\[(\d+):\d+\], ([va])\[(\d+):\d+\], ([va])\[(\d+):\d+\], (?:([va])\[(\d+):\d+\]|0)", l)
    if m:
        d, di, x, xi, y, yi, c, ci = m.groups()
        kind = "Z" if c is None else ("S" if ci == di else "C")
        name = f"M{d}{x}{y}{kind}"
        if name not in MAC:
            cexp = "0" if kind == "Z" else (f"{d}[\\d:\\d+3]" if kind == "S" else f"{d}[\\c:\\c+3]")
            MAC[name] = f".macro {name} d,x,y{',c' if kind == 'C' else ''}\nv_mfma_f32_16x16x32_bf16 {d}[\\d:\\d+3], {x}[\\x:\\x+3], {y}[\\y:\\y+3], {cexp}\n.endm\n"
        return f"{name} {di},{xi},{yi}" + (f",{ci}" if kind == "C" else "")
    m = re.fullmatch(r"ds_read_b64_tr_b16 a\[(\d+):\d+\], v(\d+) offset:(\d+)", l)
    if m:
        MAC.setdefault("TR", ".macro TR d,x,o\nds_read_b64_tr_b16 a[\\d:\\d+1], v\\x offset:\\o\n.endm\n"); return f"TR {m.group(1)},{m.group(2)},{m.group(3)}"
    m = re.fullmatch(r"ds_read_b128 a\[(\d+):\d+\], v(\d+) offset:(\d+)", l)
    if m:
        MAC.setdefault("RD", ".macro RD d,x,o\nds_read_b128 a[\\d:\\d+3], v\\x offset:\\o\n.endm\n"); return f"RD {m.group(1)},{m.group(2)},{m.group(3)}"
    m = re.fullmatch(r"v_cvt_pk_bf16_f32 v(\d+), v(\d+), v(\d+)", l)
    if m:
        MAC.setdefault("CV", ".macro CV d,x,y\nv_cvt_pk_bf16_f32 v\\d, v\\x, v\\y\n.endm\n"); return f"CV {m.group(1)},{m.group(2)},{m.group(3)}"
    m = re.fullmatch(r"v_exp_f32_e64 v(\d+), v\1", l)
    if m:
        MAC.setdefault("EX", ".macro EX d\nv_exp_f32_e64 v\\d, v\\d\n.endm\n"); return f"EX {m.group(1)}"
    return l

def build(path):
    a = gen()
    hdr = open("recurrent_scan__mha_block_cached__mixer_s_mlp__prompt.s.ref").read().split("; Override launch")[0]
    hdr += "; @launch grid=(256,1,1) block=(256,1,1) lds=163840\n"
    hdr += '.amdgcn_target "amdgcn-amd-amdhsa--gfx950"\n'
    lines = [l[4:] if l.startswith("    ") else l for l in a.L]
    open(path + ".full", "w").write(hdr + "\n".join(lines) + "\n" + kernel_desc(NAME, 512, 256))
    txt = "\n".join(compress(l) for l in lines if not l.startswith(";")) + "\n"
    open(path, "w").write(hdr + "".join(MAC.values()) + txt + kernel_desc(NAME, 512, 256))
if __name__ == "__main__":
    GSTAMP[0] = "stamp" in sys.argv
    MIDS[:] = [36, 38, 40, 100, 98]; ENDR[0] = 64
    for x in sys.argv:
        if x.startswith("pts="): PTS[:] = x[4:].split(",")
        elif x.startswith("ntt="): NTT.update(x[4:].split(","))
        elif "=" in x: k, v = x.split("="); OPT[k] = int(v)
    build(sys.argv[1])
```
